```python
import torch

def _softmax(x, axis=-1):
    return torch.softmax(x, dim=axis)
def _gelu(x):
    return torch.nn.functional.gelu(x, approximate="tanh")
def _silu(x):
    return torch.nn.functional.silu(x)
def _sigmoid(x):
    return torch.sigmoid(x)
def _layernorm(x, axis=-1, eps=1e-5):
    m = x.mean(dim=axis, keepdim=True)
    v = x.var(dim=axis, keepdim=True, unbiased=False)
    return (x - m) / torch.sqrt(v + eps)
def _scatter_add(tgt, idx, src, axis=0):
    return tgt.clone().index_add_(axis, idx, src)
def _segment_sum(src, seg, n):
    out = torch.zeros((n,) + src.shape[1:], dtype=src.dtype)
    return out.index_add_(0, seg, src)
def _pad(x, pw):
    flat = tuple(v for pair in reversed(pw) for v in pair)
    return torch.nn.functional.pad(x, flat)

kernel_name = 'gated_mix__linear_attn_block__ssm_conv_s4d__prompt'

def setup_inputs():

    _w = (lambda a: (lambda t: t.to(torch.bfloat16) if t.is_floating_point() else t)(torch.as_tensor(a)))
    def _A_setup():
        B, S, D = 1, 2048, 576
        return {
            "x": _w((lambda *s: torch.randn(*s, dtype=torch.bfloat16) * 0.05)(B, S, D)),
            "wqkv": _w((lambda *s: torch.randn(*s, dtype=torch.bfloat16) * 0.8)(D, 3 * D)),
            "wo": _w((lambda *s: torch.randn(*s, dtype=torch.bfloat16) * 0.05)(D, D)),
        }
    _A_in = _A_setup()

    def _B_setup():
        Bsz, L, D, N = 1, 2048, 576, 128
        return {
            "u": _w((lambda *s: torch.randn(*s, dtype=torch.bfloat16) * 0.05)(Bsz, L, D)),
            "log_A_real": _w((lambda *s: torch.randn(*s, dtype=torch.bfloat16) * 6.4)(D, N) * 0.5),
            "A_imag": _w((lambda *s: torch.randn(*s, dtype=torch.bfloat16) * 0.05)(D, N) * 3.14),
            "C_real": _w((lambda *s: torch.randn(*s, dtype=torch.bfloat16) * 0.2)(D, N) / N ** 0.5),
            "C_imag": _w((lambda *s: torch.randn(*s, dtype=torch.bfloat16) * 0.2)(D, N) / N ** 0.5),
            "log_dt": _w((lambda *s: torch.randn(*s, dtype=torch.bfloat16) * 0.05)(D) * 0.5 - 4.0),
            "D_skip": _w((lambda *s: torch.randn(*s, dtype=torch.bfloat16) * 0.05)(D)),
        }
    _B_in = _B_setup()

    return {
        "A_x": _A_in["x"],
        "A_wqkv": _A_in["wqkv"],
        "A_wo": _A_in["wo"],
        "B_u": _B_in["u"],
        "B_log_A_real": _B_in["log_A_real"],
        "B_A_imag": _B_in["A_imag"],
        "B_C_real": _B_in["C_real"],
        "B_C_imag": _B_in["C_imag"],
        "B_log_dt": _B_in["log_dt"],
        "B_D_skip": _B_in["D_skip"],
        "gate_w": _w((lambda *s: torch.randn(*s, dtype=torch.bfloat16) * 0.05)(576) * 16.0),
    }

def reference(A_x, A_wqkv, A_wo, B_u, B_log_A_real, B_A_imag, B_C_real, B_C_imag, B_log_dt, B_D_skip, gate_w):
    def _A_ref(x, wqkv, wo):
        B, S, D = x.shape
        H = 32; Dh = D // H
        qkv = (lambda x, *d: x.permute(*d))((x @ wqkv).reshape(B, S, 3, H, Dh), 2, 0, 3, 1, 4)
        q, k, v = qkv[0], qkv[1], qkv[2]
        phi = lambda t: torch.where(t > 0, t + 1, torch.exp(t)) + 1e-6
        pq, pk = phi(q), phi(k)
        kv = torch.einsum("bhsd,bhse->bhde", pk, v)
        z = torch.einsum("bhsd->bhd", pk)
        num = torch.einsum("bhqd,bhde->bhqe", pq, kv)
        den = torch.einsum("bhqd,bhd->bhq", pq, z)[..., None] + 1e-6
        o = num / den
        return (lambda x, *d: x.permute(*d))(o, 0, 2, 1, 3).reshape(B, S, D) @ wo

    def _B_ref(u, log_A_real, A_imag, C_real, C_imag, log_dt, D_skip):
        L = u.shape[1]
        dt = torch.exp(log_dt)
        A = -torch.exp(log_A_real) + 1j * A_imag
        C = (C_real + 1j * C_imag) * dt[:, None]
        pos = (lambda x, dt: x.to(dt))(torch.arange(L), log_dt.dtype)
        P = torch.exp((A * dt[:, None])[:, :, None] * pos[None, None, :])
        K = 2.0 * torch.einsum("dn,dnl->dl", C, P).real
        L2 = 2 * L
        u_t = (lambda x, *d: x.permute(*d))(u, 0, 2, 1)
        Kf = (lambda x, *a, **k: torch.fft.rfft(x.float(), *a, **k))(K, L2)
        Uf = (lambda x, *a, **k: torch.fft.rfft(x.float(), *a, **k))(u_t, L2)
        y = (lambda x, *a, **k: torch.fft.irfft(x, *a, **k).to(torch.bfloat16))(Uf * Kf[None, :, :], L2)[:, :, :L]
        y = (lambda x, *d: x.permute(*d))(y, 0, 2, 1)
        return y + u * D_skip[None, None, :]

    x = A_x
    g = _sigmoid((x * gate_w).sum(-1, keepdims=True))
    a = _A_ref(x, A_wqkv, A_wo)
    b = _B_ref(x, B_log_A_real, B_A_imag, B_C_real, B_C_imag, B_log_dt, B_D_skip)
    return g * a + (1 - g) * b
```

```python
class Asm:
    def __init__(self):
        self.lines = []
        self.lbl = 0
    def __call__(self, s):
        for ln in s.strip("\n").split("\n"):
            self.lines.append("  " + ln.strip())
    def label(self, name):
        self.lines.append(name + ":")
    def raw(self, s):
        self.lines.append(s)
    def comment(self, s):
        self.lines.append("  ; " + s)
    def newlabel(self, p="L"):
        self.lbl += 1
        return f"{p}_{self.lbl}"
    def text(self):
        return "\n".join(self.lines) + "\n"

def v(i, n=1):
    return f"v{i}" if n == 1 else f"v[{i}:{i+n-1}]"
def s(i, n=1):
    return f"s{i}" if n == 1 else f"s[{i}:{i+n-1}]"
def a(i, n=1):
    return f"a{i}" if n == 1 else f"a[{i}:{i+n-1}]"

def srd(A, d, lo, hi, nbytes):
    A(f"s_mov_b32 s{d}, s{lo}")
    A(f"s_and_b32 s{d+1}, s{hi}, 0xffff")
    A(f"s_mov_b32 s{d+2}, {nbytes}")
    A(f"s_mov_b32 s{d+3}, 0x20000")

def kdesc(name, vgpr, sgpr=102, accum=None):
    if accum is None: accum = (vgpr + 3) // 4 * 4
    return f""".p2align 6
.amdhsa_kernel {name}
  .amdhsa_next_free_vgpr {vgpr}
  .amdhsa_next_free_sgpr {sgpr}
  .amdhsa_accum_offset {accum}
  .amdhsa_group_segment_fixed_size 0
  .amdhsa_kernarg_size 112
  .amdhsa_user_sgpr_count 2
  .amdhsa_user_sgpr_kernarg_segment_ptr 1
  .amdhsa_system_sgpr_workgroup_id_x 1
.end_amdhsa_kernel
"""
```

```python
import re
_reg = re.compile(r"^(-|abs\()?([vas])(\d+|\[(\d+):(\d+)\])\)?$")
TRANS = ("v_exp_f32", "v_log_f32", "v_rcp_f32", "v_rsq_f32", "v_sqrt_f32", "v_sin_f32", "v_cos_f32")
def regs(op):
    op = op.strip()
    if op == "vcc": return [("s", "vcc")]
    if op in ("exec", "exec_lo", "exec_hi", "m0", "off"): return []
    m = _reg.match(op)
    if not m: return []
    k = m.group(2)
    if m.group(4) is not None: return [(k, i) for i in range(int(m.group(4)), int(m.group(5)) + 1)]
    return [(k, int(m.group(3)))]
def split_ops(rest):
    out, depth, cur = [], 0, ""
    for ch in rest:
        if ch == "[": depth += 1
        if ch == "]": depth -= 1
        if ch == "," and depth == 0: out.append(cur); cur = ""
        else: cur += ch
    out.append(cur)
    last = out[-1].strip().split()
    out[-1] = last[0] if last else ""
    return [o.strip() for o in out], last[1:]
def parse(ins):
    ins = ins.strip()
    mn, _, rest = ins.partition(" ")
    ops, mods = split_ops(rest) if rest else ([], [])
    R = [regs(o) for o in ops]
    flat = lambda L: [x for l in L for x in l]
    d, u, kind = [], [], "other"
    if mn.startswith("v_mfma"):
        kind = "mfma"; d = R[0]; u = flat(R[1:])
    elif mn.startswith("v_cmp"):
        kind = "valu"; d = R[0]; u = flat(R[1:])
    elif mn.startswith("v_"):
        kind = "valu"; d = R[0]; u = flat(R[1:])
        if mn.startswith(("v_fmac", "v_mac", "v_dot2c", "v_permlane", "v_writelane")): u = u + R[0]
        if mn.startswith("v_permlane"): d = d + R[1]
        if mn.startswith("v_cndmask") and len(ops) == 3: u = u + [("s", "vcc")]
    elif mn.startswith("ds_read") or mn.startswith("ds_bpermute") or mn.startswith("ds_swizzle"):
        kind = "dsr"; d = R[0]; u = flat(R[1:])
    elif mn.startswith("ds_"):
        kind = "dsw"; u = flat(R)
    elif mn.startswith(("buffer_load", "global_load")):
        if "lds" in mods: kind = "vmw"; u = flat(R)
        else: kind = "vmr"; d = R[0]; u = flat(R[1:])
    elif mn.startswith(("buffer_store", "global_store", "buffer_atomic", "global_atomic")):
        kind = "vmw"; u = flat(R)
        if "atomic" in mn and "sc0" in mods: kind = "vmr"; d = R[0]
    elif mn.startswith("s_"):
        kind = "salu"
        if mn not in ("s_waitcnt", "s_nop", "s_barrier", "s_endpgm") and not mn.startswith(("s_cmp", "s_cbranch", "s_branch")):
            d = R[0] if R else []; u = flat(R[1:])
        elif mn.startswith("s_cmp"): u = flat(R)
    return mn, kind, d, u, R, mods

class Auto:
    def __init__(self, A):
        self.A = A
        self.t = 0
        self.ds = []
        self.vm = []
        self.lastw = {}
        self.mfma_c = {}
        self.store_rd = {}
    def emit(self, s):
        self.A(s)
        m = re.match(r"s_nop (\d+)", s)
        self.t += int(m.group(1)) + 1 if m else 1
    def __call__(self, text):
        for ln in text.strip("\n").split("\n"):
            ln = ln.strip()
            if ln: self.one(ln)
    def _need(self, q, touched):
        n = None
        for i, dset in enumerate(q):
            if dset & touched: n = len(q) - 1 - i
        return n
    def flush(self):
        self.ds, self.vm = [], []
    def wait_vm_tag(self, tag):
        n = None
        for i, dset in enumerate(self.vm):
            if tag in dset: n = len(self.vm) - 1 - i
        if n is not None:
            self.emit(f"s_waitcnt vmcnt({min(n,63)})"); self.vm = self.vm[len(self.vm) - min(n, 63):] if n else []
    def one(self, ins, tag=None):
        mn, kind, d, u, R, mods = parse(ins)
        if mn == "s_waitcnt":
            m = re.search(r"lgkmcnt\((\d+)\)", ins)
            if m: n = int(m.group(1)); self.ds = self.ds[len(self.ds) - n:] if n else []
            m = re.search(r"vmcnt\((\d+)\)", ins)
            if m: n = int(m.group(1)); self.vm = self.vm[len(self.vm) - n:] if n else []
            self.emit(ins); return
        touched = set(d) | set(u)
        w = []
        n = self._need(self.ds, touched)
        if n is not None:
            n = min(n, 15); w.append(f"lgkmcnt({n})"); self.ds = self.ds[len(self.ds) - n:] if n else []
        n = self._need(self.vm, touched)
        if n is not None:
            n = min(n, 63); w.append(f"vmcnt({n})"); self.vm = self.vm[len(self.vm) - n:] if n else []
        if w: self.emit("s_waitcnt " + " ".join(w))
        need = 0
        def req(r, dist):
            nonlocal need
            k, t0, _ = self.lastw[r]
            need = max(need, dist - (self.t - t0 - 1))
        for r in set(u):
            if r not in self.lastw: continue
            k, t0, tup = self.lastw[r]
            if k == "mfma":
                if kind == "mfma":
                    if r in R[3] and r not in R[1] and r not in R[2]:
                        if tuple(R[3]) != tup: req(r, 6)
                    else: req(r, 8)
                elif kind in ("valu", "dsw", "dsr", "vmw", "vmr"): req(r, 8)
            elif k in ("valu", "trans"):
                if r[0] == "s":
                    if kind == "valu": req(r, 4 if mn.startswith(("v_readlane", "v_writelane")) else 2)
                    elif kind in ("vmw", "vmr"): req(r, 5)
                else:
                    if kind == "mfma": req(r, 2)
                    elif mn.startswith(("v_readlane", "v_readfirstlane")): req(r, 1)
                    elif mn.startswith("v_permlane") or "dpp" in mn or any(m_.startswith(("row_", "quad_perm")) for m_ in mods): req(r, 2)
                    elif k == "trans" and kind == "valu" and mn not in TRANS: req(r, 1)
        for r in set(d):
            if r in self.lastw and self.lastw[r][0] == "mfma" and kind in ("valu", "dsr", "vmr"): req(r, 8)
            if r in self.lastw and self.lastw[r][0] == "mfma" and kind == "mfma" and tuple(d) != self.lastw[r][2]: req(r, 6)
            if kind == "valu" and r in self.mfma_c: need = max(need, 3 - (self.t - self.mfma_c[r] - 1))
            if kind in ("valu", "dsr", "vmr") and r in self.store_rd: need = max(need, 2 - (self.t - self.store_rd[r] - 1))
        while need > 0:
            k = min(need, 16); self.emit(f"s_nop {k-1}"); need -= k
        t = self.t
        self.emit(ins)
        wk = "trans" if mn.split("_e")[0] in TRANS else kind
        for r in d: self.lastw[r] = (wk, t, tuple(d))
        if kind == "mfma":
            for r in R[3]: self.mfma_c[r] = t
        if kind == "vmw" and ("x4" in mn or "x3" in mn) and "store" in mn:
            for r in R[0]: self.store_rd[r] = t
        if kind in ("dsr", "dsw"): self.ds.append(set(d))
        if kind in ("vmr", "vmw"): self.vm.append(set(d) | ({tag} if tag else set()))
```

```python
from asm import *
import sys
NOMFMA = '--nomfma' in sys.argv
NODMA = '--nodma' in sys.argv
LOOK = int([a for a in sys.argv if a.startswith('--look=')][0][7:]) if any(a.startswith('--look=') for a in sys.argv) else 3
LBAR = int([a for a in sys.argv if a.startswith('--lbar=')][0][7:]) if any(a.startswith('--lbar=') for a in sys.argv) else None

WS_PQ = 0
WS_KVQ = 0x240000
WS_G = 0x250000
WS_BT = 0x260000
WS_END = 0x4A0000
WS_STAMP = 0x500000
WS_SIZE = 0x600000

S_X, S_W, S_WO, S_LOGA, S_AIM, S_CRE, S_CIM = 16, 18, 20, 24, 26, 28, 30
S_LOGDT, S_DSKIP, S_GATE, S_OUT, S_DBG, S_WS = 32, 34, 36, 38, 40, 42
SX, SW, SWS, SDBG, SG = 44, 48, 52, 56, 60
S_WAVE, S_RB, S_CG = 64, 65, 66
S_T0, S_T1, S_T2, S_T3 = 67, 68, 69, 70
S_ROT = 71
S_L2E = 73
S_EPS = 74
S_ST, S_SLOT, S_CNT, S_SX, S_SW, S_GB = 75, 76, 77, 78, 79, 82
S_MASK = 84

LOG2E = 0x3FB8AA3B
EPS = 0x358637BD
XB = 16384

def stamp(A, idx, stamps):
    if not stamps: return
    A(f"""s_memtime s[80:81]
    s_waitcnt lgkmcnt(0)
    v_mov_b32 v255, s80
    buffer_store_dword v255, v254, {s(SWS,4)}, 0 offen offset:{4*idx}""")

def phi(A, regs, tmp):
    n = len(regs)
    for i in range(n):
        A(f"v_fma_f32 v{tmp[i]}, v{regs[i]}, s{S_L2E}, -s{S_L2E}")
    for i in range(n):
        A(f"v_exp_f32 v{tmp[i]}, v{tmp[i]} clamp")
    for i in range(n):
        A(f"v_max_f32 v{regs[i]}, v{regs[i]}, v{tmp[i]}")
    for i in range(n):
        A(f"v_add_f32 v{regs[i]}, s{S_EPS}, v{regs[i]}")

def params(typ):
    kv = typ == "kv"
    PITCH = 288 if kv else 384
    STG = XB + 64 * PITCH
    return kv, PITCH, STG

GATE_LDS = 4 * (XB + 64 * 288)

def gen_compute(A, typ, stamps=False):
    kv, PITCH, STG = params(typ)
    NT = 5 if kv else 6
    L = LOOK
    RING = 5 if kv else 6
    V_ACC = 0
    V_A = V_ACC + 4 * NT * 4
    V_B = V_A + 32
    V_AD = V_B + RING * 4
    V_AA = V_AD
    V_TR = V_AD + 2
    V_AAc = V_AD + 6
    V_TRc = V_AD + 8
    V_LANE = V_AD + 12
    V_T = V_AD + 13
    V_FREE = V_T + 4
    acc = lambda rt, t: V_ACC + (rt * NT + t) * 4
    areg = lambda ks, rt: V_A + (ks * 4 + rt) * 4
    A(f"v_mov_b32 v{V_LANE}, v0")
    A(f"""s_lshr_b32 s{S_T0}, s{S_WAVE}, 1
    s_and_b32 s{S_T1}, s{S_WAVE}, 1""")
    i_, q, rp, cc = V_T, V_T + 1, V_T + 2, V_T + 3
    A(f"""v_and_b32 v{i_}, 15, v{V_LANE}
    v_lshrrev_b32 v{q}, 4, v{V_LANE}
    v_bfe_u32 v{rp}, v{V_LANE}, 2, 2
    v_and_b32 v{cc}, 3, v{V_LANE}
    s_lshl_b32 s{S_T2}, s{S_T0}, 13
    v_lshrrev_b32 v{V_AAc}, 1, v{i_}
    v_xor_b32 v{V_AAc}, v{V_AAc}, v{q}
    v_lshlrev_b32 v{V_AAc}, 4, v{V_AAc}
    v_lshl_add_u32 v{V_AAc}, v{i_}, 7, v{V_AAc}
    v_add_u32 v{V_AAc}, s{S_T2}, v{V_AAc}
    v_xor_b32 v{V_AAc+1}, 64, v{V_AAc}""")
    if kv:
        A(f"""s_mul_i32 s{S_T2}, s{S_T1}, 72
        s_add_u32 s{S_T2}, s{S_T2}, {XB}
        v_lshl_add_u32 v{i_}, v{q}, 3, v{rp}
        v_and_b32 v{V_TRc+1}, 1, v{q}
        v_lshlrev_b32 v{V_TRc+1}, 2, v{V_TRc+1}
        v_xor_b32 v{V_TRc}, v{i_}, v{V_TRc+1}
        v_xor_b32 v{V_TRc+1}, 4, v{V_TRc}
        v_mul_u32_u24 v{V_TRc}, 288, v{V_TRc}
        v_mul_u32_u24 v{V_TRc+1}, 288, v{V_TRc+1}
        v_add_u32 v{V_TRc}, s{S_T2}, v{V_TRc}
        v_add_u32 v{V_TRc+1}, s{S_T2}, v{V_TRc+1}
        v_mul_u32_u24 v{rp}, 144, v{cc}
        v_add_u32 v{rp}, 32, v{rp}
        v_add_u32 v{V_TRc+2}, v{V_TRc}, v{rp}
        v_add_u32 v{V_TRc+3}, v{V_TRc+1}, v{rp}
        v_lshl_add_u32 v{V_TRc}, v{cc}, 3, v{V_TRc}
        v_lshl_add_u32 v{V_TRc+1}, v{cc}, 3, v{V_TRc+1}
        v_cmp_lt_u32 {s(S_MASK,2)}, 1, v{cc}
        v_lshlrev_b32 v{i_}, 3, v{i_}
        v_add_u32 v{rp}, 32, v{i_}
        v_cndmask_b32 v{V_TRc+2}, v{V_TRc+2}, v{i_}, {s(S_MASK,2)}
        v_cndmask_b32 v{V_TRc+3}, v{V_TRc+3}, v{rp}, {s(S_MASK,2)}""")
        coloff = [0, 40, 144, 184]
    else:
        A(f"""v_lshl_add_u32 v{i_}, v{q}, 3, v{rp}
        v_mul_u32_u24 v{i_}, 384, v{i_}
        v_lshl_add_u32 v{i_}, v{cc}, 3, v{i_}
        v_add_u32 v{i_}, {XB}, v{i_}
        v_lshrrev_b32 v{rp}, 1, v{rp}
        v_and_b32 v{q}, 1, v{q}
        v_lshl_add_u32 v{q}, v{q}, 1, v{rp}
        s_mul_i32 s{S_T2}, s{S_T1}, 6""")
        for j in range(4):
            A(f"""s_add_u32 s{S_T3}, s{S_T2}, {j}
            s_and_b32 s{S_CNT}, s{S_T3}, 3
            s_lshr_b32 s{S_T3}, s{S_T3}, 2
            s_lshl_b32 s{S_T3}, s{S_T3}, 7
            v_xor_b32 v{rp}, s{S_CNT}, v{q}
            v_lshl_add_u32 v{V_TRc+j}, v{rp}, 5, v{i_}
            v_add_u32 v{V_TRc+j}, s{S_T3}, v{V_TRc+j}""")
    for rt in range(4):
        for t in range(NT):
            one = (t < 2) if kv else True
            for r in range(4):
                A(f"v_mov_b32 v{acc(rt,t)+r}, {'1.0' if one else '0'}")
    A(f"""s_mov_b32 s{S_SLOT}, 0
    s_mov_b32 s{S_ST}, s{S_ROT}
    s_mov_b32 s{S_CNT}, 0""")
    stamp(A, 1, stamps)
    items = [(ks, t) for ks in range(2) for t in range(NT)]
    N = len(items)
    LB = NT - 1 if LBAR is None else LBAR
    assert N % RING == 0 and RING >= L + 1 and LB >= L and LB <= NT
    def rdB(ri):
        ks, t = items[ri % N]
        b = V_B + (ri % RING) * 4
        ko = ks * 32 * PITCH
        if kv:
            if t < 4:
                return [f"ds_read_b64_tr_b16 {v(b,2)}, v{V_TR} offset:{ko+coloff[t]}",
                        f"ds_read_b64_tr_b16 {v(b+2,2)}, v{V_TR+1} offset:{ko+coloff[t]}"]
            return [f"ds_read_b64_tr_b16 {v(b,2)}, v{V_TR+2} offset:{ko}",
                    f"ds_read_b64_tr_b16 {v(b+2,2)}, v{V_TR+3} offset:{ko}"]
        return [f"ds_read_b64_tr_b16 {v(b,2)}, v{V_TR+(t&3)} offset:{ko+(t>>2)*128}",
                f"ds_read_b64_tr_b16 {v(b+2,2)}, v{V_TR+(t&3)} offset:{ko+(t>>2)*128+4*384}"]
    rdA = lambda ks: [f"ds_read_b128 {v(areg(ks,rt),4)}, v{V_AA+ks} offset:{2048*rt}" for rt in range(4)]
    updA = [f"v_add_u32 v{V_AA}, s{S_SLOT}, v{V_AAc}", f"v_add_u32 v{V_AA+1}, s{S_SLOT}, v{V_AAc+1}"]
    if kv:
        updB = [f"v_add_u32 v{V_TR}, s{S_SLOT}, v{V_TRc}", f"v_add_u32 v{V_TR+1}, s{S_SLOT}, v{V_TRc+1}"]
        updB2 = [f"v_add_u32 v{V_TR+2}, v{V_T}, v{V_TRc+2}", f"v_add_u32 v{V_TR+3}, v{V_T}, v{V_TRc+3}"]
        pre = [f"s_lshl_b32 s{S_GB}, s{S_ST}, 8", f"s_add_u32 s{S_GB}, s{S_GB}, {GATE_LDS}",
               f"v_mov_b32 v{V_T}, s{S_SLOT}", f"v_mov_b32 v{V_T+1}, s{S_GB}",
               f"v_cndmask_b32 v{V_T}, v{V_T}, v{V_T+1}, {s(S_MASK,2)}",
               f"s_add_u32 s{S_ST}, s{S_ST}, 1", f"s_cmp_eq_u32 s{S_ST}, 9", f"s_cselect_b32 s{S_ST}, 0, s{S_ST}"]
    else:
        updB = [f"v_add_u32 v{V_TR}, s{S_SLOT}, v{V_TRc}", f"v_add_u32 v{V_TR+1}, s{S_SLOT}, v{V_TRc+1}"]
        updB2 = [f"v_add_u32 v{V_TR+2}, s{S_SLOT}, v{V_TRc+2}", f"v_add_u32 v{V_TR+3}, s{S_SLOT}, v{V_TRc+3}"]
        pre = []
    advs = [f"s_add_u32 s{S_SLOT}, s{S_SLOT}, {STG}", f"s_cmp_eq_u32 s{S_SLOT}, {4*STG}", f"s_cselect_b32 s{S_SLOT}, 0, s{S_SLOT}"]
    fill = {i: [] for i in range(N)}
    for idx in range(N):
        f = []
        if idx == N - LB:
            f += [("x", "s_barrier")] + [("x", u) for u in updA] + [("A0", r) for r in rdA(0)]
        if idx == N - L:
            f += [("x", u) for u in updB]
        f += [(f"B{(idx+L)%N}", r) for r in rdB(idx + L)]
        if idx == N - L:
            f += [("x", u) for u in updB2]
        if idx == N - L + 1 or (L == 1 and idx == N - 1):
            f += [("x", u) for u in advs]
        if idx == 0:
            f += [("A1", r) for r in rdA(1)]
        if idx == 1:
            f += [("x", u) for u in pre]
        fill[idx] = f
    ops = []
    for idx in range(N):
        ks, t = items[idx]
        ops.append(("W", idx))
        f = list(fill[idx])
        per = -(-len(f) // 4)
        for rt in range(4):
            ops.append(("M", idx, rt))
            for _ in range(per):
                if f: ops.append(("F",) + f.pop(0))
    def wait_for(pos, tags):
        best = None
        for tag in tags:
            c = 0; p = pos - 1
            while True:
                o = ops[p % len(ops)]
                if o[0] == "F" and o[2].startswith("ds_"):
                    if o[1] == tag: break
                    c += 1
                p -= 1
            best = c if best is None else min(best, c)
        return best
    A("\n".join(pre)) if pre else None
    first = True
    for idx in range(N - LB, N):
        for tag, ins in fill[idx]:
            if tag.startswith("B") and int(tag[1:]) >= L: continue
            A(ins)
            if ins == "s_barrier": stamp(A, 2, stamps)
    lp = A.newlabel("L_gl")
    A.raw(".p2align 3")
    A.label(lp)
    for pos, o in enumerate(ops):
        if o[0] == "W":
            idx = o[1]; ks, t = items[idx]
            tags = [f"B{idx}"] + ([f"A{ks}"] if t == 0 else [])
            A(f"s_waitcnt lgkmcnt({min(wait_for(pos, tags), 15)})")
        elif o[0] == "M":
            idx, rt = o[1], o[2]; ks, t = items[idx]
            b = V_B + (idx % RING) * 4
            d = v(acc(rt, t), 4)
            if NOMFMA: continue
            if kv: A(f"v_mfma_f32_16x16x32_bf16 {d}, {v(areg(ks,rt),4)}, {v(b,4)}, {d}")
            else: A(f"v_mfma_f32_16x16x32_bf16 {d}, {v(b,4)}, {v(areg(ks,rt),4)}, {d}")
        else:
            A(o[2])
    A(f"""s_add_u32 s{S_CNT}, s{S_CNT}, 1
    s_cmp_lt_u32 s{S_CNT}, 9
    s_cbranch_scc1 {lp}""")
    stamp(A, 5, stamps)
    TMP = V_FREE + (V_FREE & 1)
    A("s_waitcnt lgkmcnt(0)")
    if not kv:
        A(f"""s_lshl_b32 s{S_T2}, s{S_RB}, 3
        s_lshl_b32 s{S_T3}, s{S_T0}, 2
        s_add_u32 s{S_T2}, s{S_T2}, s{S_T3}
        s_mul_i32 s{S_T2}, s{S_T2}, 18432
        s_mul_i32 s{S_T3}, s{S_CG}, 6144
        s_add_u32 s{S_T2}, s{S_T2}, s{S_T3}
        s_mul_i32 s{S_T3}, s{S_T1}, 3072
        s_add_u32 s{S_T2}, s{S_T2}, s{S_T3}
        v_lshlrev_b32 v{V_AA}, 3, v{V_LANE}""")
        k = 0
        for rt in range(4):
            for t0 in range(0, NT, 2):
                r0 = acc(rt, t0)
                tm = TMP + (k % 4) * 12; k += 1
                phi(A, [r0 + i for i in range(8)], [tm + i for i in range(8)])
                for i in range(4):
                    A(f"v_cvt_pk_bf16_f32 v{tm+8+i}, v{r0+2*i}, v{r0+2*i+1}")
                A(f"buffer_store_dwordx2 {v(tm+8,2)}, v{V_AA}, {s(SWS,4)}, s{S_T2} offen offset:{512*t0}")
                A(f"buffer_store_dwordx2 {v(tm+10,2)}, v{V_AA}, {s(SWS,4)}, s{S_T2} offen offset:{512*t0+512}")
            if rt < 3: A(f"s_add_u32 s{S_T2}, s{S_T2}, 18432")
        stamp(A, 6, stamps)
        A("s_endpgm")
        return
    F = lambda t, m: TMP + (t * 2 + m) * 4
    T2 = TMP + 48
    D = T2 + 16
    assert D + 28 <= 253
    def pack(t, dst):
        for rt in range(4):
            r0 = acc(rt, t)
            o = F(dst, rt >> 1) + 2 * (rt & 1)
            A(f"v_cvt_pk_bf16_f32 v{o}, v{r0}, v{r0+1}")
            A(f"v_cvt_pk_bf16_f32 v{o+1}, v{r0+2}, v{r0+3}")
    col, qq = V_T, V_T + 1
    FLA, FLV = V_AA, V_AA + 1
    A(f"""s_lshl_b32 s{S_T2}, s{S_CG}, 2
    v_mov_b32 v{FLA}, s{S_T2}
    buffer_load_dword v{FLV}, v{FLA}, {s(SDBG,4)}, 0 offen sc0 sc1""")
    A(f"""v_and_b32 v{col}, 15, v{V_LANE}
    v_lshrrev_b32 v{qq}, 4, v{V_LANE}
    v_cmp_gt_u32 vcc, 4, v{col}
    v_mov_b32 v{V_T+2}, 0x3f803f80""")
    pack(2, 2); pack(3, 3); pack(4, 5)
    for i in range(8):
        A(f"v_cndmask_b32 v{F(5,0)+i}, v{F(5,0)+i}, v{V_T+2}, vcc")
    for rt in range(4):
        for i in range(4): A(f"v_mul_f32 v{V_A+4*rt+i}, s{S_L2E}, v{acc(rt,4)+i}")
    for i in range(16): A(f"v_exp_f32 v{V_A+i}, -v{V_A+i}")
    for i in range(16): A(f"v_add_f32 v{V_A+i}, 1.0, v{V_A+i}")
    for i in range(16): A(f"v_rcp_f32 v{V_A+i}, v{V_A+i}")
    for rt in range(4):
        for i in range(4): A(f"v_add_f32 v{acc(rt,4)+i}, 1.0, v{acc(rt,4)+i}")
    for t, dst in [(4, 4), (0, 0), (1, 1)]:
        regs = [acc(rt, t) + i for rt in range(4) for i in range(4)]
        phi(A, regs, [T2 + i for i in range(16)])
        pack(t, dst)
    MM = lambda p: D + 4 * p
    MR = lambda p: D + 8 + 4 * p
    RM = lambda p: D + 16 + 4 * p
    RR = D + 24
    A("s_nop 1")
    for m in range(2):
        c = lambda r: "0" if m == 0 else v(r, 4)
        A(f"v_mfma_f32_16x16x32_bf16 {v(RR,4)}, {v(F(4,m),4)}, {v(F(5,m),4)}, {c(RR)}")
        for p in range(2):
            A(f"v_mfma_f32_16x16x32_bf16 {v(RM(p),4)}, {v(F(4,m),4)}, {v(F(2+p,m),4)}, {c(RM(p))}")
            A(f"v_mfma_f32_16x16x32_bf16 {v(MM(p),4)}, {v(F(p,m),4)}, {v(F(2+p,m),4)}, {c(MM(p))}")
            A(f"v_mfma_f32_16x16x32_bf16 {v(MR(p),4)}, {v(F(p,m),4)}, {v(F(5,m),4)}, {c(MR(p))}")
    a_mm, a_mr, a_rm, a_rr = T2, T2 + 1, T2 + 4, T2 + 5
    A(f"""s_mul_i32 s{S_T2}, s{S_T0}, 6144
    s_mul_i32 s{S_T3}, s{S_T1}, 3072
    s_add_u32 s{S_T2}, s{S_T2}, s{S_T3}
    v_lshl_add_u32 v{a_mm}, v{V_LANE}, 4, s{S_T2}
    v_lshl_add_u32 v{a_rm}, v{V_LANE}, 3, s{S_T2}
    v_and_b32 v{a_mr}, 1, v{col}
    v_mov_b32 v{T2+2}, 2
    v_cndmask_b32 v{a_mr}, v{a_mr}, v{T2+2}, vcc
    v_lshl_add_u32 v{a_rr}, v{a_mr}, 3, s{S_T2}
    v_lshl_add_u32 v{a_mr}, v{a_mr}, 6, s{S_T2}
    v_lshl_add_u32 v{a_mr}, v{qq}, 4, v{a_mr}""")
    lab = A.newlabel("L_nog")
    A(f"""s_or_b32 s{S_T3}, s{S_CG}, s{S_T1}
    s_cmp_lg_u32 s{S_T3}, 0
    s_cbranch_scc1 {lab}
    s_lshl_b32 s{S_T3}, s{S_RB}, 9
    s_lshl_b32 s{S_CNT}, s{S_T0}, 8
    s_add_u32 s{S_T3}, s{S_T3}, s{S_CNT}
    s_add_u32 s{S_T3}, s{S_T3}, {WS_G}
    v_lshlrev_b32 v{T2+3}, 4, v{qq}
    s_mov_b32 exec_lo, 0x01000100
    s_mov_b32 exec_hi, 0x01000100""")
    for rt in range(4):
        A(f"buffer_store_dwordx4 {v(V_A+4*rt,4)}, v{T2+3}, {s(SWS,4)}, s{S_T3} offen offset:{64*rt}")
    A("s_mov_b64 exec, -1")
    A.label(lab)
    A("s_barrier")
    for p in range(2):
        A(f"ds_write_b128 v{a_mm}, {v(MM(p),4)} offset:{1536*p}")
    for p in range(2):
        m16 = 1 | (3 << (4 + 2 * p))
        m32 = m16 | (m16 << 16)
        A(f"""s_mov_b32 exec_lo, {m32:#x}
        s_mov_b32 exec_hi, {m32:#x}
        ds_write_b128 v{a_mr}, {v(MR(p),4)} offset:{1536*p + 1152}
        s_mov_b32 exec_lo, {m16:#x}
        s_mov_b32 exec_hi, 0
        ds_write_b64 v{a_rr}, {v(RR+2*p,2)} offset:{1536*p + 1344}""")
    A("s_mov_b32 exec_lo, 0xffff")
    for p in range(2):
        A(f"ds_write_b64 v{a_rm}, {v(RM(p)+2*p,2)} offset:{1536*p + 1024}")
    A("s_mov_b64 exec, -1")
    A("s_waitcnt lgkmcnt(0)")
    A("s_barrier")
    ta = T2
    A(f"""s_lshl_b32 s{S_T0}, s{S_WAVE}, 8
    v_lshl_add_u32 v{ta}, v{V_LANE}, 2, s{S_T0}
    s_mul_i32 s{S_T1}, s{S_CG}, 6144
    s_add_u32 s{S_T1}, s{S_T1}, {WS_KVQ}
    s_add_u32 s{S_T2}, s{S_T1}, 4096""")
    R = V_ACC
    for i in range(6):
        for c in range(2):
            A(f"ds_read_b32 v{R+2*i+c}, v{ta} offset:{c*6144 + i*1024}")
    lpp = A.newlabel("L_poll"); le = A.newlabel("L_pend")
    A(f"s_mov_b32 s{S_CNT}, 0")
    A.label(lpp)
    A(f"""s_waitcnt vmcnt(0)
    v_readfirstlane_b32 s{S_T3}, v{FLV}
    s_cmp_lg_u32 s{S_T3}, 0
    s_cbranch_scc1 {le}
    s_add_u32 s{S_CNT}, s{S_CNT}, 1
    s_cmp_gt_u32 s{S_CNT}, 0x100000
    s_cbranch_scc1 {le}
    buffer_load_dword v{FLV}, v{FLA}, {s(SDBG,4)}, 0 offen sc0 sc1
    s_branch {lpp}""")
    A.label(le)
    for k in range(6):
        A(f"s_waitcnt lgkmcnt({10-2*k})")
        A(f"""v_add_f32 v{R+2*k}, v{R+2*k}, v{R+2*k+1}
        buffer_atomic_add_f32 v{R+2*k}, v{ta}, {s(SWS,4)}, s{S_T1 if k < 4 else S_T2} offen offset:{1024*(k%4)}""")
    stamp(A, 6, stamps)
    A("s_endpgm")

def x_voffsets(A, regs, s_first, tmp):
    t0, t1 = tmp
    for k, r in enumerate(regs):
        A(f"""s_add_u32 s{S_T3}, s{s_first}, {k}
        s_lshl_b32 s{S_T3}, s{S_T3}, 3
        v_lshrrev_b32 v{t0}, 3, v0
        v_add_u32 v{t0}, s{S_T3}, v{t0}
        v_bfe_u32 v{t1}, v{t0}, 1, 3
        v_and_b32 v{r}, 7, v0
        v_xor_b32 v{r}, v{r}, v{t1}
        v_mul_u32_u24 v{t0}, 1152, v{t0}
        v_lshl_add_u32 v{r}, v{r}, 4, v{t0}""")
        A(f"v_add_u32 v{r}, s{S_T2}, v{r}")
        if k % 4: A(f"v_subrev_u32 v{r}, {1024*(k%4)}, v{r}")

def loader_loop(A, typ, issue, NI, nbar_extra, hooks=None):
    kv, PITCH, STG = params(typ)
    hooks = hooks or {}
    issue(); issue()
    for n in range(9):
        if n in hooks: hooks[n][0]()
        allowed = NI if n + 1 <= 8 else 0
        A(f"s_waitcnt vmcnt({allowed})")
        A("s_barrier")
        if n in hooks and hooks[n][1]: hooks[n][1]()
        if n + 2 < 9: issue()
    for _ in range(nbar_extra): A("s_barrier")

def adv(A, STG):
    A(f"""s_add_u32 s{S_ST}, s{S_ST}, 1
    s_cmp_eq_u32 s{S_ST}, 9
    s_cselect_b32 s{S_ST}, 0, s{S_ST}
    s_add_u32 s{S_SLOT}, s{S_SLOT}, {STG}
    s_cmp_eq_u32 s{S_SLOT}, {4*STG}
    s_cselect_b32 s{S_SLOT}, 0, s{S_SLOT}""")

def gen_loader(A, typ, stamps=False):
    kv, PITCH, STG = params(typ)
    PPR = PITCH // 16
    NX = 3 if kv else 4
    S_J, S_XL, S_WL = 86, 87, 88
    A(f"s_sub_u32 s{S_J}, s{S_WAVE}, 4")
    A(f"s_mul_i32 s{S_T2}, s{S_RB}, {128*1152}")
    A(f"s_mul_i32 s{S_T0}, s{S_J}, {NX}")
    xr = [10 + k for k in range(NX)]
    x_voffsets(A, xr, S_T0, (4, 5))
    A(f"s_lshl_b32 s{S_XL}, s{S_T0}, 10")
    A(f"s_mul_i32 s{S_T1}, s{S_J}, 384")
    A(f"s_mul_i32 s{S_WL}, s{S_J}, 6144")
    A(f"s_add_u32 s{S_WL}, s{S_WL}, {XB}")
    if kv:
        A(f"s_mul_i32 s{S_T3}, s{S_CG}, 144")
        A(f"s_add_u32 s{S_T3}, s{S_T3}, 1152")
    else:
        A(f"s_mul_i32 s{S_T3}, s{S_CG}, 384")
    wr = [20 + i for i in range(6)]
    for i in range(6):
        p, sl, pc, o = 4, 5, 6, wr[i]
        A(f"v_add_u32 v{p}, s{S_T1}, v0")
        if i: A(f"v_add_u32 v{p}, {64*i}, v{p}")
        A(f"v_mul_u32_u24 v{sl}, {3641 if kv else 2731}, v{p}")
        A(f"v_lshrrev_b32 v{sl}, 16, v{sl}")
        A(f"v_mul_u32_u24 v{pc}, {PPR}, v{sl}")
        A(f"v_sub_u32 v{pc}, v{p}, v{pc}")
        if kv:
            A(f"""v_lshrrev_b32 v7, 1, v{sl}
            v_and_b32 v7, 4, v7
            v_xor_b32 v{sl}, v{sl}, v7
            v_mul_u32_u24 v{o}, 3456, v{sl}
            v_lshl_add_u32 v{o}, v{pc}, 4, v{o}
            v_cmp_lt_u32 vcc, 8, v{pc}
            v_add_u32 v7, {1152-144}, v{o}
            s_nop 0
            v_cndmask_b32 v{o}, v{o}, v7, vcc""")
        else:
            A(f"""v_bfe_u32 v7, v{sl}, 1, 1
            v_bfe_u32 v8, v{sl}, 3, 1
            v_lshl_add_u32 v7, v8, 1, v7
            v_lshlrev_b32 v7, 1, v7
            v_xor_b32 v{pc}, v{pc}, v7
            v_mul_u32_u24 v{o}, 3456, v{sl}
            v_lshl_add_u32 v{o}, v{pc}, 4, v{o}""")
        A(f"v_add_u32 v{o}, s{S_T3}, v{o}")
        if i % 4: A(f"v_subrev_u32 v{o}, {1024*(i%4)}, v{o}")
    A(f"s_mov_b32 s{S_SLOT}, 0\ns_mov_b32 s{S_ST}, s{S_ROT}")
    sub = A.newlabel("L_iss")
    def issue():
        A(f"""s_lshl_b32 s{S_SX}, s{S_ST}, 7
        s_mul_i32 s{S_SW}, s{S_ST}, 221184
        s_add_u32 m0, s{S_SLOT}, s{S_XL}
        s_add_u32 s{S_T0}, s{S_SLOT}, s{S_WL}""")
        for k in range(NX):
            A(f"buffer_load_dwordx4 v{xr[k]}, {s(SX,4)}, s{S_SX} offen offset:{1024*k} lds")
        A(f"s_mov_b32 m0, s{S_T0}\ns_add_u32 s{S_T0}, s{S_T0}, 4096")
        for i in range(4):
            A(f"buffer_load_dwordx4 v{wr[i]}, {s(SW,4)}, s{S_SW} offen offset:{1024*i} lds")
        A(f"s_mov_b32 m0, s{S_T0}\ns_nop 0")
        for i in range(4, 6):
            A(f"buffer_load_dwordx4 v{wr[i]}, {s(SW,4)}, s{S_SW} offen offset:{1024*(i-4)} lds")
        adv(A, STG)
    NI = NX + 6
    if stamps:
        A("s_memtime s[90:91]\ns_waitcnt lgkmcnt(0)\nv_mov_b32 v200, s90")
    issue()
    if stamps:
        A("s_memtime s[90:91]\ns_waitcnt lgkmcnt(0)\nv_mov_b32 v201, s90")
        for n in range(8):
            issue()
            A(f"s_waitcnt vmcnt({NI})\ns_barrier")
            A(f"s_memtime s[90:91]\ns_waitcnt lgkmcnt(0)\nv_mov_b32 v{202+n}, s90")
        A("s_waitcnt vmcnt(0)\ns_barrier")
        A(f"s_memtime s[90:91]\ns_waitcnt lgkmcnt(0)\nv_mov_b32 v210, s90")
        for n in range(11):
            A(f"buffer_store_dword v{200+n}, v254, {s(SWS,4)}, 0 offen offset:{4+4*n}")
        A("s_endpgm")
        return
    A(f"s_mov_b32 s{S_CNT}, 0")
    lp = A.newlabel("L_ld")
    A.label(lp)
    issue()
    A(f"""s_waitcnt vmcnt({NI})
    s_barrier
    s_add_u32 s{S_CNT}, s{S_CNT}, 1
    s_cmp_lt_u32 s{S_CNT}, 8
    s_cbranch_scc1 {lp}
    s_waitcnt vmcnt(0)
    s_barrier
    s_endpgm""")

def gen_chore(A, stamps=False):
    kv, PITCH, STG = params("kv")
    NX = 7
    A(f"s_mul_i32 s{S_T2}, s{S_RB}, {128*1152}")
    A(f"s_mov_b32 s{S_T0}, 9")
    xr = [10 + k for k in range(NX)]
    x_voffsets(A, xr, S_T0, (4, 5))
    A(f"s_mov_b32 s{S_SLOT}, 0\ns_mov_b32 s{S_ST}, s{S_ROT}")
    def issue():
        A(f"""s_lshl_b32 s{S_SX}, s{S_ST}, 7
        s_add_u32 m0, s{S_SLOT}, 9216
        s_add_u32 s{S_T0}, s{S_SLOT}, {9216+4096}""")
        for k in range(4):
            A(f"buffer_load_dwordx4 v{xr[k]}, {s(SX,4)}, s{S_SX} offen offset:{1024*k} lds")
        A(f"s_mov_b32 m0, s{S_T0}\ns_nop 0")
        for k in range(4, 7):
            A(f"buffer_load_dwordx4 v{xr[k]}, {s(SX,4)}, s{S_SX} offen offset:{1024*(k-4)} lds")
        adv(A, STG)
    A(f"v_lshlrev_b32 v1, 1, v0")
    for i in range(9):
        A(f"buffer_load_ushort v{30+i}, v1, {s(SG,4)}, 0 offen offset:{128*i}")
    issue()
    A(f"""v_lshrrev_b32 v4, 5, v0
    v_mul_u32_u24 v4, 9216, v4
    v_and_b32 v5, 31, v0
    v_lshl_add_u32 v4, v5, 3, v4
    v_add_u32 v4, {GATE_LDS}, v4
    v_mov_b32 v40, 0
    v_mov_b32 v41, 0
    v_mov_b32 v42, 0
    v_mov_b32 v43, 0
    v_lshlrev_b32 v1, 4, v0
    s_lshl_b32 s{S_T0}, s{S_CG}, 2
    v_mov_b32 v3, s{S_T0}
    v_mov_b32 v2, 1
    s_mul_i32 s{S_T1}, s{S_CG}, 6144
    s_add_u32 s{S_T1}, s{S_T1}, {WS_KVQ}
    s_add_u32 s{S_T2}, s{S_T1}, 4096
    s_waitcnt vmcnt({NX})""")
    for i in range(9):
        A(f"ds_write_b16 v4, v{30+i} offset:{256*i}")
    l1 = A.newlabel("L_nz")
    A(f"""s_cmp_lg_u32 s{S_RB}, 0
    s_cbranch_scc1 {l1}""")
    for i in range(6):
        A(f"buffer_store_dwordx4 v[40:43], v1, {s(SWS,4)}, s{S_T1 if i < 4 else S_T2} offen offset:{1024*(i%4)} sc0 sc1")
    A.label(l1)
    A(f"s_mov_b32 s{S_CNT}, 0")
    A("s_waitcnt lgkmcnt(0)")
    lp = A.newlabel("L_ch")
    A.label(lp)
    issue()
    A(f"""s_waitcnt vmcnt({NX})
    s_barrier""")
    l2 = A.newlabel("L_nf")
    A(f"""s_or_b32 s{S_T0}, s{S_RB}, s{S_CNT}
    s_cmp_lg_u32 s{S_T0}, 0
    s_cbranch_scc1 {l2}
    s_mov_b64 exec, 1
    buffer_store_dword v2, v3, {s(SDBG,4)}, 0 offen sc0 sc1
    s_mov_b64 exec, -1""")
    A.label(l2)
    A(f"""s_add_u32 s{S_CNT}, s{S_CNT}, 1
    s_cmp_lt_u32 s{S_CNT}, 8
    s_cbranch_scc1 {lp}
    s_waitcnt vmcnt(0)
    s_barrier
    s_endpgm""")
```

```python
from asm import *
from l1gemm import WS_PQ, WS_KVQ, WS_G, WS_BT, WS_STAMP, WS_SIZE, EPS

def gen_l2(A, stamps=False):
    SWO, SOUT, SWS = 12, 16, 20
    S_G, S_RB, S_CB = 24, 25, 26
    T0, T1, T2, T3 = 27, 28, 29, 30
    S_KV = 32
    S_PQ = 36
    S_GO = 40
    S_WB = 44
    M = 46
    REG = 21504
    def stamp(idx):
        if not stamps: return
        A(f"""s_memtime s[80:81]
        s_waitcnt lgkmcnt(0)
        v_mov_b32 v255, s80
        buffer_store_dword v255, v254, {s(SWS,4)}, 0 offen offset:{4*idx}""")
    SX = 1 if stamps else 0
    A(f"""s_cmp_ge_u32 s2, 256
    s_cbranch_scc1 L2_exit
    s_load_dwordx2 s[4:5], s[0:1], 16
    s_load_dwordx2 s[6:7], s[0:1], 88
    s_load_dwordx2 s[8:9], s[0:1], 104
    v_lshrrev_b32 v1, 6, v0
    v_and_b32 v0, 63, v0
    v_readfirstlane_b32 s{S_G}, v1
    s_and_b32 s3, s2, 7
    s_lshr_b32 s10, s2, 3
    s_and_b32 s{T0}, s3, 3
    s_lshl_b32 s{T0}, s{T0}, 3
    s_and_b32 s{T1}, s10, 7
    s_add_u32 s{S_RB}, s{T0}, s{T1}
    s_lshr_b32 s{T0}, s3, 2
    s_lshl_b32 s{T0}, s{T0}, 2
    s_lshr_b32 s{T1}, s10, 3
    s_add_u32 s{S_CB}, s{T0}, s{T1}""")
    LANE, I16, Q = 0, 1, 2
    V16, V8R, VLX, VLR, VZX, VZR = 3, 4, 5, 6, 7, 8
    VP0, VP1, VPR, VG = 9, 10, 11, 12
    VW0, VWL, VWT0, VWT2 = 13, 14, 15, 16
    VT0, VT1, VT2 = 17, 18, 19
    VB0, VB1 = 20, 21
    X0, X1, X2, X3 = 22, 23, 24, 25
    GV = 26
    EPSV = 30
    A1 = 34
    A1m = lambda hl: A1 + 4 * hl
    A1l = lambda k: A1 + 32 + 4 * k
    A1d = lambda T, k: A1 + 52 + 12 * T + 4 * k
    KT = 110
    KM = lambda hl: KT + 4 * hl
    KRD = lambda hl: KT + 32 + 2 * hl
    LX, ZX0, ZX1 = KT + 48, KT + 52, KT + 56
    LR, ZR0, ZR1 = KT + 60, KT + 62, KT + 64
    NUM = lambda hl: KT + 4 * hl
    NL = KT + 32
    DEN = lambda T: KT + 36 + 4 * T
    SEL = KT + 44
    OF = lambda b, p: KT + 48 + 20 * b + 4 * p
    ACC0 = 198
    PQV = 218
    DIAG = 244
    WOF = lambda p, t: 4 * (p * 5 + t)
    ACCA = lambda j, t: 100 + 20 * (j - 1) + 4 * t
    PQA = lambda j: 160 + 26 * (j - 1)
    pq = lambda j, off, n: (v(PQV + off, n) if j == 0 else a(PQA(j) + off, n))
    acc = lambda j, t: (v(ACC0 + 4 * t, 4) if j == 0 else a(ACCA(j, t), 4))
    A(f"""v_and_b32 v{I16}, 15, v0
    v_lshrrev_b32 v{Q}, 4, v0
    v_lshlrev_b32 v{V16}, 4, v0
    v_lshlrev_b32 v{V8R}, 3, v{I16}
    v_and_b32 v{X0}, 3, v0
    v_bfe_u32 v{X1}, v0, 3, 1
    v_lshl_add_u32 v{X1}, v{X0}, 1, v{X1}
    v_mul_u32_u24 v{X1}, 1536, v{X1}
    v_bfe_u32 v{X2}, v0, 2, 1
    v_lshl_add_u32 v{VLR}, v{X2}, 3, v{X1}
    v_lshl_add_u32 v{VLX}, v{X2}, 6, v{X1}
    v_lshl_add_u32 v{VLX}, v{Q}, 4, v{VLX}
    v_mul_u32_u24 v{VZR}, 1536, v{X0}
    v_lshl_add_u32 v{VZX}, v{Q}, 4, v{VZR}
    v_lshlrev_b32 v{VP0}, 3, v0
    v_add_u32 v{VP1}, 640, v{VP0}
    v_mul_u32_u24 v{VPR}, 1152, v{Q}
    v_add_u32 v{VPR}, v{VPR}, v{V8R}
    v_lshlrev_b32 v{VG}, 2, v{I16}
    s_mul_i32 s{S_KV}, s{S_G}, 12288
    s_add_u32 s{S_KV}, s{S_KV}, {WS_KVQ}
    s_add_u32 s{S_KV+1}, s{S_KV}, 3072
    s_add_u32 s{S_KV+2}, s{S_KV}, 6144
    s_add_u32 s{S_KV+3}, s{S_KV}, 9216
    s_mul_i32 s{T2}, s{S_G}, 4608""")
    for j in range(4):
        A(f"""s_add_u32 s{T0}, s{S_G}, {j}
        s_and_b32 s{T0}, s{T0}, 3
        s_lshl_b32 s{T1}, s{S_RB}, 2
        s_add_u32 s{T0}, s{T0}, s{T1}
        s_lshl_b32 s{S_GO+j}, s{T0}, 6
        s_add_u32 s{S_GO+j}, s{S_GO+j}, {WS_G}
        s_mul_i32 s{S_PQ+j}, s{T0}, 18432
        s_add_u32 s{S_PQ+j}, s{S_PQ+j}, s{T2}""")
    A("s_waitcnt lgkmcnt(0)")
    srd(A, SWO, 4, 5, 576 * 1152)
    srd(A, SOUT, 6, 7, 2048 * 1152)
    srd(A, SWS, 8, 9, WS_SIZE)
    if stamps:
        A(f"""s_lshl_b32 s{T0}, s2, 3
        s_add_u32 s{T0}, s{T0}, s{S_G}
        s_lshl_b32 s{T0}, s{T0}, 6
        s_add_u32 s{T0}, s{T0}, {WS_STAMP + 0x40000}
        v_mov_b32 v254, s{T0}""")
        stamp(0)
    nv = [0]
    def vm(ins):
        A(ins); nv[0] += 1
    ws = s(SWS, 4)
    vm(f"buffer_load_dwordx4 {v(ZX0,4)}, v{VZX}, {ws}, s{S_KV} offen offset:{1152+128}")
    vm(f"buffer_load_dwordx4 {v(ZX1,4)}, v{VZX}, {ws}, s{S_KV+2} offen offset:{1152+128}")
    vm(f"buffer_load_dwordx2 {v(ZR0,2)}, v{VZR}, {ws}, s{S_KV} offen offset:{1344+16}")
    vm(f"buffer_load_dwordx2 {v(ZR1,2)}, v{VZR}, {ws}, s{S_KV+2} offen offset:{1344+16}")
    vm(f"buffer_load_dwordx4 {v(LX,4)}, v{VLX}, {ws}, s{S_KV} offen offset:1152")
    vm(f"buffer_load_dwordx2 {v(LR,2)}, v{VLR}, {ws}, s{S_KV} offen offset:1344")
    pos_small = nv[0]
    pos_h = {}
    for hl in range(8):
        vm(f"buffer_load_dwordx4 {v(KM(hl),4)}, v{V16}, {ws}, s{S_KV+(hl>>1)} offen offset:{1536*(hl&1)}")
        vm(f"buffer_load_dwordx2 {v(KRD(hl),2)}, v{V8R}, {ws}, s{S_KV+(hl>>1)} offen offset:{1536*(hl&1)+1024}")
        pos_h[hl] = nv[0]
    for j in range(4):
        vm(f"buffer_load_dword v{GV+j}, v{VG}, {ws}, s{S_GO+j} offen")
    pos_g = nv[0]
    pos_pq = {}
    def load_pq(j):
        for p in range(4):
            vm(f"buffer_load_dwordx2 {pq(j,6*p,2)}, v{VPR}, {ws}, s{S_PQ+j} offen offset:512")
            vm(f"buffer_load_dwordx2 {pq(j,6*p+2,2)}, v{VP0}, {ws}, s{S_PQ+j} offen offset:{1152*p}")
            vm(f"buffer_load_dwordx2 {pq(j,6*p+4,2)}, v{VP1}, {ws}, s{S_PQ+j} offen offset:{1152*p}")
        vm(f"buffer_load_dwordx2 {pq(j,24,2)}, v{VPR}, {ws}, s{S_PQ+j} offen offset:512")
        pos_pq[j] = nv[0]
    load_pq(0)
    A(f"""v_lshrrev_b32 v{X0}, 3, v0
    v_bfe_u32 v{X1}, v0, 4, 1
    v_lshlrev_b32 v{X1}, 2, v{X1}
    v_and_b32 v{X2}, 7, v0
    v_xor_b32 v{X2}, v{X2}, v{X1}
    v_lshlrev_b32 v{X2}, 4, v{X2}
    v_mul_u32_u24 v{VW0}, 1152, v{X0}
    v_add_u32 v{VW0}, v{VW0}, v{X2}
    v_and_b32 v{X0}, 3, v{X0}
    v_mul_u32_u24 v{X0}, 36, v{X0}
    v_lshrrev_b32 v{X1}, 5, v0
    v_add3_u32 v{X0}, v{X0}, v{X1}, 16
    v_mul_u32_u24 v{VWL}, 1152, v{X0}
    v_add_u32 v{VWL}, v{VWL}, v{X2}
    v_mul_u32_u24 v{X0}, 36, v{X1}
    v_bfe_u32 v{X1}, v0, 4, 1
    v_mul_u32_u24 v{X1}, 20, v{X1}
    v_add3_u32 v{X0}, v{X0}, v{X1}, v{I16}
    v_mul_u32_u24 v{VWT0}, 1152, v{X0}
    v_and_b32 v{X0}, 3, v0
    v_mul_u32_u24 v{X0}, 36, v{X0}
    v_bfe_u32 v{X1}, v0, 2, 2
    v_add3_u32 v{X0}, v{X0}, v{X1}, 16
    v_mul_u32_u24 v{VWT2}, 1152, v{X0}
    s_mul_i32 s{S_WB}, s{S_G}, {REG}
    s_mul_i32 s{T0}, s{S_G}, {144*1152}
    s_mul_i32 s{T1}, s{S_CB}, 144
    s_add_u32 s{T0}, s{T0}, s{T1}""")
    wo = s(SWO, 4)
    for i in range(18):
        if i < 16: rc = 36 * (i >> 2) + 20 * ((i >> 1) & 1) + 8 * (i & 1); vo = VW0
        else: rc = 2 * (i & 1); vo = VWL
        A(f"s_add_u32 m0, s{S_WB}, {1024*i}")
        A(f"s_add_u32 s{T1}, s{T0}, {rc*1152}")
        vm(f"buffer_load_dwordx4 v{vo}, {wo}, s{T1} offen lds")
    for k in range(3):
        A(f"s_add_u32 m0, s{S_WB}, {18432 + 1024*k}")
        A(f"s_add_u32 s{T1}, s{T0}, {128 + (72*1152 if k == 1 else 0)}")
        vm(f"buffer_load_dwordx4 v{VWT2 if k == 2 else VWT0}, {wo}, s{T1} offen lds")
    pos_wo = nv[0]
    stamp(1)
    def mask64(f):
        m = 0
        for l in range(64):
            if f(l & 15, l >> 4): m |= 1 << l
        return m
    masks = {}
    def getmask(m):
        if m not in masks:
            r = M + 2 * len(masks); masks[m] = r
            assert r + 1 < 80
            A(f"s_mov_b32 s{r}, {m & 0xffffffff:#x}\ns_mov_b32 s{r+1}, {m >> 32:#x}")
        return s(masks[m], 2)
    def setexec(m):
        A(f"s_mov_b32 exec_lo, {m & 0xffffffff:#x}\ns_mov_b32 exec_hi, {m >> 32:#x}")
    for r in range(76): A(f"v_mov_b32 v{A1+r}, 0")
    for r in range(4): A(f"v_mov_b32 v{EPSV+r}, {EPS:#x}")
    A(f"""v_bfe_u32 v{X0}, v0, 2, 2
    v_lshl_add_u32 v{X0}, v{Q}, 2, v{X0}
    v_bfe_u32 v{X1}, v0, 3, 1
    v_lshlrev_b32 v{X1}, 2, v{X1}
    v_and_b32 v{X2}, 3, v0
    v_xor_b32 v{X1}, v{X1}, v{X2}
    v_lshlrev_b32 v{X1}, 4, v{X1}
    v_lshl_add_u32 v{VT0}, v{X0}, 7, v{X1}
    v_add_u32 v{VT0}, s{S_WB}, v{VT0}
    v_xor_b32 v{VT1}, 64, v{VT0}
    v_and_b32 v{X1}, 1, v0
    v_lshlrev_b32 v{X1}, 3, v{X1}
    v_lshl_add_u32 v{VT2}, v{X0}, 4, v{X1}
    v_add_u32 v{VT2}, s{S_WB}, v{VT2}
    v_bfe_u32 v{X0}, v0, 2, 2
    v_lshl_add_u32 v{X1}, v{X0}, 3, v{X2}
    v_lshlrev_b32 v{X1}, 12, v{X1}
    v_lshl_add_u32 v{VB0}, v{Q}, 8, v{X1}
    v_and_b32 v{X0}, 1, v{X0}
    v_lshl_add_u32 v{X1}, v{X0}, 2, v{X2}
    v_lshlrev_b32 v{X1}, 12, v{X1}
    v_lshl_add_u32 v{VB1}, v{Q}, 8, v{X1}
    s_mul_i32 s{T0}, s{S_CB}, {72*4096}
    s_lshl_b32 s{T1}, s{S_RB}, 2
    s_add_u32 s{T1}, s{T1}, s{S_G}
    s_and_b32 s{T2}, s{T1}, 15
    s_lshl_b32 s{T2}, s{T2}, 4
    s_add_u32 s{T0}, s{T0}, s{T2}
    s_lshr_b32 s{T2}, s{T1}, 5
    s_lshl_b32 s{T2}, s{T2}, 10
    s_add_u32 s{T0}, s{T0}, s{T2}
    s_bfe_u32 s{T2}, s{T1}, 0x10004
    s_lshl_b32 s{T2}, s{T2}, 3
    s_add_u32 s{T0}, s{T0}, s{T2}
    s_add_u32 s{T0}, s{T0}, {WS_BT}""")
    assert REG % 128 == 0
    def waitvm(pos):
        A(f"s_waitcnt vmcnt({min(63, nv[0] - pos + SX)})")
    waitvm(pos_small)
    for T in range(2):
        ZX, ZR = (ZX0, ZR0) if T == 0 else (ZX1, ZR1)
        A(f"""v_cvt_pk_bf16_f32 v{ZX}, v{ZX}, v{ZX+1}
        v_cvt_pk_bf16_f32 v{ZX+1}, v{ZX+2}, v{ZX+3}
        v_cvt_pk_bf16_f32 v{ZR}, v{ZR}, v{ZR+1}""")
        for ro, (k, h) in enumerate([(0, 1), (1, 0), (2, 0), (2, 1)]):
            m = getmask(mask64(lambda i, q: (i & 3) == ro))
            for x in range(2):
                A(f"v_cndmask_b32 v{A1d(T,k)+2*h+x}, 0, v{ZX+x}, {m}")
        for par in range(2):
            m = getmask(mask64(lambda i, q: (i & 1) == par and q == 2 * T + ((i & 3) >> 1)))
            A(f"v_cndmask_b32 v{A1d(T,0)+par}, 0, v{ZR}, {m}")
    A(f"""v_cvt_pk_bf16_f32 v{LX}, v{LX}, v{LX+1}
    v_cvt_pk_bf16_f32 v{LX+1}, v{LX+2}, v{LX+3}
    v_cvt_pk_bf16_f32 v{LR}, v{LR}, v{LR+1}""")
    for p in range(4):
        for par in range(2):
            setexec(mask64(lambda i, q: (i & 3) == p and (i >> 3) == par))
            A(f"v_mov_b32 v{A1l(p)+2*par}, v{LX}\nv_mov_b32 v{A1l(p)+2*par+1}, v{LX+1}")
    for par in range(2):
        setexec(mask64(lambda i, q: q == (i & 3) and (i >> 3) == par))
        A(f"v_mov_b32 v{A1l(4)+par}, v{LR}")
    A("s_mov_b64 exec, -1")
    load_pq(1)
    for hl in range(8):
        p, par = hl >> 1, hl & 1
        waitvm(pos_h[hl])
        mh = 2 if par == 0 else 0
        rh = 0 if par == 0 else 2
        A(f"""v_cvt_pk_bf16_f32 v{A1m(hl)+mh}, v{KM(hl)}, v{KM(hl)+1}
        v_cvt_pk_bf16_f32 v{A1m(hl)+mh+1}, v{KM(hl)+2}, v{KM(hl)+3}""")
        setexec(0xffff << (16 * p))
        A(f"v_cvt_pk_bf16_f32 v{A1m(hl)+rh+par}, v{KRD(hl)}, v{KRD(hl)+1}")
        A("s_mov_b64 exec, -1")
    load_pq(2)
    for t in range(5):
        if t < 4: off = (32 * (t >> 1) + 4 * (t & 1)) * 4096; vo = VB0
        else: off = 64 * 4096; vo = VB1
        A(f"s_add_u32 s{T1}, s{T0}, {off}")
        vm(f"buffer_load_dwordx2 {a(WOF(4,t)+2,2)}, v{vo}, {ws}, s{T1} offen")
    pos_bt = nv[0]
    load_pq(3)
    waitvm(pos_g)
    mhi = getmask(mask64(lambda i, q: q >= 2))
    md0 = getmask(mask64(lambda i, q: q == (i >> 2) and (i & 2) == 0))
    md1 = getmask(mask64(lambda i, q: q == (i >> 2) and (i & 2) != 0))
    modd = getmask(mask64(lambda i, q: (i & 1) == 1))
    A(f"""v_sub_f32 v{X0}, 1.0, v{GV}
    v_cvt_pk_bf16_f32 v{X0}, v{X0}, 0
    v_lshlrev_b32 v{X1}, 16, v{X0}
    v_cndmask_b32 v{X0}, v{X0}, v{X1}, {modd}
    v_cndmask_b32 v{DIAG}, 0, v{X0}, {md0}
    v_cndmask_b32 v{DIAG+1}, 0, v{X0}, {md1}""")
    stamp(2)
    def S1(j):
        o = []
        for T in range(2):
            for k in range(3):
                c = v(EPSV, 4) if k == 0 else v(DEN(T), 4)
                o.append(f"v_mfma_f32_16x16x32_bf16 {v(DEN(T),4)}, {v(A1d(T,k),4)}, {pq(j,12*T+4*k,4)}, {c}")
        for hl in range(8):
            p, par = hl >> 1, hl & 1
            o.append(f"v_mfma_f32_16x16x32_bf16 {v(NUM(hl),4)}, {v(A1m(hl),4)}, {pq(j,6*p+4*par,4)}, 0")
        o.append(f"v_mfma_f32_16x16x32_bf16 {v(NL,4)}, {v(A1l(4),4)}, {pq(j,0,4)}, 0")
        for p in range(4):
            o.append(f"v_mfma_f32_16x16x32_bf16 {v(NL,4)}, {v(A1l(p),4)}, {pq(j,6*p+2,4)}, {v(NL,4)}")
        return o
    def V1(j):
        b = j & 1
        o = []
        for h in range(8): o.append(f"v_rcp_f32 v{DEN(0)+h}, v{DEN(0)+h}")
        for h in range(8): o.append(f"v_mul_f32 v{DEN(0)+h}, v{GV+j}, v{DEN(0)+h}")
        for p in range(4): o.append(f"v_cndmask_b32 v{SEL+p}, v{DEN(0)+2*p}, v{DEN(0)+2*p+1}, {mhi}")
        for hl in range(8):
            p, par = hl >> 1, hl & 1
            for r in range(4): o.append(f"v_mul_f32 v{NUM(hl)+r}, v{DEN(0)+hl}, v{NUM(hl)+r}")
            o.append(f"v_cvt_pk_bf16_f32 v{OF(b,p)+2*par}, v{NUM(hl)}, v{NUM(hl)+1}")
            o.append(f"v_cvt_pk_bf16_f32 v{OF(b,p)+2*par+1}, v{NUM(hl)+2}, v{NUM(hl)+3}")
        for r in range(4): o.append(f"v_mul_f32 v{NL+r}, v{SEL+r}, v{NL+r}")
        o.append(f"v_cvt_pk_bf16_f32 v{OF(b,4)}, v{NL}, v{NL+1}")
        o.append(f"v_cvt_pk_bf16_f32 v{OF(b,4)+1}, v{NL+2}, v{NL+3}")
        if j == 0:
            o.append(f"v_mov_b32 v{OF(0,4)+2}, v{DIAG}"); o.append(f"v_mov_b32 v{OF(0,4)+3}, v{DIAG+1}")
        elif j == 1:
            o.append(f"v_mov_b32 v{OF(1,4)+2}, 0"); o.append(f"v_mov_b32 v{OF(1,4)+3}, 0")
        elif j == 2:
            o.append(f"v_mov_b32 v{OF(0,4)+2}, 0"); o.append(f"v_mov_b32 v{OF(0,4)+3}, 0")
        return o
    def S2(j):
        b = j & 1
        o = []
        for p in range(5):
            for t in range(5):
                c = "0" if p == 0 else acc(j, t)
                o.append(f"v_mfma_f32_16x16x32_bf16 {acc(j,t)}, {a(WOF(p,t),4)}, {v(OF(b,p),4)}, {c}")
        return o
    def wo_reads():
        o = []
        for p in range(5):
            for t in range(5):
                for u in range(2):
                    if p == 4 and u == 1: continue
                    sl = 32 * p + 16 * u
                    if t < 4:
                        o.append(f"ds_read_b64_tr_b16 {a(WOF(p,t)+2*u,2)}, v{VT0 if t < 2 else VT1} offset:{sl*128 + (t&1)*8}")
                    else:
                        o.append(f"ds_read_b64_tr_b16 {a(WOF(p,t)+2*u,2)}, v{VT2} offset:{18432 + sl*16}")
        return o
    def interleave(ms, fs):
        per = -(-len(fs) // max(1, len(ms)))
        fs = list(fs)
        for m_ in ms:
            A(m_)
            for _ in range(per):
                if fs: A(fs.pop(0))
        for f_ in fs: A(f_)
    waitvm(pos_pq[0])
    A("s_nop 1")
    for m_ in S1(0): A(m_)
    waitvm(pos_wo)
    interleave(wo_reads(), V1(0))
    stamp(3)
    for j in range(1, 4):
        waitvm(pos_pq[j])
        for m_ in S1(j): A(m_)
        if j == 1:
            waitvm(pos_bt)
            A("s_waitcnt lgkmcnt(0)")
        interleave(S2(j - 1), V1(j))
    A("s_nop 1")
    for m_ in S2(3): A(m_)
    stamp(4)
    A(f"v_add_u32 v{X0}, s{S_WB}, v{V16}")
    for j in range(1, 4):
        if j == 3: A("s_nop 7")
        for t in range(5):
            A(f"ds_write_b128 v{X0}, {acc(j,t)} offset:{(j-1)*5120 + t*1024}")
    RB = KT
    for j in range(1, 4):
        A(f"""s_sub_u32 s{T0}, s{S_G}, {j}
        s_and_b32 s{T0}, s{T0}, 3
        s_mul_i32 s{T0}, s{T0}, {REG}
        v_add_u32 v{X1+j-1}, s{T0}, v{V16}""")
    A(f"""s_lshl_b32 s{T0}, s{S_RB}, 6
    s_lshl_b32 s{T1}, s{S_G}, 4
    s_add_u32 s{T0}, s{T0}, s{T1}
    s_mul_i32 s{T0}, s{T0}, 1152
    s_mul_i32 s{T1}, s{S_CB}, 144
    s_add_u32 s{T0}, s{T0}, s{T1}
    v_mul_u32_u24 v{VP0}, 1152, v{I16}
    v_lshl_add_u32 v{VP1}, v{Q}, 3, v{VP0}
    v_lshl_add_u32 v{VP0}, v{Q}, 4, v{VP0}
    s_waitcnt lgkmcnt(0)
    s_barrier""")
    for t in range(5):
        for j in range(1, 4):
            A(f"ds_read_b128 {v(RB+12*t+4*(j-1),4)}, v{X1+j-1} offset:{(j-1)*5120 + t*1024}")
    OUTR = A1
    for t in range(5):
        A(f"s_waitcnt lgkmcnt({12-3*t})")
        for r in range(4):
            A(f"v_add_f32 v{RB+12*t+r}, v{RB+12*t+r}, v{RB+12*t+4+r}")
            A(f"v_add_f32 v{ACC0+4*t+r}, v{ACC0+4*t+r}, v{RB+12*t+8+r}")
        for r in range(4):
            A(f"v_add_f32 v{ACC0+4*t+r}, v{ACC0+4*t+r}, v{RB+12*t+r}")
        A(f"v_cvt_pk_bf16_f32 v{OUTR+2*t}, v{ACC0+4*t}, v{ACC0+4*t+1}")
        A(f"v_cvt_pk_bf16_f32 v{OUTR+2*t+1}, v{ACC0+4*t+2}, v{ACC0+4*t+3}")
        if t in (1, 3):
            A(f"buffer_store_dwordx4 {v(OUTR+2*t-2,4)}, v{VP0}, {s(SOUT,4)}, s{T0} offen offset:{32*(t-1)}")
    A(f"""s_mov_b32 exec_hi, 0
    buffer_store_dwordx2 {v(OUTR+8,2)}, v{VP1}, {s(SOUT,4)}, s{T0} offen offset:128""")
    A("s_mov_b64 exec, -1")
    stamp(5)
    A.label("L2_exit")
    A("s_endpgm")
```

```python
from asm import *
from auto import Auto
from l1gemm import *
import struct

PADL = 288
XTP = (PADL + 2048) * 2
XT0 = 32768
SCR0 = XT0 + 8 * XTP
SCP = 11648
TP = 528
KP = 1248
CP = 864
ARR = {("2", 0): 0, ("2", 8): 128, ("2", 4): 256, ("2", 12): 384, ("3", 4): 512, ("3", 12): 688}
WT = [(0, 1, -16), (8, 1, -16), (4, 2, -16), (12, 2, -24), (4, 3, -16), (12, 4, -24)]

def wtable():
    out = []
    for (sg, hw, off) in WT:
        for l in range(64):
            r, q = l & 15, l >> 4
            el = [0x3f80 if abs(off + 8 * q + jj - (r - sg - 4)) <= hw else 0 for jj in range(8)]
            out += [el[2 * i] | (el[2 * i + 1] << 16) for i in range(4)]
    return out

def gen_ssm(A0, stamps=False):
    A = Auto(A0)
    S_SG, S_CH, S_SCR, S_XT = 65, 66, 75, 76
    S_K1024 = 77
    def st(idx):
        if stamps:
            A.one("s_waitcnt lgkmcnt(0)")
            stamp(A0, idx, stamps); A.t += 4; A.vm.append(set())
    A(f"""s_mul_i32 s{S_SG}, s3, 9
    s_add_u32 s{S_SG}, s{S_SG}, s4
    s_lshl_b32 s{S_CH}, s{S_SG}, 3
    s_add_u32 s{S_CH}, s{S_CH}, s{S_WAVE}
    s_lshl_b32 s{S_T0}, s{S_CH}, 8
    s_lshl_b32 s{S_T1}, s{S_CH}, 1""")
    VA = 1
    V_TW, V_TRd, V_XS, V_XD, V_BX, V_ZX, V_TAPR, V_TAPW, V_K0W, V_K1W, V_KR, V_R2S, V_R2D, V_L16, V_SCRV = range(1, 16)
    X0, X1, X2, X3 = 16, 17, 18, 19
    WC = 20
    ACC = 44
    TF = 76
    AF = 116
    BR = 188
    ZT = 220
    LF = 44
    HF = 76
    DA, DB, DC = 108, 112, 240
    KG = 116
    pool = list(range(KG, 240, 4))
    def alloc(): return pool.pop(0)
    def free(r): pool.append(r)
    P_LA, P_AI, P_CR, P_CI, P_DT, P_DS = 244, 245, 246, 247, 248, 249
    A(f"""v_lshl_add_u32 v{X0}, v0, 2, s{S_T0}
    v_mov_b32 v{X1}, s{S_T1}
    global_load_dword v{P_LA}, v{X0}, {s(S_LOGA,2)}
    global_load_ushort v{P_DT}, v{X1}, {s(S_LOGDT,2)}
    global_load_dword v{P_AI}, v{X0}, {s(S_AIM,2)}
    global_load_dword v{P_CR}, v{X0}, {s(S_CRE,2)}
    global_load_dword v{P_CI}, v{X0}, {s(S_CIM,2)}
    global_load_ushort v{P_DS}, v{X1}, {s(S_DSKIP,2)}""")
    A(f"""s_lshl_b32 s{S_T0}, s{S_SG}, 4
    v_mul_u32_u24 v{X2}, 1152, v0
    v_add_u32 v{X2}, s{S_T0}, v{X2}
    s_mul_i32 s{S_T1}, s4, 7
    s_lshr_b32 s{S_T1}, s{S_T1}, 1
    s_add_u32 s{S_T1}, s{S_T1}, s{S_WAVE}""")
    for k in range(4):
        A(f"""s_add_u32 s{S_T2}, s{S_T1}, {8*k}
        s_and_b32 s{S_T2}, s{S_T2}, 31
        s_lshl_b32 m0, s{S_T2}, 10
        s_mul_i32 s{S_T3}, s{S_T2}, {64*1152}""")
        A.one(f"buffer_load_dwordx4 v{X2}, {s(SX,4)}, s{S_T3} offen lds", tag="xdma")
    A0("s_getpc_b64 s[78:79]")
    A0.label("L_ssm_pc")
    A(f"""s_add_u32 s78, s78, L_wtab-L_ssm_pc
    s_addc_u32 s79, s79, 0
    v_lshlrev_b32 v{V_L16}, 4, v0""")
    for i in range(6):
        if i == 4: A("s_add_u32 s78, s78, 4096\ns_addc_u32 s79, s79, 0")
        A(f"global_load_dwordx4 {v(WC+4*i,4)}, v{V_L16}, s[78:79] offset:{1024*(i%4)}")
    A(f"""s_mul_i32 s{S_SCR}, s{S_WAVE}, {SCP}
    s_add_u32 s{S_SCR}, s{S_SCR}, {SCR0}
    s_mul_i32 s{S_XT}, s{S_WAVE}, {XTP}
    s_add_u32 s{S_XT}, s{S_XT}, {XT0}
    v_and_b32 v{X0}, 15, v0
    v_lshrrev_b32 v{X1}, 4, v0
    v_lshl_add_u32 v{V_TW}, v0, 3, s{S_SCR}
    v_mul_u32_u24 v{V_TRd}, {TP}, v{X0}
    v_lshl_add_u32 v{V_TRd}, v{X1}, 4, v{V_TRd}
    v_add_u32 v{V_TRd}, s{S_SCR}, v{V_TRd}
    v_add_u32 v{V_SCRV}, s{S_SCR}, v{V_L16}""")
    I16, Q = X0, X1
    A(f"""v_lshlrev_b32 v{V_BX}, 5, v{I16}
    v_lshl_add_u32 v{V_BX}, v{Q}, 4, v{V_BX}
    s_add_u32 s{S_T0}, s{S_XT}, {2*(PADL-256-16)}
    v_add_u32 v{V_BX}, s{S_T0}, v{V_BX}""")
    A(f"""v_and_b32 v{X2}, 3, v0
    v_bfe_u32 v{X3}, v0, 2, 2
    v_lshl_add_u32 v{V_ZX}, v{X2}, 2, v{X3}
    v_lshlrev_b32 v{V_ZX}, 5, v{V_ZX}
    v_lshl_add_u32 v{V_ZX}, v{Q}, 4, v{V_ZX}
    s_add_u32 s{S_T0}, s{S_XT}, {2*(PADL-24)}
    v_add_u32 v{V_ZX}, s{S_T0}, v{V_ZX}""")
    A(f"""v_sub_u32 v{V_TAPR}, v{X2}, v{X3}
    v_lshlrev_b32 v{V_TAPR}, 3, v{V_TAPR}
    v_mul_u32_u24 v{V_TAPW}, {CP}, v{Q}
    s_add_u32 s{S_T0}, s{S_SCR}, 32
    v_add3_u32 v{V_TAPR}, v{V_TAPR}, v{V_TAPW}, s{S_T0}""")
    A(f"""v_lshl_add_u32 v{V_XS}, v{X2}, 3, v{X3}
    v_lshrrev_b32 v{V_XD}, 5, v0
    v_lshl_add_u32 v{V_XS}, v{V_XD}, 5, v{V_XS}
    v_lshlrev_b32 v{V_XS}, 4, v{V_XS}
    v_bfe_u32 v{V_K0W}, v0, 4, 1
    v_lshl_add_u32 v{V_XS}, v{V_K0W}, 3, v{V_XS}
    s_lshl_b32 s{S_T0}, s{S_WAVE}, 12
    v_add_u32 v{V_XS}, s{S_T0}, v{V_XS}
    v_lshlrev_b32 v{V_XD}, 6, v{V_XD}
    v_lshl_add_u32 v{V_XD}, v{X3}, 4, v{V_XD}
    v_lshl_add_u32 v{V_K0W}, v{V_K0W}, 2, v{X2}
    v_mul_u32_u24 v{V_K0W}, {XTP}, v{V_K0W}
    s_lshl_b32 s{S_T0}, s{S_WAVE}, 9
    s_add_u32 s{S_T0}, s{S_T0}, {XT0 + 2*PADL}
    v_add3_u32 v{V_XD}, v{V_XD}, v{V_K0W}, s{S_T0}""")
    A(f"""v_lshrrev_b32 v{X2}, 1, v{Q}
    v_lshrrev_b32 v{X3}, 2, v{I16}
    v_lshlrev_b32 v{X3}, 8, v{X3}
    v_lshl_add_u32 v{X3}, v{X2}, 7, v{X3}
    v_and_b32 v{V_TAPW}, 3, v{I16}
    v_lshl_add_u32 v{X3}, v{V_TAPW}, 4, v{X3}
    v_mul_u32_u24 v{V_TAPW}, 176, v{X2}
    v_lshl_add_u32 v{V_TAPW}, v{I16}, 4, v{V_TAPW}
    v_add_u32 v{V_TAPW}, {512-128}, v{V_TAPW}
    v_cmp_gt_u32 vcc, 8, v{I16}
    v_cndmask_b32 v{V_TAPW}, v{V_TAPW}, v{X3}, vcc
    v_and_b32 v{X3}, 1, v{Q}
    v_lshl_add_u32 v{V_TAPW}, v{X3}, 3, v{V_TAPW}
    s_add_u32 s{S_T0}, s{S_SCR}, 32
    v_add_u32 v{V_TAPW}, s{S_T0}, v{V_TAPW}""")
    A(f"""v_and_b32 v{V_K1W}, 7, v{I16}
    v_lshlrev_b32 v{V_K1W}, 1, v{V_K1W}
    v_lshrrev_b32 v{V_K0W}, 3, v{I16}
    v_add_u32 v{V_K1W}, v{V_K1W}, v{V_K0W}
    v_lshlrev_b32 v{V_K1W}, 4, v{V_K1W}
    v_lshl_add_u32 v{V_K0W}, v{X2}, 8, v{V_K1W}
    v_lshl_add_u32 v{V_K0W}, v{X3}, 3, v{V_K0W}
    s_add_u32 s{S_T0}, s{S_SCR}, 1080
    v_sub_u32 v{V_K0W}, s{S_T0}, v{V_K0W}
    v_lshl_add_u32 v{V_K1W}, v{Q}, 8, v{V_K1W}
    s_add_u32 s{S_T0}, s{S_SCR}, {2*(537-256)}
    v_sub_u32 v{V_K1W}, s{S_T0}, v{V_K1W}""")
    A(f"""v_sub_u32 v{X2}, 15, v{I16}
    v_and_b32 v{X3}, 7, v{X2}
    v_mul_u32_u24 v{V_KR}, {KP}, v{X3}
    v_lshrrev_b32 v{X2}, 3, v{X2}
    v_add_u32 v{X2}, v{X2}, v{Q}
    v_lshl_add_u32 v{V_KR}, v{X2}, 4, v{V_KR}
    v_add_u32 v{V_KR}, s{S_SCR}, v{V_KR}""")
    A(f"""v_mul_u32_u24 v{X2}, 9363, v0
    v_lshrrev_b32 v{X2}, 16, v{X2}
    v_mul_u32_u24 v{X3}, 7, v{X2}
    v_sub_u32 v{X3}, v0, v{X3}
    v_add_u32 v{X2}, 1, v{X2}
    v_cmp_lt_u32 vcc, 3, v{X3}
    v_add_u32 v{V_R2S}, 64, v{X3}
    v_add_u32 v{X3}, 67, v{X3}
    v_cndmask_b32 v{V_R2S}, v{V_R2S}, v{X3}, vcc
    v_lshlrev_b32 v{V_R2S}, 4, v{V_R2S}
    v_add_u32 v{V_R2S}, s{S_SCR}, v{V_R2S}
    v_mul_u32_u24 v{V_R2D}, {KP}, v{X2}
    v_add_u32 v{V_R2D}, v{V_R2D}, v{V_R2S}
    v_lshl_add_u32 v{V_R2S}, v{X2}, 1, v{V_R2S}""")
    Z4 = alloc()
    A(f"""v_mov_b32 v{Z4}, 0
    v_mov_b32 v{Z4+1}, 0
    v_mov_b32 v{Z4+2}, 0
    v_mov_b32 v{Z4+3}, 0
    v_add_u32 v{X2}, s{S_XT}, v{V_L16}
    s_mov_b32 exec_hi, 0xf
    ds_write_b128 v{X2}, {v(Z4,4)}
    s_mov_b64 exec, -1""")
    st(1)
    INV2PI = "0.15915494"
    zr, zi = alloc(), alloc()
    DT = zr + 2
    A(f"""v_lshlrev_b32 v{zr}, 16, v{P_LA}
    v_and_b32 v{zr+1}, 0xffff0000, v{P_LA}
    v_lshlrev_b32 v{DT}, 16, v{P_DT}
    v_mul_f32 v{zr}, s{S_L2E}, v{zr}
    v_mul_f32 v{zr+1}, s{S_L2E}, v{zr+1}
    v_mul_f32 v{DT}, s{S_L2E}, v{DT}
    v_exp_f32 v{zr}, v{zr}
    v_exp_f32 v{zr+1}, v{zr+1}
    v_exp_f32 v{DT}, v{DT}
    v_lshlrev_b32 v{zi}, 16, v{P_AI}
    v_and_b32 v{zi+1}, 0xffff0000, v{P_AI}
    v_cvt_pk_bf16_f32 v{zr+1}, v{zr}, v{zr+1}
    v_cvt_pk_bf16_f32 v{DT}, v{DT}, v{DT}
    v_lshlrev_b32 v{zr}, 16, v{zr+1}
    v_and_b32 v{zr+1}, 0xffff0000, v{zr+1}
    v_and_b32 v{DT}, 0xffff0000, v{DT}
    v_mul_f32 v{zr}, v{zr}, v{DT}
    v_mul_f32 v{zr+1}, v{zr+1}, v{DT}
    v_mul_f32 v{zi}, v{zi}, v{DT}
    v_mul_f32 v{zi+1}, v{zi+1}, v{DT}
    v_mul_f32 v{zr}, s{S_L2E}, v{zr}
    v_mul_f32 v{zr+1}, s{S_L2E}, v{zr+1}
    v_mul_f32 v{zi}, {INV2PI}, v{zi}
    v_mul_f32 v{zi+1}, {INV2PI}, v{zi+1}
    v_add_f32 v{DT}, v{DT}, v{DT}""")
    def direct(p):
        e = alloc(); t = alloc()
        pf = struct.unpack("<I", struct.pack("<f", float(p)))[0]
        for x in range(2):
            A(f"v_mul_f32 v{t+x}, {pf:#x}, v{zr+x}")
            A(f"v_mul_f32 v{t+2+x}, {pf:#x}, v{zi+x}")
        for x in range(2):
            A(f"v_exp_f32 v{t+x}, -v{t+x}")
            A(f"v_fract_f32 v{t+2+x}, v{t+2+x}")
        for x in range(2):
            A(f"v_cos_f32 v{e+2*x}, v{t+2+x}")
            A(f"v_sin_f32 v{e+2*x+1}, v{t+2+x}")
        for x in range(2):
            A(f"v_mul_f32 v{e+2*x}, v{t+x}, v{e+2*x}")
            A(f"v_mul_f32 v{e+2*x+1}, v{t+x}, v{e+2*x+1}")
        free(t)
        return e
    def cmul(a_, b_):
        d = alloc()
        for x in (0, 2): A(f"v_mul_f32 v{d+x}, v{a_+x}, v{b_+x}")
        for x in (0, 2): A(f"v_mul_f32 v{d+x+1}, v{a_+x+1}, v{b_+x}")
        for x in (0, 2): A(f"v_fma_f32 v{d+x}, -v{a_+x+1}, v{b_+x+1}, v{d+x}")
        for x in (0, 2): A(f"v_fmac_f32 v{d+x+1}, v{a_+x}, v{b_+x+1}")
        return d
    wtmp = [alloc(), alloc()]
    wk = [0]
    def put(e, row, neg=False, rows2=()):
        w = wtmp[(wk[0] >> 1) & 1] + 2 * (wk[0] & 1); wk[0] += 1
        n = "-" if neg else ""
        A(f"v_cvt_pk_bf16_f32 v{w}, v{e}, {n}v{e+1}")
        A(f"v_cvt_pk_bf16_f32 v{w+1}, v{e+2}, {n}v{e+3}")
        for r_ in (row,) + tuple(rows2):
            A(f"ds_write_b64 v{V_TW}, {v(w,2)} offset:{r_*TP}")
    def rdfr(base):
        for ks in range(8):
            A(f"ds_read_b128 {v(base+4*ks,4)}, v{V_TRd} offset:{64*ks}")
    def mm(D, swap):
        for ks in range(8):
            a_, b_ = (LF, HF) if swap else (HF, LF)
            A(f"v_mfma_f32_16x16x32_bf16 {v(D,4)}, {v(a_+4*ks,4)}, {v(b_+4*ks,4)}, {'0' if ks == 0 else v(D,4)}")
    R8 = direct(8)
    L = alloc()
    A(f"""v_lshlrev_b32 v{L}, 16, v{P_CR}
    v_lshlrev_b32 v{L+1}, 16, v{P_CI}
    v_and_b32 v{L+2}, 0xffff0000, v{P_CR}
    v_and_b32 v{L+3}, 0xffff0000, v{P_CI}""")
    for x in range(4): A(f"v_mul_f32 v{L+x}, v{DT}, v{L+x}")
    for j in range(16):
        put(L, (j >> 1) + 8 * (j & 1), neg=True)
        if j < 15:
            n_ = cmul(L, R8); free(L); L = n_
    free(L)
    rdfr(LF)
    st(2)
    E1 = direct(1)
    G1 = direct(128)
    one = alloc()
    A(f"v_mov_b32 v{one}, 0x3f80\nv_mov_b32 v{one+1}, 0x3f80")
    A(f"ds_write_b64 v{V_TW}, {v(one,2)}")
    free(one)
    put(G1, 8)
    H = {1: E1}
    for i in range(1, 8):
        if i > 1: H[i] = cmul(H[i-1], E1)
        put(H[i], i)
        t = cmul(H[i], G1); put(t, 8 + i); free(t)
        if i - 1 in (3, 5): free(H[i-1])
    free(H[7])
    rdfr(HF)
    G2 = cmul(G1, G1); G3 = cmul(G2, G1); G4 = cmul(G3, G1)
    for gi, G in enumerate((G2, G3)):
        put(G, 4 * gi)
        for k, i in enumerate((2, 4, 6)):
            t = cmul(H[i], G); put(t, 4 * gi + 1 + k); free(t)
        if gi == 0: mm(DA, False)
    put(G4, 8, rows2=(9,))
    A(f"ds_write_b64 v{V_TW}, {v(Z4,2)} offset:{10*TP}")
    A(f"ds_write_b64 v{V_TW}, {v(Z4,2)} offset:{11*TP}")
    rdfr(HF)
    free(G2); free(G3); free(H[2]); free(H[6]); free(E1)
    P = cmul(G4, H[4]); Qv = cmul(G4, R8)
    free(G4); free(H[4]); free(R8)
    for h in range(12):
        if h < 4:
            put(P, h)
            if h < 3: n_ = cmul(P, G1); free(P); P = n_
        put(Qv, 4 + h)
        if h < 11: n_ = cmul(Qv, G1); free(Qv); Qv = n_
        if h == 2: mm(DB, False)
    rdfr(HF)
    st(3)
    A.wait_vm_tag("xdma")
    A("s_barrier")
    XTm = 200
    for k in range(4):
        A(f"ds_read_b64_tr_b16 {v(XTm+4*k,2)}, v{V_XS} offset:{1024*k}")
        A(f"ds_read_b64_tr_b16 {v(XTm+4*k+2,2)}, v{V_XS} offset:{1024*k+64}")
    mm(DC, True)
    for k in range(4):
        A(f"ds_write_b128 v{V_XD}, {v(XTm+4*k,4)} offset:{128*k}")
    for k in range(4):
        A(f"ds_write_b128 v{V_SCRV}, {v(Z4,4)} offset:{1024*k}")
    PA, PB = 216, 220
    A(f"""v_lshlrev_b32 v{X2}, 16, v{P_DS}
    s_mov_b64 exec, 1
    v_add_f32 v{DA}, v{DA}, v{X2}
    s_mov_b64 exec, -1
    v_cvt_pk_bf16_f32 v{PA}, v{DA+3}, v{DA+2}
    v_cvt_pk_bf16_f32 v{PA+1}, v{DA+1}, v{DA}
    v_cvt_pk_bf16_f32 v{PB}, v{DB+3}, v{DB+2}
    v_cvt_pk_bf16_f32 v{PB+1}, v{DB+2}, v{DB+2}
    v_cvt_pk_bf16_f32 v{PB+2}, v{DB+1}, v{DB}
    v_cvt_pk_bf16_f32 v{PB+3}, v{DB}, v{DB}""")
    PC = 224
    A(f"""v_readlane_b32 s{S_K1024}, v{DC+3}, 55
    s_mov_b32 exec_lo, 0
    s_mov_b32 exec_hi, {1 << (55-32):#x}
    v_mov_b32 v{DC+3}, 0
    s_mov_b64 exec, -1
    v_cvt_pk_bf16_f32 v{PC}, v{DC}, v{DC+1}
    v_cvt_pk_bf16_f32 v{PC+1}, v{DC+2}, v{DC+3}
    v_cvt_pk_bf16_f32 v{PC+2}, v{DC+1}, v{DC+2}
    ds_write_b64 v{V_TAPW}, {v(PC,2)}
    ds_write_b16 v{V_TAPW}, v{PC} offset:{CP+2}
    ds_write_b32 v{V_TAPW}, v{PC+2} offset:{CP+4}
    ds_write_b16_d16_hi v{V_TAPW}, v{PC+1} offset:{CP+8}
    ds_write_b32 v{V_TAPW}, v{PC} offset:{2*CP+4}
    ds_write_b32 v{V_TAPW}, v{PC+1} offset:{2*CP+8}
    ds_write_b16 v{V_TAPW}, v{PC} offset:{3*CP+6}
    ds_write_b32 v{V_TAPW}, v{PC+2} offset:{3*CP+8}
    ds_write_b16_d16_hi v{V_TAPW}, v{PC+1} offset:{3*CP+12}""")
    tf = {}
    k = 0
    for pr in range(2):
        for D_ in (2, 3, 4):
            tf[("2", pr, D_)] = TF + 4 * k; k += 1
            for u in range(2):
                sg = (0, 8)[u] if pr == 0 else (4, 12)[u]
                A(f"ds_read_b64_tr_b16 {v(tf[('2',pr,D_)]+2*u,2)}, v{V_TAPR} offset:{ARR[('2',sg)] + 32*(D_-2)}")
    for D_ in (4, 5, 6, 7):
        tf[("3", 0, D_)] = TF + 4 * k; k += 1
        for u in range(2):
            A(f"ds_read_b64_tr_b16 {v(tf[('3',0,D_)]+2*u,2)}, v{V_TAPR} offset:{ARR[('3',(4,12)[u])] + 32*(D_-4)}")
    A(f"""v_lshrrev_b32 v{X2}, 3, v0
    v_mul_u32_u24 v{X2}, {KP}, v{X2}
    v_and_b32 v{X3}, 7, v0
    v_lshl_add_u32 v{X2}, v{X3}, 4, v{X2}
    v_add_u32 v{X2}, s{S_SCR}, v{X2}
    ds_write_b128 v{X2}, {v(Z4,4)} offset:1024
    ds_write_b128 v{X2}, {v(Z4,4)} offset:1152
    ds_write_b128 v{X2}, {v(Z4,4)}
    s_mov_b32 exec_hi, 1
    ds_write_b128 v{V_K1W}, {v(PB,4)}
    s_mov_b64 exec, -1
    ds_write_b64 v{V_K0W}, {v(PA,2)}
    v_mov_b32 v{X3}, s{S_K1024}
    v_cvt_pk_bf16_f32 v{X3}, v{X3}, v{X3}
    v_lshl_add_u32 v{X2}, v0, 1, s{S_SCR}
    s_mov_b64 exec, 0x7f
    ds_write_b16 v{X2}, v{X3} offset:{1120+38}
    s_mov_b64 exec, -1""")
    E, E2, O, O2, R2 = 188, 196, 204, 212, 228
    A(f"""ds_read_b128 {v(E,4)}, v{V_SCRV}
    ds_read_b128 {v(E+4,4)}, v{V_SCRV} offset:16
    s_mov_b32 exec_hi, 0x1ffff
    ds_read_b128 {v(R2,4)}, v{V_R2S}
    s_mov_b64 exec, -1""")
    A(f"ds_write_b128 v{V_SCRV}, {v(E+2,4)} offset:{4*KP}")
    for i in range(6): A(f"v_alignbit_b32 v{O+i}, v{E+i+1}, v{E+i}, 16")
    A(f"ds_write_b128 v{V_SCRV}, {v(O,4)} offset:{1*KP}")
    A(f"ds_write_b128 v{V_SCRV}, {v(O+2,4)} offset:{5*KP}")
    for i in range(6): A(f"v_mov_b32 v{E2+i}, v{E+i+1}")
    A(f"ds_write_b128 v{V_SCRV}, {v(E2,4)} offset:{2*KP}")
    A(f"ds_write_b128 v{V_SCRV}, {v(E2+2,4)} offset:{6*KP}")
    for i in range(6): A(f"v_alignbit_b32 v{O2+i}, v{E+i+2}, v{E+i+1}, 16")
    A(f"ds_write_b128 v{V_SCRV}, {v(O2,4)} offset:{3*KP}")
    A(f"ds_write_b128 v{V_SCRV}, {v(O2+2,4)} offset:{7*KP}")
    A(f"""s_mov_b32 exec_hi, 0x1ffff
    ds_write_b128 v{V_R2D}, {v(R2,4)}
    s_mov_b64 exec, -1""")
    for w in range(17):
        A(f"ds_read_b128 {v(AF+4*w,4)}, v{V_KR} offset:{16*(64-4*w)}")
    A(f"ds_read_b128 {v(AF+68,4)}, v{V_KR} offset:{16*70}")
    A("s_waitcnt lgkmcnt(0)")
    A("s_barrier")
    st(4)
    first = set()
    def accm(i, a_, b_):
        c = v(ACC + 4 * i, 4) if i in first else "0"
        first.add(i)
        return f"v_mfma_f32_16x16x32_bf16 {v(ACC+4*i,4)}, {v(a_,4)}, {v(b_,4)}, {c}"
    items = []
    for s_ in range(-8, 57):
        ms = [(i, AF + 4 * (8 * i - s_)) for i in range(8) if 0 <= 8 * i - s_ <= 16]
        items.append((64 * (s_ + 8), ms))
    for i in range(3, 8):
        items.append((2 * (256 * i - 760), [(i, AF + 68)]))
    NR, LA = 6, 5
    ZX = [212, 216]
    ZD = 220
    ZA = 244
    zsteps = []
    for cb in range(6):
        nz = 6 if cb < 4 else 4
        rd = [f"ds_read_b128 {v(ZX[0],4)}, v{V_ZX} offset:{512*cb+16}", f"ds_read_b128 {v(ZX[1],4)}, v{V_ZX} offset:{512*cb}"]
        zm = [f"v_mfma_f32_16x16x32_bf16 {v(ZD+4*k,4)}, {v(ZX[0] if WT[k][2] == -16 else ZX[1],4)}, {v(WC+4*k,4)}, 0" for k in range(nz)]
        za = [ZA, ZA + 4, X0]
        cv = []
        for k in range(nz):
            cv.append(f"v_cvt_pk_bf16_f32 v{za[k>>1]+2*(k&1)}, v{ZD+4*k}, v{ZD+4*k+1}")
            cv.append(f"v_cvt_pk_bf16_f32 v{za[k>>1]+2*(k&1)+1}, v{ZD+4*k+2}, v{ZD+4*k+3}")
        pm = []
        for pr in range(2):
            for D_ in (2, 3, 4):
                if cb + D_ <= 7: pm.append((cb + D_, za[pr], tf[("2", pr, D_)]))
        if cb < 4:
            for D_ in (4, 5, 6, 7):
                if cb + D_ <= 7: pm.append((cb + D_, za[2], tf[("3", 0, D_)]))
        zsteps.append((rd, zm, cv, pm))
    PER = 11
    for j in range(min(LA, len(items))):
        A(f"ds_read_b128 {v(BR+4*(j%NR),4)}, v{V_BX} offset:{items[j][0]}")
    pend_cv = []
    for j, (off, ms) in enumerate(items):
        cb, ph = divmod(j, PER)
        if cb < 6:
            rd, zm, cv, pm = zsteps[cb]
            if ph == 0:
                for x in rd: A(x)
            if ph == 3:
                for x in zm: A(x)
            if ph == 5: pend_cv = list(cv)
            if ph == 10:
                for x in pend_cv: A(x)
                pend_cv = []
                for (i, a_, b_) in pm: A(accm(i, a_, b_))
        for n_, (i, a_) in enumerate(ms):
            A(accm(i, a_, BR + 4 * (j % NR)))
            if n_ == 0 and j + LA < len(items):
                A(f"ds_read_b128 {v(BR+4*((j+LA)%NR),4)}, v{V_BX} offset:{items[j+LA][0]}")
            for _ in range(2):
                if pend_cv: A(pend_cv.pop(0))
    st(5)
    A(f"""s_lshl_b32 s{S_T0}, s{S_CH}, 12
    s_add_u32 s{S_T0}, s{S_T0}, {WS_BT}""")
    for i2 in range(4):
        o = BR + 4 * i2
        for x in range(4):
            A(f"v_cvt_pk_bf16_f32 v{o+x}, v{ACC+8*i2+2*x}, v{ACC+8*i2+2*x+1}")
        A(f"buffer_store_dwordx4 {v(o,4)}, v{V_L16}, {s(SWS,4)}, s{S_T0} offen offset:{1024*i2}")
    st(6)
    A("s_endpgm")

def gen_wtab(A):
    A.raw(".p2align 8")
    A.label("L_wtab")
    t = wtable()
    for i in range(0, len(t), 8):
        A.raw("  .long " + ", ".join(f"{x:#010x}" for x in t[i:i+8]))
```

```python
import sys
from asm import *
from l1gemm import *
from l2 import gen_l2
from ssm import gen_ssm, gen_wtab

stamps = "--stamps" in sys.argv
out = [a for a in sys.argv[1:] if not a.startswith("--")][0]

A = Asm()
HDR = """; generated by gen.py
; @launch kernel=l1_kernel grid=(248,1,1) block=(512,1,1) lds=163840
; @launch kernel=l2_kernel grid=(256,1,1) block=(256,1,1) lds=86016
.amdgcn_target "amdgcn-amd-amdhsa--gfx950"
.text
"""
A.raw(".globl l1_kernel\n.p2align 8\n.type l1_kernel,@function\nl1_kernel:")
if "--nopf" not in sys.argv:
    A("""s_getpc_b64 s[4:5]
    v_lshlrev_b32 v2, 7, v0
    v_min_u32 v2, L_code_end-l1_kernel-8, v2
    global_load_dword v253, v2, s[4:5]""")
A(f"""s_cmp_ge_u32 s2, 248
s_cbranch_scc1 L1_exit
s_load_dwordx16 s[16:31], s[0:1], 0
s_load_dwordx8 s[32:39], s[0:1], 64
s_load_dwordx4 s[40:43], s[0:1], 96
v_lshrrev_b32 v1, 6, v0
v_and_b32 v0, 63, v0
v_readfirstlane_b32 s{S_WAVE}, v1
s_and_b32 s3, s2, 7
s_lshr_b32 s4, s2, 3
s_mov_b32 s{S_L2E}, {LOG2E:#x}
s_mov_b32 s{S_EPS}, {EPS:#x}
s_and_b32 s5, s3, 3
s_lshl_b32 s5, s5, 2
s_lshr_b32 s6, s3, 2
s_waitcnt lgkmcnt(0)""")
srd(A, SX, S_X, S_X+1, 2048*1152)
srd(A, SW, S_W, S_W+1, 576*3456)
srd(A, SWS, S_WS, S_WS+1, WS_SIZE)
srd(A, SDBG, S_DBG, S_DBG+1, 256)
srd(A, SG, S_GATE, S_GATE+1, 1152)
if stamps:
    A(f"""s_lshl_b32 s7, s2, 3
    s_add_u32 s7, s7, s{S_WAVE}
    s_lshl_b32 s7, s7, 6
    s_add_u32 s7, s7, {WS_STAMP}
    v_mov_b32 v254, s7""")
    stamp(A, 0, stamps)
A(f"""s_cmp_lt_u32 s4, 9
s_cbranch_scc1 L1_ssm
s_cmp_lt_u32 s4, 15
s_cbranch_scc1 L1_q""")
A(f"""s_sub_u32 s4, s4, 15
s_and_b32 s7, s4, 3
s_add_u32 s{S_RB}, s5, s7
s_lshr_b32 s8, s4, 2
s_lshl_b32 s6, s6, 2
s_add_u32 s{S_CG}, s6, s8
s_add_u32 s7, s7, s8
s_and_b32 s7, s7, 3
s_lshl_b32 s{S_ROT}, s7, 1
s_cmp_lt_u32 s{S_WAVE}, 4
s_cbranch_scc1 L1_kv_c
s_cmp_eq_u32 s{S_WAVE}, 7
s_cbranch_scc1 L1_kv_chore""")
gen_loader(A, "kv", stamps)
A.label("L1_kv_chore")
gen_chore(A, stamps)
A.raw(".p2align 3")
A.label("L1_kv_c")
gen_compute(A, "kv", stamps)
A.label("L1_q")
A(f"""s_sub_u32 s4, s4, 9
s_mul_i32 s6, s6, 6
s_add_u32 s4, s4, s6
s_and_b32 s7, s4, 3
s_add_u32 s{S_RB}, s5, s7
s_lshr_b32 s{S_CG}, s4, 2
s_add_u32 s7, s7, s{S_CG}
s_and_b32 s7, s7, 3
s_lshl_b32 s7, s7, 1
s_add_u32 s{S_ROT}, s7, 1
s_cmp_lt_u32 s{S_WAVE}, 4
s_cbranch_scc1 L1_q_c""")
gen_loader(A, "q", stamps)
A.raw(".p2align 3")
A.label("L1_q_c")
gen_compute(A, "q", stamps)
A.raw(".p2align 3")
A.label("L1_ssm")
gen_ssm(A, stamps)
A.label("L1_exit")
A("s_endpgm")
A.raw(".globl l2_kernel\n.p2align 8\n.type l2_kernel,@function\nl2_kernel:")
gen_l2(A, stamps)
gen_wtab(A)
A.label("L_code_end")
body = A.text()
if NODMA:
    body = "\n".join(l for l in body.split("\n") if not l.strip().endswith(" lds")) + "\n"
desc = '.section .rodata,"a"\n' + kdesc("l1_kernel", 256) + kdesc("l2_kernel", 512, accum=256)
open(out, "w").write(HDR + body + desc)
```

```python
from asm import *
import sys
NOMFMA = '--nomfma' in sys.argv
NODMA = '--nodma' in sys.argv
LOOK = int([a for a in sys.argv if a.startswith('--look=')][0][7:]) if any(a.startswith('--look=') for a in sys.argv) else 3
LBAR = int([a for a in sys.argv if a.startswith('--lbar=')][0][7:]) if any(a.startswith('--lbar=') for a in sys.argv) else None

WS_PQ = 0
WS_KVQ = 0x240000
WS_G = 0x250000
WS_BT = 0x260000
WS_END = 0x4A0000
WS_STAMP = 0x500000
WS_SIZE = 0x600000

S_X, S_W, S_WO, S_LOGA, S_AIM, S_CRE, S_CIM = 16, 18, 20, 24, 26, 28, 30
S_LOGDT, S_DSKIP, S_GATE, S_OUT, S_DBG, S_WS = 32, 34, 36, 38, 40, 42
SX, SW, SWS, SDBG, SG = 44, 48, 52, 56, 60
S_WAVE, S_RB, S_CG = 64, 65, 66
S_T0, S_T1, S_T2, S_T3 = 67, 68, 69, 70
S_ROT = 71
S_L2E = 73
S_EPS = 74
S_ST, S_SLOT, S_CNT, S_SX, S_SW, S_GB = 75, 76, 77, 78, 79, 82
S_MASK = 84

KV_RD, KV_LX, KV_ZX, KV_LR, KV_ZR = 4096, 4608, 5120, 5376, 5440
LOG2E = 0x3FB8AA3B
EPS = 0x358637BD
XB = 16384

def stamp(A, idx, stamps):
    if not stamps: return
    A(f"""s_memtime s[80:81]
    s_waitcnt lgkmcnt(0)
    v_mov_b32 v255, s80
    buffer_store_dword v255, v254, {s(SWS,4)}, 0 offen offset:{4*idx}""")

def phi(A, regs, tmp):
    n = len(regs)
    for i in range(n):
        A(f"v_fma_f32 v{tmp[i]}, v{regs[i]}, s{S_L2E}, -s{S_L2E}")
    for i in range(n):
        A(f"v_exp_f32 v{tmp[i]}, v{tmp[i]} clamp")
    for i in range(n):
        A(f"v_max_f32 v{regs[i]}, v{regs[i]}, v{tmp[i]}")
    for i in range(n):
        A(f"v_add_f32 v{regs[i]}, s{S_EPS}, v{regs[i]}")

def params(typ):
    kv = typ == "kv"
    PITCH = 288 if kv else 384
    STG = XB + 64 * PITCH
    return kv, PITCH, STG

GATE_LDS = 4 * (XB + 64 * 288)

def gen_compute(A, typ, stamps=False):
    kv, PITCH, STG = params(typ)
    NT = 5 if kv else 6
    L = LOOK
    RING = 5 if kv else 6
    V_ACC = 0
    V_A = V_ACC + 4 * NT * 4
    V_B = V_A + 32
    V_AD = V_B + RING * 4
    V_AA = V_AD
    V_TR = V_AD + 2
    V_AAc = V_AD + 6
    V_TRc = V_AD + 8
    V_LANE = V_AD + 12
    V_T = V_AD + 13
    V_FREE = V_T + 4
    acc = lambda rt, t: V_ACC + (rt * NT + t) * 4
    areg = lambda ks, rt: V_A + (ks * 4 + rt) * 4
    A(f"v_mov_b32 v{V_LANE}, v0")
    A(f"""s_lshr_b32 s{S_T0}, s{S_WAVE}, 1
    s_and_b32 s{S_T1}, s{S_WAVE}, 1""")
    i_, q, rp, cc = V_T, V_T + 1, V_T + 2, V_T + 3
    A(f"""v_and_b32 v{i_}, 15, v{V_LANE}
    v_lshrrev_b32 v{q}, 4, v{V_LANE}
    v_bfe_u32 v{rp}, v{V_LANE}, 2, 2
    v_and_b32 v{cc}, 3, v{V_LANE}
    s_lshl_b32 s{S_T2}, s{S_T0}, 13
    v_lshrrev_b32 v{V_AAc}, 1, v{i_}
    v_xor_b32 v{V_AAc}, v{V_AAc}, v{q}
    v_lshlrev_b32 v{V_AAc}, 4, v{V_AAc}
    v_lshl_add_u32 v{V_AAc}, v{i_}, 7, v{V_AAc}
    v_add_u32 v{V_AAc}, s{S_T2}, v{V_AAc}
    v_xor_b32 v{V_AAc+1}, 64, v{V_AAc}""")
    if kv:
        A(f"""s_mul_i32 s{S_T2}, s{S_T1}, 72
        s_add_u32 s{S_T2}, s{S_T2}, {XB}
        v_lshl_add_u32 v{i_}, v{q}, 3, v{rp}
        v_and_b32 v{V_TRc+1}, 1, v{q}
        v_lshlrev_b32 v{V_TRc+1}, 2, v{V_TRc+1}
        v_xor_b32 v{V_TRc}, v{i_}, v{V_TRc+1}
        v_xor_b32 v{V_TRc+1}, 4, v{V_TRc}
        v_mul_u32_u24 v{V_TRc}, 288, v{V_TRc}
        v_mul_u32_u24 v{V_TRc+1}, 288, v{V_TRc+1}
        v_add_u32 v{V_TRc}, s{S_T2}, v{V_TRc}
        v_add_u32 v{V_TRc+1}, s{S_T2}, v{V_TRc+1}
        v_mul_u32_u24 v{rp}, 144, v{cc}
        v_add_u32 v{rp}, 32, v{rp}
        v_add_u32 v{V_TRc+2}, v{V_TRc}, v{rp}
        v_add_u32 v{V_TRc+3}, v{V_TRc+1}, v{rp}
        v_lshl_add_u32 v{V_TRc}, v{cc}, 3, v{V_TRc}
        v_lshl_add_u32 v{V_TRc+1}, v{cc}, 3, v{V_TRc+1}
        v_cmp_lt_u32 {s(S_MASK,2)}, 1, v{cc}
        v_lshlrev_b32 v{i_}, 3, v{i_}
        v_add_u32 v{rp}, 32, v{i_}
        v_cndmask_b32 v{V_TRc+2}, v{V_TRc+2}, v{i_}, {s(S_MASK,2)}
        v_cndmask_b32 v{V_TRc+3}, v{V_TRc+3}, v{rp}, {s(S_MASK,2)}""")
        coloff = [0, 40, 144, 184]
    else:
        A(f"""v_lshl_add_u32 v{i_}, v{q}, 3, v{rp}
        v_mul_u32_u24 v{i_}, 384, v{i_}
        v_lshl_add_u32 v{i_}, v{cc}, 3, v{i_}
        v_add_u32 v{i_}, {XB}, v{i_}
        v_lshrrev_b32 v{rp}, 1, v{rp}
        v_and_b32 v{q}, 1, v{q}
        v_lshl_add_u32 v{q}, v{q}, 1, v{rp}
        s_mul_i32 s{S_T2}, s{S_T1}, 6""")
        for j in range(4):
            A(f"""s_add_u32 s{S_T3}, s{S_T2}, {j}
            s_and_b32 s{S_CNT}, s{S_T3}, 3
            s_lshr_b32 s{S_T3}, s{S_T3}, 2
            s_lshl_b32 s{S_T3}, s{S_T3}, 7
            v_xor_b32 v{rp}, s{S_CNT}, v{q}
            v_lshl_add_u32 v{V_TRc+j}, v{rp}, 5, v{i_}
            v_add_u32 v{V_TRc+j}, s{S_T3}, v{V_TRc+j}""")
    V_QO = V_FREE
    if not kv:
        V_FREE += 12
        c_, P_, m_, t_ = V_T, V_T + 1, V_T + 2, V_T + 3
        for t in range(NT):
            o0, o1 = V_QO + 2 * t, V_QO + 2 * t + 1
            A(f"""s_mul_i32 s{S_T2}, s{S_CG}, 48
            s_mul_i32 s{S_T3}, s{S_T1}, 24
            s_add_u32 s{S_T2}, s{S_T2}, s{S_T3}
            s_add_u32 s{S_T2}, s{S_T2}, {4*t}
            v_lshrrev_b32 v{c_}, 4, v{V_LANE}
            v_add_u32 v{c_}, s{S_T2}, v{c_}
            v_mul_u32_u24 v{P_}, 7282, v{c_}
            v_lshrrev_b32 v{P_}, 16, v{P_}
            v_mul_u32_u24 v{m_}, 9, v{P_}
            v_sub_u32 v{m_}, v{c_}, v{m_}
            v_lshrrev_b32 v{c_}, 2, v{P_}
            v_mul_u32_u24 v{c_}, 9216, v{c_}
            v_and_b32 v{t_}, 15, v{V_LANE}
            v_lshl_add_u32 v{c_}, v{t_}, 4, v{c_}
            v_and_b32 v{P_}, 3, v{P_}
            v_lshlrev_b32 v{o0}, 8, v{m_}
            v_cmp_lt_u32 vcc, 4, v{m_}
            v_subrev_u32 v{t_}, {5*256 - 8}, v{o0}
            v_lshl_add_u32 v{o1}, v{P_}, 8, v{c_}
            v_cndmask_b32 v{o0}, v{o0}, v{t_}, vcc
            v_lshl_add_u32 v{o0}, v{P_}, 10, v{o0}
            v_cmp_eq_u32 vcc, 4, v{m_}
            v_add_u32 v{o0}, v{o0}, v{c_}
            v_add_u32 v{o1}, 8192, v{o1}
            v_cndmask_b32 v{o0}, v{o0}, v{o1}, vcc
            v_mov_b32 v{t_}, 4096
            v_cndmask_b32 v{t_}, v{t_}, 8, vcc
            v_add_u32 v{o1}, v{o0}, v{t_}""")
    for rt in range(4):
        for t in range(NT):
            one = (t < 2) if kv else True
            for r in range(4):
                A(f"v_mov_b32 v{acc(rt,t)+r}, {'1.0' if one else '0'}")
    A(f"""s_mov_b32 s{S_SLOT}, 0
    s_mov_b32 s{S_ST}, s{S_ROT}
    s_mov_b32 s{S_CNT}, 0""")
    stamp(A, 1, stamps)
    items = [(ks, t) for ks in range(2) for t in range(NT)]
    N = len(items)
    LB = NT - 1 if LBAR is None else LBAR
    assert N % RING == 0 and RING >= L + 1 and LB >= L and LB <= NT
    def rdB(ri):
        ks, t = items[ri % N]
        b = V_B + (ri % RING) * 4
        ko = ks * 32 * PITCH
        if kv:
            if t < 4:
                return [f"ds_read_b64_tr_b16 {v(b,2)}, v{V_TR} offset:{ko+coloff[t]}",
                        f"ds_read_b64_tr_b16 {v(b+2,2)}, v{V_TR+1} offset:{ko+coloff[t]}"]
            return [f"ds_read_b64_tr_b16 {v(b,2)}, v{V_TR+2} offset:{ko}",
                    f"ds_read_b64_tr_b16 {v(b+2,2)}, v{V_TR+3} offset:{ko}"]
        return [f"ds_read_b64_tr_b16 {v(b,2)}, v{V_TR+(t&3)} offset:{ko+(t>>2)*128}",
                f"ds_read_b64_tr_b16 {v(b+2,2)}, v{V_TR+(t&3)} offset:{ko+(t>>2)*128+4*384}"]
    rdA = lambda ks: [f"ds_read_b128 {v(areg(ks,rt),4)}, v{V_AA+ks} offset:{2048*rt}" for rt in range(4)]
    updA = [f"v_add_u32 v{V_AA}, s{S_SLOT}, v{V_AAc}", f"v_add_u32 v{V_AA+1}, s{S_SLOT}, v{V_AAc+1}"]
    if kv:
        updB = [f"v_add_u32 v{V_TR}, s{S_SLOT}, v{V_TRc}", f"v_add_u32 v{V_TR+1}, s{S_SLOT}, v{V_TRc+1}"]
        updB2 = [f"v_add_u32 v{V_TR+2}, v{V_T}, v{V_TRc+2}", f"v_add_u32 v{V_TR+3}, v{V_T}, v{V_TRc+3}"]
        pre = [f"s_lshl_b32 s{S_GB}, s{S_ST}, 8", f"s_add_u32 s{S_GB}, s{S_GB}, {GATE_LDS}",
               f"v_mov_b32 v{V_T}, s{S_SLOT}", f"v_mov_b32 v{V_T+1}, s{S_GB}",
               f"v_cndmask_b32 v{V_T}, v{V_T}, v{V_T+1}, {s(S_MASK,2)}",
               f"s_add_u32 s{S_ST}, s{S_ST}, 1", f"s_cmp_eq_u32 s{S_ST}, 9", f"s_cselect_b32 s{S_ST}, 0, s{S_ST}"]
    else:
        updB = [f"v_add_u32 v{V_TR}, s{S_SLOT}, v{V_TRc}", f"v_add_u32 v{V_TR+1}, s{S_SLOT}, v{V_TRc+1}"]
        updB2 = [f"v_add_u32 v{V_TR+2}, s{S_SLOT}, v{V_TRc+2}", f"v_add_u32 v{V_TR+3}, s{S_SLOT}, v{V_TRc+3}"]
        pre = []
    advs = [f"s_add_u32 s{S_SLOT}, s{S_SLOT}, {STG}", f"s_cmp_eq_u32 s{S_SLOT}, {4*STG}", f"s_cselect_b32 s{S_SLOT}, 0, s{S_SLOT}"]
    fill = {i: [] for i in range(N)}
    for idx in range(N):
        f = []
        if idx == N - LB:
            f += [("x", "s_barrier")] + [("x", u) for u in updA] + [("A0", r) for r in rdA(0)]
        if idx == N - L:
            f += [("x", u) for u in updB]
        f += [(f"B{(idx+L)%N}", r) for r in rdB(idx + L)]
        if idx == N - L:
            f += [("x", u) for u in updB2]
        if idx == N - L + 1 or (L == 1 and idx == N - 1):
            f += [("x", u) for u in advs]
        if idx == 0:
            f += [("A1", r) for r in rdA(1)]
        if idx == 1:
            f += [("x", u) for u in pre]
        fill[idx] = f
    ops = []
    for idx in range(N):
        ks, t = items[idx]
        ops.append(("W", idx))
        f = list(fill[idx])
        per = -(-len(f) // 4)
        for rt in range(4):
            ops.append(("M", idx, rt))
            for _ in range(per):
                if f: ops.append(("F",) + f.pop(0))
    def wait_for(pos, tags):
        best = None
        for tag in tags:
            c = 0; p = pos - 1
            while True:
                o = ops[p % len(ops)]
                if o[0] == "F" and o[2].startswith("ds_"):
                    if o[1] == tag: break
                    c += 1
                p -= 1
            best = c if best is None else min(best, c)
        return best
    A("\n".join(pre)) if pre else None
    first = True
    for idx in range(N - LB, N):
        for tag, ins in fill[idx]:
            if tag.startswith("B") and int(tag[1:]) >= L: continue
            A(ins)
            if ins == "s_barrier": stamp(A, 2, stamps)
    lp = A.newlabel("L_gl")
    A.raw(".p2align 3")
    A.label(lp)
    for pos, o in enumerate(ops):
        if o[0] == "W":
            idx = o[1]; ks, t = items[idx]
            tags = [f"B{idx}"] + ([f"A{ks}"] if t == 0 else [])
            A(f"s_waitcnt lgkmcnt({min(wait_for(pos, tags), 15)})")
        elif o[0] == "M":
            idx, rt = o[1], o[2]; ks, t = items[idx]
            b = V_B + (idx % RING) * 4
            d = v(acc(rt, t), 4)
            if NOMFMA: continue
            if kv: A(f"v_mfma_f32_16x16x32_bf16 {d}, {v(areg(ks,rt),4)}, {v(b,4)}, {d}")
            else: A(f"v_mfma_f32_16x16x32_bf16 {d}, {v(b,4)}, {v(areg(ks,rt),4)}, {d}")
        else:
            A(o[2])
    A(f"""s_add_u32 s{S_CNT}, s{S_CNT}, 1
    s_cmp_lt_u32 s{S_CNT}, 9
    s_cbranch_scc1 {lp}""")
    stamp(A, 5, stamps)
    TMP = V_FREE + (V_FREE & 1)
    A("s_waitcnt lgkmcnt(0)")
    if not kv:
        A(f"""s_lshl_b32 s{S_T2}, s{S_RB}, 2
        s_lshl_b32 s{S_T3}, s{S_T0}, 1
        s_add_u32 s{S_T2}, s{S_T2}, s{S_T3}
        s_mul_i32 s{S_T2}, s{S_T2}, 36864""")
        k = 0
        for rt in range(4):
            for t0 in range(0, NT, 2):
                r0 = acc(rt, t0)
                tm = TMP + (k % 4) * 12; k += 1
                phi(A, [r0 + i for i in range(8)], [tm + i for i in range(8)])
                for i in range(4):
                    A(f"v_cvt_pk_bf16_f32 v{tm+8+i}, v{r0+2*i}, v{r0+2*i+1}")
                A(f"buffer_store_dwordx2 {v(tm+8,2)}, v{V_QO+2*t0+(rt&1)}, {s(SWS,4)}, s{S_T2} offen")
                A(f"buffer_store_dwordx2 {v(tm+10,2)}, v{V_QO+2*t0+2+(rt&1)}, {s(SWS,4)}, s{S_T2} offen")
            if rt == 1: A(f"s_add_u32 s{S_T2}, s{S_T2}, 36864")
        stamp(A, 6, stamps)
        A("s_endpgm")
        return
    F = lambda t, m: TMP + (t * 2 + m) * 4
    T2 = TMP + 48
    D = T2 + 16
    assert D + 28 <= 253
    def pack(t, dst):
        for rt in range(4):
            r0 = acc(rt, t)
            o = F(dst, rt >> 1) + 2 * (rt & 1)
            A(f"v_cvt_pk_bf16_f32 v{o}, v{r0}, v{r0+1}")
            A(f"v_cvt_pk_bf16_f32 v{o+1}, v{r0+2}, v{r0+3}")
    col, qq = V_T, V_T + 1
    FLA, FLV = V_AA, V_AA + 1
    A(f"""s_lshl_b32 s{S_T2}, s{S_CG}, 2
    v_mov_b32 v{FLA}, s{S_T2}
    buffer_load_dword v{FLV}, v{FLA}, {s(SDBG,4)}, 0 offen sc0 sc1""")
    A(f"""v_and_b32 v{col}, 15, v{V_LANE}
    v_lshrrev_b32 v{qq}, 4, v{V_LANE}
    v_cmp_gt_u32 vcc, 4, v{col}
    v_mov_b32 v{V_T+2}, 0x3f803f80""")
    pack(2, 2); pack(3, 3); pack(4, 5)
    for i in range(8):
        A(f"v_cndmask_b32 v{F(5,0)+i}, v{F(5,0)+i}, v{V_T+2}, vcc")
    for rt in range(4):
        for i in range(4): A(f"v_mul_f32 v{V_A+4*rt+i}, s{S_L2E}, v{acc(rt,4)+i}")
    for i in range(16): A(f"v_exp_f32 v{V_A+i}, -v{V_A+i}")
    for i in range(16): A(f"v_add_f32 v{V_A+i}, 1.0, v{V_A+i}")
    for i in range(16): A(f"v_rcp_f32 v{V_A+i}, v{V_A+i}")
    for rt in range(4):
        for i in range(4): A(f"v_add_f32 v{acc(rt,4)+i}, 1.0, v{acc(rt,4)+i}")
    for t, dst in [(4, 4), (0, 0), (1, 1)]:
        regs = [acc(rt, t) + i for rt in range(4) for i in range(4)]
        phi(A, regs, [T2 + i for i in range(16)])
        pack(t, dst)
    MM = lambda p: D + 4 * p
    MR = lambda p: D + 8 + 4 * p
    RM = lambda p: D + 16 + 4 * p
    RR = D + 24
    A("s_nop 1")
    for m in range(2):
        c = lambda r: "0" if m == 0 else v(r, 4)
        A(f"v_mfma_f32_16x16x32_bf16 {v(RR,4)}, {v(F(4,m),4)}, {v(F(5,m),4)}, {c(RR)}")
        for p in range(2):
            A(f"v_mfma_f32_16x16x32_bf16 {v(RM(p),4)}, {v(F(4,m),4)}, {v(F(2+p,m),4)}, {c(RM(p))}")
            A(f"v_mfma_f32_16x16x32_bf16 {v(MM(p),4)}, {v(F(p,m),4)}, {v(F(2+p,m),4)}, {c(MM(p))}")
            A(f"v_mfma_f32_16x16x32_bf16 {v(MR(p),4)}, {v(F(p,m),4)}, {v(F(5,m),4)}, {c(MR(p))}")
    a_mm, a_mr, a_rm, a_rr = T2, T2 + 1, T2 + 4, T2 + 5
    A(f"""s_mul_i32 s{S_T2}, s{S_T0}, 6144
    s_lshl_b32 s{S_T3}, s{S_T1}, 11
    s_add_u32 s{S_T3}, s{S_T3}, s{S_T2}
    v_lshl_add_u32 v{a_mm}, v{V_LANE}, 4, s{S_T3}
    s_lshl_b32 s{S_T3}, s{S_T1}, 8
    s_add_u32 s{S_T3}, s{S_T3}, s{S_T2}
    v_lshl_add_u32 v{a_rm}, v{V_LANE}, 4, s{S_T3}
    v_and_b32 v{T2+2}, 1, v{col}
    v_lshl_add_u32 v{T2+2}, s{S_T1}, 1, v{T2+2}
    v_lshlrev_b32 v{a_rr}, 3, v{T2+2}
    v_add_u32 v{a_rr}, {KV_ZR}, v{a_rr}
    v_lshlrev_b32 v{a_mr}, 4, v{T2+2}
    v_lshl_add_u32 v{a_mr}, v{qq}, 6, v{a_mr}
    v_add_u32 v{a_mr}, {KV_ZX}, v{a_mr}
    v_lshlrev_b32 v{T2+2}, 1, v{col}
    v_add_u32 v{T2+2}, s{S_T1}, v{T2+2}
    v_lshlrev_b32 v{T2+6}, 3, v{T2+2}
    v_add_u32 v{T2+6}, {KV_LR - 64}, v{T2+6}
    v_lshlrev_b32 v{T2+2}, 4, v{T2+2}
    v_lshl_add_u32 v{T2+2}, v{qq}, 7, v{T2+2}
    v_add_u32 v{T2+2}, {KV_LX - 128}, v{T2+2}
    v_cndmask_b32 v{a_mr}, v{T2+2}, v{a_mr}, vcc
    v_cndmask_b32 v{a_rr}, v{T2+6}, v{a_rr}, vcc
    v_add_u32 v{a_mr}, s{S_T2}, v{a_mr}
    v_add_u32 v{a_rr}, s{S_T2}, v{a_rr}""")
    lab = A.newlabel("L_nog")
    A(f"""s_or_b32 s{S_T3}, s{S_CG}, s{S_T1}
    s_cmp_lg_u32 s{S_T3}, 0
    s_cbranch_scc1 {lab}
    s_lshl_b32 s{S_T3}, s{S_RB}, 9
    s_lshl_b32 s{S_CNT}, s{S_T0}, 8
    s_add_u32 s{S_T3}, s{S_T3}, s{S_CNT}
    s_add_u32 s{S_T3}, s{S_T3}, {WS_G}
    v_lshlrev_b32 v{T2+3}, 4, v{qq}
    s_mov_b32 exec_lo, 0x01000100
    s_mov_b32 exec_hi, 0x01000100""")
    for rt in range(4):
        A(f"buffer_store_dwordx4 {v(V_A+4*rt,4)}, v{T2+3}, {s(SWS,4)}, s{S_T3} offen offset:{64*rt}")
    A("s_mov_b64 exec, -1")
    A.label(lab)
    A("s_barrier")
    for p in range(2):
        A(f"ds_write_b128 v{a_mm}, {v(MM(p),4)} offset:{1024*p}")
    for p in range(2):
        m16 = (1 << p) | (3 << (4 + 2 * p))
        m32 = m16 | (m16 << 16)
        A(f"""s_mov_b32 exec_lo, {m32:#x}
        s_mov_b32 exec_hi, {m32:#x}
        ds_write_b128 v{a_mr}, {v(MR(p),4)}
        s_mov_b32 exec_lo, {m16:#x}
        s_mov_b32 exec_hi, 0
        ds_write_b64 v{a_rr}, {v(RR+2*p,2)}""")
    A("s_mov_b32 exec_lo, 0xffff")
    for p in range(2):
        A(f"ds_write_b64 v{a_rm}, {v(RM(p)+2*p,2)} offset:{KV_RD + 8*p}")
    A("s_mov_b64 exec, -1")
    A("s_waitcnt lgkmcnt(0)")
    A("s_barrier")
    ta = T2
    A(f"""s_lshl_b32 s{S_T0}, s{S_WAVE}, 8
    v_lshl_add_u32 v{ta}, v{V_LANE}, 2, s{S_T0}
    s_mul_i32 s{S_T1}, s{S_CG}, 6144
    s_add_u32 s{S_T1}, s{S_T1}, {WS_KVQ}
    s_add_u32 s{S_T2}, s{S_T1}, 4096""")
    R = V_ACC
    for i in range(6):
        for c in range(2):
            A(f"ds_read_b32 v{R+2*i+c}, v{ta} offset:{c*6144 + i*1024}")
    lpp = A.newlabel("L_poll"); le = A.newlabel("L_pend")
    A(f"s_mov_b32 s{S_CNT}, 0")
    A.label(lpp)
    A(f"""s_waitcnt vmcnt(0)
    v_readfirstlane_b32 s{S_T3}, v{FLV}
    s_cmp_lg_u32 s{S_T3}, 0
    s_cbranch_scc1 {le}
    s_add_u32 s{S_CNT}, s{S_CNT}, 1
    s_cmp_gt_u32 s{S_CNT}, 0x100000
    s_cbranch_scc1 {le}
    buffer_load_dword v{FLV}, v{FLA}, {s(SDBG,4)}, 0 offen sc0 sc1
    s_branch {lpp}""")
    A.label(le)
    for k in range(6):
        A(f"s_waitcnt lgkmcnt({10-2*k})")
        A(f"""v_add_f32 v{R+2*k}, v{R+2*k}, v{R+2*k+1}
        buffer_atomic_add_f32 v{R+2*k}, v{ta}, {s(SWS,4)}, s{S_T1 if k < 4 else S_T2} offen offset:{1024*(k%4)}""")
    stamp(A, 6, stamps)
    A("s_endpgm")

def x_voffsets(A, regs, s_first, tmp):
    t0, t1 = tmp
    for k, r in enumerate(regs):
        A(f"""s_add_u32 s{S_T3}, s{s_first}, {k}
        s_lshl_b32 s{S_T3}, s{S_T3}, 3
        v_lshrrev_b32 v{t0}, 3, v0
        v_add_u32 v{t0}, s{S_T3}, v{t0}
        v_bfe_u32 v{t1}, v{t0}, 1, 3
        v_and_b32 v{r}, 7, v0
        v_xor_b32 v{r}, v{r}, v{t1}
        v_mul_u32_u24 v{t0}, 1152, v{t0}
        v_lshl_add_u32 v{r}, v{r}, 4, v{t0}""")
        A(f"v_add_u32 v{r}, s{S_T2}, v{r}")
        if k % 4: A(f"v_subrev_u32 v{r}, {1024*(k%4)}, v{r}")

def loader_loop(A, typ, issue, NI, nbar_extra, hooks=None):
    kv, PITCH, STG = params(typ)
    hooks = hooks or {}
    issue(); issue()
    for n in range(9):
        if n in hooks: hooks[n][0]()
        allowed = NI if n + 1 <= 8 else 0
        A(f"s_waitcnt vmcnt({allowed})")
        A("s_barrier")
        if n in hooks and hooks[n][1]: hooks[n][1]()
        if n + 2 < 9: issue()
    for _ in range(nbar_extra): A("s_barrier")

def adv(A, STG):
    A(f"""s_add_u32 s{S_ST}, s{S_ST}, 1
    s_cmp_eq_u32 s{S_ST}, 9
    s_cselect_b32 s{S_ST}, 0, s{S_ST}
    s_add_u32 s{S_SLOT}, s{S_SLOT}, {STG}
    s_cmp_eq_u32 s{S_SLOT}, {4*STG}
    s_cselect_b32 s{S_SLOT}, 0, s{S_SLOT}""")

def gen_loader(A, typ, stamps=False):
    kv, PITCH, STG = params(typ)
    PPR = PITCH // 16
    NX = 3 if kv else 4
    S_J, S_XL, S_WL = 86, 87, 88
    A(f"s_sub_u32 s{S_J}, s{S_WAVE}, 4")
    A(f"s_mul_i32 s{S_T2}, s{S_RB}, {128*1152}")
    A(f"s_mul_i32 s{S_T0}, s{S_J}, {NX}")
    xr = [10 + k for k in range(NX)]
    x_voffsets(A, xr, S_T0, (4, 5))
    A(f"s_lshl_b32 s{S_XL}, s{S_T0}, 10")
    A(f"s_mul_i32 s{S_T1}, s{S_J}, 384")
    A(f"s_mul_i32 s{S_WL}, s{S_J}, 6144")
    A(f"s_add_u32 s{S_WL}, s{S_WL}, {XB}")
    if kv:
        A(f"s_mul_i32 s{S_T3}, s{S_CG}, 144")
        A(f"s_add_u32 s{S_T3}, s{S_T3}, 1152")
    else:
        A(f"s_mul_i32 s{S_T3}, s{S_CG}, 384")
    wr = [20 + i for i in range(6)]
    for i in range(6):
        p, sl, pc, o = 4, 5, 6, wr[i]
        A(f"v_add_u32 v{p}, s{S_T1}, v0")
        if i: A(f"v_add_u32 v{p}, {64*i}, v{p}")
        A(f"v_mul_u32_u24 v{sl}, {3641 if kv else 2731}, v{p}")
        A(f"v_lshrrev_b32 v{sl}, 16, v{sl}")
        A(f"v_mul_u32_u24 v{pc}, {PPR}, v{sl}")
        A(f"v_sub_u32 v{pc}, v{p}, v{pc}")
        if kv:
            A(f"""v_lshrrev_b32 v7, 1, v{sl}
            v_and_b32 v7, 4, v7
            v_xor_b32 v{sl}, v{sl}, v7
            v_mul_u32_u24 v{o}, 3456, v{sl}
            v_lshl_add_u32 v{o}, v{pc}, 4, v{o}
            v_cmp_lt_u32 vcc, 8, v{pc}
            v_add_u32 v7, {1152-144}, v{o}
            s_nop 0
            v_cndmask_b32 v{o}, v{o}, v7, vcc""")
        else:
            A(f"""v_bfe_u32 v7, v{sl}, 1, 1
            v_bfe_u32 v8, v{sl}, 3, 1
            v_lshl_add_u32 v7, v8, 1, v7
            v_lshlrev_b32 v7, 1, v7
            v_xor_b32 v{pc}, v{pc}, v7
            v_mul_u32_u24 v{o}, 3456, v{sl}
            v_lshl_add_u32 v{o}, v{pc}, 4, v{o}""")
        A(f"v_add_u32 v{o}, s{S_T3}, v{o}")
        if i % 4: A(f"v_subrev_u32 v{o}, {1024*(i%4)}, v{o}")
    A(f"s_mov_b32 s{S_SLOT}, 0\ns_mov_b32 s{S_ST}, s{S_ROT}")
    sub = A.newlabel("L_iss")
    def issue():
        A(f"""s_lshl_b32 s{S_SX}, s{S_ST}, 7
        s_mul_i32 s{S_SW}, s{S_ST}, 221184
        s_add_u32 m0, s{S_SLOT}, s{S_XL}
        s_add_u32 s{S_T0}, s{S_SLOT}, s{S_WL}""")
        for k in range(NX):
            A(f"buffer_load_dwordx4 v{xr[k]}, {s(SX,4)}, s{S_SX} offen offset:{1024*k} lds")
        A(f"s_mov_b32 m0, s{S_T0}\ns_add_u32 s{S_T0}, s{S_T0}, 4096")
        for i in range(4):
            A(f"buffer_load_dwordx4 v{wr[i]}, {s(SW,4)}, s{S_SW} offen offset:{1024*i} lds")
        A(f"s_mov_b32 m0, s{S_T0}\ns_nop 0")
        for i in range(4, 6):
            A(f"buffer_load_dwordx4 v{wr[i]}, {s(SW,4)}, s{S_SW} offen offset:{1024*(i-4)} lds")
        adv(A, STG)
    NI = NX + 6
    if stamps:
        A("s_memtime s[90:91]\ns_waitcnt lgkmcnt(0)\nv_mov_b32 v200, s90")
    issue()
    if stamps:
        A("s_memtime s[90:91]\ns_waitcnt lgkmcnt(0)\nv_mov_b32 v201, s90")
        for n in range(8):
            issue()
            A(f"s_waitcnt vmcnt({NI})\ns_barrier")
            A(f"s_memtime s[90:91]\ns_waitcnt lgkmcnt(0)\nv_mov_b32 v{202+n}, s90")
        A("s_waitcnt vmcnt(0)\ns_barrier")
        A(f"s_memtime s[90:91]\ns_waitcnt lgkmcnt(0)\nv_mov_b32 v210, s90")
        for n in range(11):
            A(f"buffer_store_dword v{200+n}, v254, {s(SWS,4)}, 0 offen offset:{4+4*n}")
        A("s_endpgm")
        return
    A(f"s_mov_b32 s{S_CNT}, 0")
    lp = A.newlabel("L_ld")
    A.label(lp)
    issue()
    A(f"""s_waitcnt vmcnt({NI})
    s_barrier
    s_add_u32 s{S_CNT}, s{S_CNT}, 1
    s_cmp_lt_u32 s{S_CNT}, 8
    s_cbranch_scc1 {lp}
    s_waitcnt vmcnt(0)
    s_barrier
    s_endpgm""")

def gen_chore(A, stamps=False):
    kv, PITCH, STG = params("kv")
    NX = 7
    A(f"s_mul_i32 s{S_T2}, s{S_RB}, {128*1152}")
    A(f"s_mov_b32 s{S_T0}, 9")
    xr = [10 + k for k in range(NX)]
    x_voffsets(A, xr, S_T0, (4, 5))
    A(f"s_mov_b32 s{S_SLOT}, 0\ns_mov_b32 s{S_ST}, s{S_ROT}")
    def issue():
        A(f"""s_lshl_b32 s{S_SX}, s{S_ST}, 7
        s_add_u32 m0, s{S_SLOT}, 9216
        s_add_u32 s{S_T0}, s{S_SLOT}, {9216+4096}""")
        for k in range(4):
            A(f"buffer_load_dwordx4 v{xr[k]}, {s(SX,4)}, s{S_SX} offen offset:{1024*k} lds")
        A(f"s_mov_b32 m0, s{S_T0}\ns_nop 0")
        for k in range(4, 7):
            A(f"buffer_load_dwordx4 v{xr[k]}, {s(SX,4)}, s{S_SX} offen offset:{1024*(k-4)} lds")
        adv(A, STG)
    A(f"v_lshlrev_b32 v1, 1, v0")
    for i in range(9):
        A(f"buffer_load_ushort v{30+i}, v1, {s(SG,4)}, 0 offen offset:{128*i}")
    issue()
    A(f"""v_lshrrev_b32 v4, 5, v0
    v_mul_u32_u24 v4, 9216, v4
    v_and_b32 v5, 31, v0
    v_lshl_add_u32 v4, v5, 3, v4
    v_add_u32 v4, {GATE_LDS}, v4
    v_mov_b32 v40, 0
    v_mov_b32 v41, 0
    v_mov_b32 v42, 0
    v_mov_b32 v43, 0
    v_lshlrev_b32 v1, 4, v0
    s_lshl_b32 s{S_T0}, s{S_CG}, 2
    v_mov_b32 v3, s{S_T0}
    v_mov_b32 v2, 1
    s_mul_i32 s{S_T1}, s{S_CG}, 6144
    s_add_u32 s{S_T1}, s{S_T1}, {WS_KVQ}
    s_add_u32 s{S_T2}, s{S_T1}, 4096
    s_waitcnt vmcnt({NX})""")
    for i in range(9):
        A(f"ds_write_b16 v4, v{30+i} offset:{256*i}")
    l1 = A.newlabel("L_nz")
    A(f"""s_cmp_lg_u32 s{S_RB}, 0
    s_cbranch_scc1 {l1}""")
    for i in range(6):
        A(f"buffer_store_dwordx4 v[40:43], v1, {s(SWS,4)}, s{S_T1 if i < 4 else S_T2} offen offset:{1024*(i%4)} sc0 sc1")
    A.label(l1)
    A(f"s_mov_b32 s{S_CNT}, 0")
    A("s_waitcnt lgkmcnt(0)")
    lp = A.newlabel("L_ch")
    A.label(lp)
    issue()
    A(f"""s_waitcnt vmcnt({NX})
    s_barrier""")
    l2 = A.newlabel("L_nf")
    A(f"""s_or_b32 s{S_T0}, s{S_RB}, s{S_CNT}
    s_cmp_lg_u32 s{S_T0}, 0
    s_cbranch_scc1 {l2}
    s_mov_b64 exec, 1
    buffer_store_dword v2, v3, {s(SDBG,4)}, 0 offen sc0 sc1
    s_mov_b64 exec, -1""")
    A.label(l2)
    A(f"""s_add_u32 s{S_CNT}, s{S_CNT}, 1
    s_cmp_lt_u32 s{S_CNT}, 8
    s_cbranch_scc1 {lp}
    s_waitcnt vmcnt(0)
    s_barrier
    s_endpgm""")
```

```python
from asm import *
from auto import Auto
from l1gemm import WS_PQ, WS_KVQ, WS_G, WS_BT, WS_STAMP, WS_SIZE, EPS
from l1gemm import KV_RD, KV_LX, KV_ZX, KV_LR, KV_ZR

import sys
def opt(name, default):
    for a_ in sys.argv:
        if a_.startswith(f"--{name}="): return a_.split("=", 1)[1]
    return default
GAP = int(opt("l2gap", "12"))

class Sprinkle:
    def __init__(self, A): self.A = A; self.q = []; self.c = 0; self.hold = False
    def __getattr__(self, n): return getattr(self.A, n)
    def push(self, grp, cost=1): self.q.append((grp, cost))
    def pop(self):
        grp, cost = self.q.pop(0)
        for ins, tag in grp: self.A.one(ins, tag=tag)
        self.c = -(cost - 1) * GAP
    def drain(self, tag=None):
        while self.q and (tag is None or any(t == tag for g, _ in self.q for _, t in g)): self.pop()
    def __call__(self, text):
        for ln in text.strip("\n").split("\n"):
            ln = ln.strip()
            if not ln: continue
            if ln.startswith("s_mov_b32 exec"): self.hold = True
            self.A.one(ln)
            if ln == "s_mov_b64 exec, -1": self.hold = False
            self.c += 2 if ln.startswith("v_mfma") else 1
            if self.q and self.c >= GAP and not self.hold: self.pop()
    def wait_vm_tag(self, tag):
        self.drain(tag); self.A.wait_vm_tag(tag)

def gen_l2(A0, stamps=False):
    A = Sprinkle(Auto(A0))
    SWO, SOUT, SWS = 12, 16, 20
    S_G, S_RB, S_CB, S_X = 24, 25, 26, 31
    T0, T1, T2, T3 = 27, 28, 29, 30
    S_KV = 32
    S_PQ = 36
    S_GO = 40
    S_WB = 44
    S_PR = 34
    S_OWN = 45
    S_BT = 3
    M = 46
    REG = 21504
    ws = s(SWS, 4)
    def st(idx):
        if not stamps: return
        A.one("s_waitcnt lgkmcnt(0)")
        A0(f"""s_memtime s[80:81]
        s_waitcnt lgkmcnt(0)
        v_mov_b32 v255, s80
        buffer_store_dword v255, v254, {ws}, 0 offen offset:{4*idx}""")
        A.A.t += 4; A.A.vm.append(set())
    A0(f"""s_cmp_ge_u32 s2, 256
    s_cbranch_scc1 L2_exit
    s_load_dwordx2 s[4:5], s[0:1], 16
    s_load_dwordx2 s[6:7], s[0:1], 88
    s_load_dwordx2 s[8:9], s[0:1], 104""")
    A(f"""v_lshrrev_b32 v1, 6, v0
    v_and_b32 v0, 63, v0
    v_readfirstlane_b32 s{S_G}, v1
    s_and_b32 s3, s2, 7
    s_lshr_b32 s10, s2, 3
    s_and_b32 s{T0}, s3, 3
    s_lshl_b32 s{T0}, s{T0}, 3
    s_and_b32 s{T1}, s10, 7
    s_add_u32 s{S_RB}, s{T0}, s{T1}
    s_lshr_b32 s{T0}, s3, 2
    s_lshl_b32 s{T0}, s{T0}, 2
    s_lshr_b32 s{T1}, s10, 3
    s_add_u32 s{S_CB}, s{T0}, s{T1}
    s_xor_b32 s{S_X}, s{S_G}, s{T1}""")
    I16, Q = 1, 2
    V16, VRD, VLX, VLR, VZX, VZR, VG = 3, 4, 5, 6, 7, 8, 9
    VW0, VWL, VWT0, VWT2 = 10, 11, 12, 13
    VT0, VT1, VT2 = 14, 15, 16
    VB0, VB1 = 17, 18
    DIAG = 20
    X0, X1, X2, X3 = 22, 23, 24, 25
    GV = 26
    EPSV = 30
    A1 = 34
    A1m = lambda hl: A1 + 4 * hl
    A1l = lambda k: A1 + 32 + 4 * k
    A1d = lambda T, k: A1 + 52 + 12 * T + 4 * k
    PE = lambda j, p: 110 + 20 * j + 4 * p
    TR = lambda b: 190 + 28 * b
    RRV = 246
    KT = 130
    KM = lambda hl: KT + 4 * hl
    RD, LX, ZX0, ZX1 = KT + 32, KT + 36, KT + 40, KT + 44
    LR, ZR0, ZR1 = KT + 48, KT + 50, KT + 52
    ACC3 = A1
    WOF = lambda p, t: 4 * (p * 5 + t)
    PQA = lambda j: 100 + 26 * j
    ACCA = lambda j, t: 196 + 20 * j + 4 * t
    pq = lambda j, off, n: a(PQA(j) + off, n)
    acc = lambda j, t: (v(ACC3 + 4 * t, 4) if j == 3 else a(ACCA(j, t), 4))
    A(f"""v_and_b32 v{I16}, 15, v0
    v_lshrrev_b32 v{Q}, 4, v0
    v_lshlrev_b32 v{V16}, 4, v0
    v_lshrrev_b32 v{X0}, 5, v0
    v_mul_u32_u24 v{X0}, {6144-512}, v{X0}
    v_add_u32 v{VRD}, v{X0}, v{V16}
    v_bfe_u32 v{X0}, v0, 1, 1
    v_mul_u32_u24 v{X0}, 6144, v{X0}
    v_and_b32 v{X1}, 1, v0
    v_lshrrev_b32 v{X2}, 2, v0
    v_lshl_add_u32 v{X2}, v{X2}, 1, v{X1}
    v_lshl_add_u32 v{VLX}, v{X2}, 4, v{X0}
    v_and_b32 v{X2}, 7, v{X2}
    v_lshl_add_u32 v{VLR}, v{X2}, 3, v{X0}
    v_and_b32 v{X0}, 3, v0
    v_lshlrev_b32 v{VZR}, 3, v{X0}
    v_lshlrev_b32 v{VZX}, 4, v{X0}
    v_lshl_add_u32 v{VZX}, v{Q}, 6, v{VZX}
    v_lshlrev_b32 v{VG}, 2, v{I16}
    s_mul_i32 s{S_KV}, s{S_G}, 12288
    s_add_u32 s{S_KV}, s{S_KV}, {WS_KVQ + 4096}
    s_add_u32 s{S_KV+1}, s{S_KV}, 6144
    s_sub_u32 s{T2}, s{S_KV}, 4096
    s_sub_u32 s{T3}, s{S_KV+1}, 4096
    s_mul_i32 s11, s{S_G}, 9216""")
    for j in range(4):
        A(f"""s_xor_b32 s{T0}, s{S_X}, {j}
        s_lshl_b32 s{T1}, s{S_RB}, 2
        s_add_u32 s{T0}, s{T0}, s{T1}
        s_lshl_b32 s{S_GO+j}, s{T0}, 6
        s_add_u32 s{S_GO+j}, s{S_GO+j}, {WS_G}
        s_lshr_b32 s{T1}, s{T0}, 1
        s_mul_i32 s{T1}, s{T1}, 36864
        s_add_u32 s{T1}, s{T1}, s11""")
        if j % 2 == 0: A(f"s_add_u32 s{S_PR+j//2}, s{T1}, 8192")
        if j == 3: A(f"s_mov_b32 s{S_OWN}, s{T0}")
        A(f"""s_and_b32 s{T0}, s{T0}, 1
        s_lshl_b32 s{T0}, s{T0}, 12
        s_add_u32 s{S_PQ+j}, s{T1}, s{T0}""")
    A0("s_waitcnt lgkmcnt(0)")
    srd(A0, SWS, 8, 9, WS_SIZE)
    if stamps:
        A(f"""s_lshl_b32 s{T0}, s2, 3
        s_add_u32 s{T0}, s{T0}, s{S_G}
        s_lshl_b32 s{T0}, s{T0}, 6
        s_add_u32 s{T0}, s{T0}, {WS_STAMP + 0x40000}
        v_mov_b32 v254, s{T0}""")
        st(0)
    A(f"""buffer_load_dwordx4 {v(ZX0,4)}, v{VZX}, {ws}, s{S_KV} offen offset:{KV_ZX-4096}
    buffer_load_dwordx4 {v(ZX1,4)}, v{VZX}, {ws}, s{S_KV+1} offen offset:{KV_ZX-4096}
    buffer_load_dwordx2 {v(ZR0,2)}, v{VZR}, {ws}, s{S_KV} offen offset:{KV_ZR-4096}
    buffer_load_dwordx2 {v(ZR1,2)}, v{VZR}, {ws}, s{S_KV+1} offen offset:{KV_ZR-4096}
    buffer_load_dwordx4 {v(LX,4)}, v{VLX}, {ws}, s{S_KV} offen offset:{KV_LX-4096}
    buffer_load_dwordx2 {v(LR,2)}, v{VLR}, {ws}, s{S_KV} offen offset:{KV_LR-4096}
    buffer_load_dwordx4 {v(RD,4)}, v{VRD}, {ws}, s{S_KV} offen offset:{KV_RD-4096}""")
    for hl in range(8):
        A(f"buffer_load_dwordx4 {v(KM(hl),4)}, v{V16}, {ws}, s{T2 if hl < 4 else T3} offen offset:{1024*(hl&3)}")
    A(f"buffer_load_dwordx4 {v(RRV,4)}, v{V16}, {ws}, s{S_PR} offen")
    def load_pq(j, defer=True):
        for p in range(4):
            ins = f"buffer_load_dwordx4 {pq(j,6*p+2,4)}, v{V16}, {ws}, s{S_PQ+j} offen offset:{1024*p}"
            if defer: A.push([(ins, f"pq{j}")])
            else: A.one(ins)
    load_pq(0, False)
    A.push([(f"buffer_load_dword v{GV+j}, v{VG}, {ws}, s{S_GO+j} offen", "pq1") for j in range(4)], 2)
    load_pq(1)
    A.push([(f"buffer_load_dwordx4 {v(RRV+4,4)}, v{V16}, {ws}, s{S_PR+1} offen", "pq2")])
    load_pq(2); load_pq(3)
    srd(A0, SWO, 4, 5, 576 * 1152)
    srd(A0, SOUT, 6, 7, 2048 * 1152)
    A(f"""v_lshrrev_b32 v{X0}, 3, v0
    v_bfe_u32 v{X1}, v0, 4, 1
    v_lshlrev_b32 v{X1}, 2, v{X1}
    v_and_b32 v{X2}, 7, v0
    v_xor_b32 v{X2}, v{X2}, v{X1}
    v_lshlrev_b32 v{X2}, 4, v{X2}
    v_mul_u32_u24 v{VW0}, 1152, v{X0}
    v_add_u32 v{VW0}, v{VW0}, v{X2}
    v_and_b32 v{X0}, 3, v{X0}
    v_mul_u32_u24 v{X0}, 36, v{X0}
    v_lshrrev_b32 v{X1}, 5, v0
    v_add3_u32 v{X0}, v{X0}, v{X1}, 16
    v_mul_u32_u24 v{VWL}, 1152, v{X0}
    v_add_u32 v{VWL}, v{VWL}, v{X2}
    v_mul_u32_u24 v{X0}, 36, v{X1}
    v_bfe_u32 v{X1}, v0, 4, 1
    v_mul_u32_u24 v{X1}, 20, v{X1}
    v_add3_u32 v{X0}, v{X0}, v{X1}, v{I16}
    v_mul_u32_u24 v{VWT0}, 1152, v{X0}
    v_and_b32 v{X0}, 3, v0
    v_mul_u32_u24 v{X0}, 36, v{X0}
    v_bfe_u32 v{X1}, v0, 2, 2
    v_add3_u32 v{X0}, v{X0}, v{X1}, 16
    v_mul_u32_u24 v{VWT2}, 1152, v{X0}
    s_mul_i32 s{S_WB}, s{S_G}, {REG}
    s_mul_i32 s11, s{S_G}, {144*1152}
    s_mul_i32 s{T1}, s{S_CB}, 144
    s_add_u32 s11, s11, s{T1}""")
    wo = s(SWO, 4)
    TW = 10
    def wo_main(i, tag):
        if i < 16: rc = 36 * (i >> 2) + 20 * ((i >> 1) & 1) + 8 * (i & 1); vo = VW0
        else: rc = 2 * (i & 1); vo = VWL
        A.push([(f"s_add_u32 m0, s{S_WB}, {1024*i}", None), (f"s_add_u32 s{TW}, s11, {rc*1152}", None),
                (f"buffer_load_dwordx4 v{vo}, {wo}, s{TW} offen lds", tag)])
    def wo_tail(k, tag):
        g = [(f"s_add_u32 m0, s{S_WB}, {18432 + 1024*k}", None), (f"s_add_u32 s{TW}, s11, {128 + (72*1152 if k == 1 else 0)}", None)]
        if k == 2: g.append(("s_mov_b64 exec, 0xffff", None))
        g.append((f"buffer_load_dwordx4 v{VWT2 if k == 2 else VWT0}, {wo}, s{TW} offen lds", tag))
        if k == 2: g.append(("s_mov_b64 exec, -1", None))
        A.push(g, 1 if k == 2 else 4)
    def wo_group(p):
        if p in (0, 2): wo_tail(p // 2, f"wo{p}")
        if p == 4: wo_tail(2, "wo4")
        for i in (range(4 * p, 4 * p + 4) if p < 4 else (16, 17)): wo_main(i, f"wo{p}")
    for p in range(5): wo_group(p)
    st(1)
    def mask64(f):
        m = 0
        for l in range(64):
            if f(l & 15, l >> 4): m |= 1 << l
        return m
    masks = {}
    def getmask(m):
        if m not in masks:
            r = M + 2 * len(masks); masks[m] = r
            assert r + 1 < 80
            A(f"s_mov_b32 s{r}, {m & 0xffffffff:#x}\ns_mov_b32 s{r+1}, {m >> 32:#x}")
        return s(masks[m], 2)
    def setexec(m):
        A(f"s_mov_b32 exec_lo, {m & 0xffffffff:#x}\ns_mov_b32 exec_hi, {m >> 32:#x}")
    for r in range(76): A(f"v_mov_b32 v{A1+r}, 0")
    for r in range(4): A(f"v_mov_b32 v{EPSV+r}, {EPS:#x}")
    A(f"""v_bfe_u32 v{X0}, v0, 2, 2
    v_lshl_add_u32 v{X0}, v{Q}, 2, v{X0}
    v_bfe_u32 v{X1}, v0, 3, 1
    v_lshlrev_b32 v{X1}, 2, v{X1}
    v_and_b32 v{X2}, 3, v0
    v_xor_b32 v{X1}, v{X1}, v{X2}
    v_lshlrev_b32 v{X1}, 4, v{X1}
    v_lshl_add_u32 v{VT0}, v{X0}, 7, v{X1}
    v_add_u32 v{VT0}, s{S_WB}, v{VT0}
    v_xor_b32 v{VT1}, 64, v{VT0}
    v_and_b32 v{X1}, 1, v0
    v_lshlrev_b32 v{X1}, 3, v{X1}
    v_lshl_add_u32 v{VT2}, v{X0}, 4, v{X1}
    v_add_u32 v{VT2}, s{S_WB}, v{VT2}
    v_bfe_u32 v{X0}, v0, 2, 2
    v_lshl_add_u32 v{X1}, v{X0}, 3, v{X2}
    v_lshlrev_b32 v{X1}, 12, v{X1}
    v_lshl_add_u32 v{VB0}, v{Q}, 8, v{X1}
    v_and_b32 v{X0}, 1, v{X0}
    v_lshl_add_u32 v{X1}, v{X0}, 2, v{X2}
    v_lshlrev_b32 v{X1}, 12, v{X1}
    v_lshl_add_u32 v{VB1}, v{Q}, 8, v{X1}
    s_mul_i32 s{T0}, s{S_CB}, {72*4096}
    s_and_b32 s{T2}, s{S_OWN}, 15
    s_lshl_b32 s{T2}, s{T2}, 4
    s_add_u32 s{T0}, s{T0}, s{T2}
    s_lshr_b32 s{T2}, s{S_OWN}, 5
    s_lshl_b32 s{T2}, s{T2}, 10
    s_add_u32 s{T0}, s{T0}, s{T2}
    s_bfe_u32 s{T2}, s{S_OWN}, 0x10004
    s_lshl_b32 s{T2}, s{T2}, 3
    s_add_u32 s{T0}, s{T0}, s{T2}
    s_add_u32 s{S_BT}, s{T0}, {WS_BT}
""")
    A.one(f"s_bitcmp1_b32 s{S_X}, 0"); A.one("s_cselect_b64 s[78:79], -1, 0")
    MSW = "s[78:79]"
    for T in range(2):
        ZX, ZR = (ZX0, ZR0) if T == 0 else (ZX1, ZR1)
        A(f"""v_cvt_pk_bf16_f32 v{ZX}, v{ZX}, v{ZX+1}
        v_cvt_pk_bf16_f32 v{ZX+1}, v{ZX+2}, v{ZX+3}
        v_cvt_pk_bf16_f32 v{ZR}, v{ZR}, v{ZR+1}""")
        for ro, (k, h) in enumerate([(0, 1), (1, 0), (2, 0), (2, 1)]):
            m = getmask(mask64(lambda i, q: (i & 3) == ro))
            for x in range(2):
                A(f"v_cndmask_b32 v{A1d(T,k)+2*h+x}, 0, v{ZX+x}, {m}")
        for par in range(2):
            setexec(mask64(lambda i, q: (i & 1) == par and q == 2 * T + ((i & 3) >> 1)))
            A(f"v_mov_b32 v{A1d(T,0)+par}, v{ZR}")
        A("s_mov_b64 exec, -1")
    A(f"""v_cvt_pk_bf16_f32 v{LX}, v{LX}, v{LX+1}
    v_cvt_pk_bf16_f32 v{LX+1}, v{LX+2}, v{LX+3}
    v_cvt_pk_bf16_f32 v{LR}, v{LR}, v{LR+1}
    v_cvt_pk_bf16_f32 v{RD}, v{RD}, v{RD+1}
    v_cvt_pk_bf16_f32 v{RD+1}, v{RD+2}, v{RD+3}""")
    for p in range(4):
        for par in range(2):
            setexec(mask64(lambda i, q: (i & 3) == p and (i >> 3) == par))
            A(f"v_mov_b32 v{A1l(p)+2*par}, v{LX}\nv_mov_b32 v{A1l(p)+2*par+1}, v{LX+1}")
    for par in range(2):
        setexec(mask64(lambda i, q: q == (i & 3) and (i >> 3) == par))
        A(f"v_mov_b32 v{A1l(4)+par}, v{LR}")
    for p in range(4):
        setexec(0xffff << (16 * p))
        A(f"v_mov_b32 v{A1m(2*p)}, v{RD}\nv_mov_b32 v{A1m(2*p+1)+3}, v{RD+1}")
    A("s_mov_b64 exec, -1")
    for hl in range(8):
        mh = 2 if hl % 2 == 0 else 0
        A(f"""v_cvt_pk_bf16_f32 v{A1m(hl)+mh}, v{KM(hl)}, v{KM(hl)+1}
        v_cvt_pk_bf16_f32 v{A1m(hl)+mh+1}, v{KM(hl)+2}, v{KM(hl)+3}""")
    for t in range(5):
        if t < 4: off = (32 * (t >> 1) + 4 * (t & 1)) * 4096; vo = VB0
        else: off = 64 * 4096; vo = VB1
        A.push([(f"s_add_u32 s{TW}, s{S_BT}, {off}", None),
                (f"buffer_load_dwordx2 {a(WOF(4,t)+2,2)}, v{vo}, {ws}, s{TW} offen", "bt")], 4)
    mhi = getmask(mask64(lambda i, q: q >= 2))
    def rcopy(j):
        b = RRV + 4 * (j >> 1)
        lo, hi = (b, b + 2) if j % 2 == 0 else (b + 2, b)
        o = [f"v_cndmask_b32 v{X0+x}, v{lo+x}, v{hi+x}, {MSW}" for x in range(2)]
        for c in range(5):
            for x in range(2): o.append(f"v_accvgpr_write_b32 a{PQA(j)+6*c+x}, v{X0+x}")
        return o
    st(2)
    NUM = lambda j, hl: PE(j, hl >> 1) if hl % 2 == 0 else TR(j & 1) + 4 * (hl >> 1)
    NL = lambda j: PE(j, 4)
    DEN = lambda j: TR(j & 1) + 16
    SEL = lambda j: TR(j & 1) + 24
    def S1(j):
        o = []
        for T in range(2):
            for k in range(3):
                c = v(EPSV, 4) if k == 0 else v(DEN(j) + 4 * T, 4)
                o.append(f"v_mfma_f32_16x16x32_bf16 {v(DEN(j)+4*T,4)}, {v(A1d(T,k),4)}, {pq(j,12*T+4*k,4)}, {c}")
        for hl in range(8):
            p, par = hl >> 1, hl & 1
            o.append(f"v_mfma_f32_16x16x32_bf16 {v(NUM(j,hl),4)}, {v(A1m(hl),4)}, {pq(j,6*p+4*par,4)}, 0")
        o.append(f"v_mfma_f32_16x16x32_bf16 {v(NL(j),4)}, {v(A1l(4),4)}, {pq(j,0,4)}, 0")
        for p in range(4):
            o.append(f"v_mfma_f32_16x16x32_bf16 {v(NL(j),4)}, {v(A1l(p),4)}, {pq(j,6*p+2,4)}, {v(NL(j),4)}")
        return o
    def V1(j):
        o = []
        D = DEN(j)
        for h in range(8): o.append(f"v_rcp_f32 v{D+h}, v{D+h}")
        for h in range(8): o.append(f"v_mul_f32 v{D+h}, v{GV+j}, v{D+h}")
        for p in range(4): o.append(f"v_cndmask_b32 v{SEL(j)+p}, v{D+2*p}, v{D+2*p+1}, {mhi}")
        for hl in range(8):
            p, par = hl >> 1, hl & 1
            n = NUM(j, hl)
            for r in range(4): o.append(f"v_mul_f32 v{n+r}, v{D+hl}, v{n+r}")
            o.append(f"v_cvt_pk_bf16_f32 v{PE(j,p)+2*par}, v{n}, v{n+1}")
            o.append(f"v_cvt_pk_bf16_f32 v{PE(j,p)+2*par+1}, v{n+2}, v{n+3}")
        n = NL(j)
        for r in range(4): o.append(f"v_mul_f32 v{n+r}, v{SEL(j)+r}, v{n+r}")
        o.append(f"v_cvt_pk_bf16_f32 v{n}, v{n}, v{n+1}")
        o.append(f"v_cvt_pk_bf16_f32 v{n+1}, v{n+2}, v{n+3}")
        if j == 3:
            for x in range(2): o.append(f"v_mov_b32 v{n+2+x}, v{DIAG+x}")
        return o
    def S2(js, p):
        o = []
        for j in js:
            for t in range(5):
                c = "0" if p == 0 else acc(j, t)
                if p == 4 and j != 3:
                    o.append(f"v_mfma_f32_16x16x16_bf16 {acc(j,t)}, {a(WOF(p,t),2)}, {v(PE(j,p),2)}, {c}")
                else:
                    o.append(f"v_mfma_f32_16x16x32_bf16 {acc(j,t)}, {a(WOF(p,t),4)}, {v(PE(j,p),4)}, {c}")
        return o
    def wo_reads(p):
        o = []
        for t in range(5):
            for u in range(2):
                if p == 4 and u == 1: continue
                sl = 32 * p + 16 * u
                if t < 4:
                    o.append(f"ds_read_b64_tr_b16 {a(WOF(p,t)+2*u,2)}, v{VT0 if t < 2 else VT1} offset:{sl*128 + (t&1)*8}")
                else:
                    o.append(f"ds_read_b64_tr_b16 {a(WOF(p,t)+2*u,2)}, v{VT2} offset:{18432 + sl*16}")
        return o
    def interleave(ms, fs):
        per = -(-len(fs) // max(1, len(ms)))
        fs = list(fs)
        for m_ in ms:
            A(m_)
            for _ in range(per):
                if fs: A(fs.pop(0))
        for f_ in fs: A(f_)
    for x in rcopy(0): A(x)
    interleave(S1(0), rcopy(1))
    A.drain("pq2")
    interleave(S1(1), V1(0) + rcopy(2))
    A.drain("pq3")
    interleave(S1(2), V1(1) + rcopy(3))
    md0 = getmask(mask64(lambda i, q: q == (i >> 2) and (i & 2) == 0))
    md1 = getmask(mask64(lambda i, q: q == (i >> 2) and (i & 2) != 0))
    modd = getmask(mask64(lambda i, q: (i & 1) == 1))
    dg = [f"v_sub_f32 v{X2}, 1.0, v{GV+3}", f"v_cvt_pk_bf16_f32 v{X2}, v{X2}, 0", f"v_lshlrev_b32 v{X3}, 16, v{X2}",
          f"v_cndmask_b32 v{X2}, v{X2}, v{X3}, {modd}", f"v_cndmask_b32 v{DIAG}, 0, v{X2}, {md0}", f"v_cndmask_b32 v{DIAG+1}, 0, v{X2}, {md1}"]
    interleave(S1(3), V1(2) + dg)
    st(3)
    A.wait_vm_tag("wo1")
    for x in wo_reads(0): A(x)
    v13 = V1(3)
    interleave(S2((0, 1, 2), 0), wo_reads(1) + v13[:30])
    A.wait_vm_tag("wo4")
    interleave(S2((0, 1, 2), 1), wo_reads(2) + wo_reads(3) + wo_reads(4) + v13[30:45])
    A.drain()
    A(f"v_add_u32 v{X0}, s{S_WB}, v{V16}")
    wrj = lambda j: [f"ds_write_b128 v{X0}, {acc(j,t)} offset:{j*5120 + t*1024}" for t in range(5)]
    rest = lambda j: S2((j,), 2) + S2((j,), 3) + S2((j,), 4)
    interleave(rest(0), v13[45:])
    A("s_waitcnt lgkmcnt(0)")
    r1 = rest(1); r2 = rest(2)
    for x in r1[:5]: A(x)
    interleave(r1[5:], wrj(0))
    for x in r2[:5]: A(x)
    interleave(r2[5:], wrj(1))
    addr = []
    for j in range(3):
        addr += [f"s_xor_b32 s{T1}, s{S_G}, {j^3}", f"s_mul_i32 s{T1}, s{T1}, {REG}", f"v_add_u32 v{X1+j}, s{T1}, v{V16}"]
    addr += [f"s_mul_i32 s{T0}, s{S_OWN}, {16*1152}", f"s_mul_i32 s{T1}, s{S_CB}, 144", f"s_add_u32 s{T0}, s{T0}, s{T1}",
             f"v_mul_u32_u24 v{VRD}, 1152, v{I16}", f"v_lshl_add_u32 v{VLX}, v{Q}, 3, v{VRD}", f"v_lshl_add_u32 v{VRD}, v{Q}, 4, v{VRD}"]
    own = [x for p in range(5) for x in S2((3,), p)]
    interleave(own[:5], addr)
    interleave(own[5:15], wrj(2))
    A("s_waitcnt lgkmcnt(0)")
    A("s_barrier")
    RB = 110
    rds = [f"ds_read_b128 {v(RB+12*t+4*j,4)}, v{X1+j} offset:{j*5120 + t*1024}" for t in range(5) for j in range(3)]
    interleave(own[15:], rds)
    st(4)
    OUTR = 60
    for t in range(5):
        for r in range(4): A(f"v_add_f32 v{RB+12*t+r}, v{RB+12*t+r}, v{RB+12*t+4+r}")
        for r in range(4): A(f"v_add_f32 v{RB+12*t+r}, v{RB+12*t+r}, v{RB+12*t+8+r}")
    for t in range(5):
        for r in range(4): A(f"v_add_f32 v{ACC3+4*t+r}, v{ACC3+4*t+r}, v{RB+12*t+r}")
        A(f"v_cvt_pk_bf16_f32 v{OUTR+2*t}, v{ACC3+4*t}, v{ACC3+4*t+1}")
        A(f"v_cvt_pk_bf16_f32 v{OUTR+2*t+1}, v{ACC3+4*t+2}, v{ACC3+4*t+3}")
        if t in (1, 3):
            A(f"buffer_store_dwordx4 {v(OUTR+2*t-2,4)}, v{VRD}, {s(SOUT,4)}, s{T0} offen offset:{32*(t-1)}")
    A(f"""s_mov_b32 exec_hi, 0
    buffer_store_dwordx2 {v(OUTR+8,2)}, v{VLX}, {s(SOUT,4)}, s{T0} offen offset:128""")
    A("s_mov_b64 exec, -1")
    st(5)
    A0.label("L2_exit")
    A0("s_endpgm")
```

```python
from asm import *
from auto import Auto
from l1gemm import *
import struct, sys

def opt(name, default):
    for a_ in sys.argv:
        if a_.startswith(f"--{name}="): return a_.split("=", 1)[1]
    return default
TOUCH = int(opt("touch", "1"))
XPOS = int(opt("xpos", "1"))
PKN = int(opt("pkn", "99"))
PRIO = int(opt("prio", "2"))

PADL = 288
XTP = (PADL + 2048) * 2
TP = 544
SCP = 16 * TP
XT0 = 8 * SCP
CNT = XT0 + 8 * XTP
KP = 2112
FIXP = 68
TAPD = {("2", 0): 8 * 74, ("2", 8): 8 * 80, ("2", 4): 8 * 86, ("2", 12): 8 * 92, ("3", 4): 8 * 98, ("3", 12): 8 * 108}
WT = [(0, 1, -16), (8, 1, -16), (4, 2, -16), (12, 2, -24), (4, 3, -16), (12, 4, -24)]

def wtable():
    out = []
    for (sg, hw, off) in WT:
        for l in range(64):
            r, q = l & 15, l >> 4
            el = [0x3f80 if abs(off + 8 * q + jj - (r - sg - 4)) <= hw else 0 for jj in range(8)]
            out += [el[2 * i] | (el[2 * i + 1] << 16) for i in range(4)]
    return out

def gen_ssm(A0, stamps=False):
    A = Auto(A0)
    S_SG, S_CH, S_SCR, S_XT = 65, 66, 75, 76
    S_K1024 = 77
    S_XR, S_ISB = 82, 83
    def st(idx):
        if stamps:
            A.one("s_waitcnt lgkmcnt(0)")
            stamp(A0, idx, stamps); A.t += 4; A.vm.append(set())
    A(f"""s_mul_i32 s{S_SG}, s3, 9
    s_add_u32 s{S_SG}, s{S_SG}, s4
    s_lshl_b32 s{S_CH}, s{S_SG}, 3
    s_add_u32 s{S_CH}, s{S_CH}, s{S_WAVE}
    s_lshl_b32 s{S_T0}, s{S_CH}, 8
    s_lshl_b32 s{S_T1}, s{S_CH}, 1""")
    V_TRd, V_XD, V_BX, V_ZX, V_TAPR, V_TAPW, V_K0W, V_K1W, V_KR, V_L16, V_SCRV, V_CNT, V_XG = range(1, 14)
    X0, X1, X2, X3 = 16, 17, 18, 19
    WC = 20
    ACC = 44
    TF = 76
    AF = 116
    BR = 188
    XL = 20
    LF = 44
    HF = 76
    DA, DB, DC = 108, 112, 240
    pool = list(range(116, 240, 4))
    def alloc(): return pool.pop(0)
    def free(r): pool.append(r)
    P_LA, P_AI, P_CR, P_CI, P_DT, P_DS = 244, 245, 246, 247, 248, 249
    A(f"""v_lshl_add_u32 v{X0}, v0, 2, s{S_T0}
    v_mov_b32 v{X1}, s{S_T1}
    global_load_dword v{P_LA}, v{X0}, {s(S_LOGA,2)}
    global_load_ushort v{P_DT}, v{X1}, {s(S_LOGDT,2)}
    global_load_dword v{P_AI}, v{X0}, {s(S_AIM,2)}
    global_load_ushort v{P_DS}, v{X1}, {s(S_DSKIP,2)}
    global_load_dword v{P_CR}, v{X0}, {s(S_CRE,2)}
    global_load_dword v{P_CI}, v{X0}, {s(S_CIM,2)}""")
    if TOUCH: A(f"buffer_load_dword v253, v251, {s(SX,4)}, s9 offen")
    Z4 = alloc()
    A(f"""v_mov_b32 v{Z4}, 0
    v_mov_b32 v{Z4+1}, 0
    v_mov_b32 v{Z4+2}, 0
    v_mov_b32 v{Z4+3}, 0
    v_mov_b32 v{V_CNT}, {CNT}
    ds_write_b32 v{V_CNT}, v{Z4}
    s_lshl_b32 s{S_T0}, s{S_SG}, 4
    v_mul_u32_u24 v{X2}, {4*1152}, v0
    v_add_u32 v{V_XG}, s{S_T0}, v{X2}
    s_add_u32 s{S_XR}, s4, s{S_WAVE}
    s_and_b32 s{S_XR}, s{S_XR}, 7
    s_lshr_b32 s{S_ISB}, s{S_WAVE}, 2
    s_waitcnt lgkmcnt(0)
    s_barrier""")
    def xload():
        A(f"s_mul_i32 s{S_T3}, s{S_XR}, {256*1152}")
        for k in range(4):
            A(f"buffer_load_dwordx4 {v(XL+4*k,4)}, v{V_XG}, {s(SX,4)}, s{S_T3} offen offset:{1152*k}")
    def xpose():
        PL, PH = 84, 85
        A(f"""s_mov_b32 s{PL}, 0x05040100
        s_mov_b32 s{PH}, 0x07060302
        s_lshl_b32 s{S_T3}, s{S_XR}, 9
        s_add_u32 s{S_T3}, s{S_T3}, {XT0 + 2*PADL}
        v_lshl_add_u32 v{V_XD}, v0, 3, s{S_T3}
        v_mov_b32 v{X2}, 1""")
        for j in range(4):
            o = 36 + 4 * (j & 1)
            A(f"""v_perm_b32 v{o}, v{XL+4+j}, v{XL+j}, s{PL}
            v_perm_b32 v{o+1}, v{XL+12+j}, v{XL+8+j}, s{PL}
            v_perm_b32 v{o+2}, v{XL+4+j}, v{XL+j}, s{PH}
            v_perm_b32 v{o+3}, v{XL+12+j}, v{XL+8+j}, s{PH}
            ds_write_b64 v{V_XD}, {v(o,2)} offset:{(2*j)*XTP}
            ds_write_b64 v{V_XD}, {v(o+2,2)} offset:{(2*j+1)*XTP}""")
        A(f"""s_mov_b64 exec, 1
        ds_add_u32 v{V_CNT}, v{X2}
        s_mov_b64 exec, -1""")
        A0("s_getpc_b64 s[78:79]")
        A0.label("L_ssm_pc")
        A(f"""s_add_u32 s78, s78, L_wtab-L_ssm_pc
        s_addc_u32 s79, s79, 0""")
        for i in range(6):
            if i == 4: A("s_add_u32 s78, s78, 4096\ns_addc_u32 s79, s79, 0")
            A(f"global_load_dwordx4 {v(WC+4*i,4)}, v{V_L16}, s[78:79] offset:{1024*(i%4)}")
    A(f"s_cmp_eq_u32 s{S_ISB}, 0")
    lab = A0.newlabel("L_np")
    A0(f"s_cbranch_scc0 {lab}\ns_setprio {PRIO}")
    A0.label(lab)
    I16, Q = X0, X1
    A(f"""v_lshlrev_b32 v{V_L16}, 4, v0
    s_mul_i32 s{S_SCR}, s{S_WAVE}, {SCP}
    s_mov_b32 m0, s{S_SCR}
    s_mul_i32 s{S_XT}, s{S_WAVE}, {XTP}
    s_add_u32 s{S_XT}, s{S_XT}, {XT0}
    v_and_b32 v{I16}, 15, v0
    v_lshrrev_b32 v{Q}, 4, v0
    v_mul_u32_u24 v{V_TRd}, {TP}, v{I16}
    v_lshl_add_u32 v{V_TRd}, v{Q}, 4, v{V_TRd}
    v_add_u32 v{V_TRd}, s{S_SCR}, v{V_TRd}
    v_add_u32 v{V_SCRV}, s{S_SCR}, v{V_L16}""")
    A(f"""v_lshlrev_b32 v{V_BX}, 5, v{I16}
    v_lshl_add_u32 v{V_BX}, v{Q}, 4, v{V_BX}
    s_add_u32 s{S_T0}, s{S_XT}, {2*(PADL-256-16)}
    v_add_u32 v{V_BX}, s{S_T0}, v{V_BX}""")
    A(f"""v_and_b32 v{X2}, 3, v0
    v_bfe_u32 v{X3}, v0, 2, 2
    v_lshl_add_u32 v{V_ZX}, v{X2}, 2, v{X3}
    v_lshlrev_b32 v{V_ZX}, 5, v{V_ZX}
    v_lshl_add_u32 v{V_ZX}, v{Q}, 4, v{V_ZX}
    s_add_u32 s{S_T0}, s{S_XT}, {2*(PADL-24)}
    v_add_u32 v{V_ZX}, s{S_T0}, v{V_ZX}""")
    A(f"""v_sub_u32 v{V_TAPR}, v{X2}, v{X3}
    v_lshlrev_b32 v{V_TAPR}, 3, v{V_TAPR}
    v_sub_u32 v{X2}, 4, v{Q}
    v_and_b32 v{X2}, 3, v{X2}
    v_mul_u32_u24 v{X2}, {KP}, v{X2}
    v_min_u32 v{X3}, 1, v{Q}
    v_lshlrev_b32 v{X3}, 3, v{X3}
    v_sub_u32 v{X2}, v{X2}, v{X3}
    s_add_u32 s{S_T0}, s{S_SCR}, 1024
    v_add3_u32 v{V_TAPR}, v{V_TAPR}, v{X2}, s{S_T0}""")
    A(f"""v_lshrrev_b32 v{X2}, 1, v{Q}
    v_lshrrev_b32 v{X3}, 2, v{I16}
    v_lshl_add_u32 v{X3}, v{X3}, 1, v{X2}
    v_mul_u32_u24 v{X3}, 96, v{X3}
    v_and_b32 v{V_TAPW}, 3, v{I16}
    v_lshl_add_u32 v{X3}, v{V_TAPW}, 4, v{X3}
    v_mul_u32_u24 v{V_TAPW}, 160, v{X2}
    v_lshl_add_u32 v{V_TAPW}, v{I16}, 4, v{V_TAPW}
    v_add_u32 v{V_TAPW}, {2*TAPD[('3',4)] - 2*TAPD[('2',0)] - 128}, v{V_TAPW}
    v_cmp_gt_u32 vcc, 8, v{I16}
    v_cndmask_b32 v{V_TAPW}, v{V_TAPW}, v{X3}, vcc
    v_and_b32 v{X3}, 1, v{Q}
    v_lshl_add_u32 v{V_TAPW}, v{X3}, 3, v{V_TAPW}
    s_add_u32 s{S_T0}, s{S_SCR}, {2*TAPD[('2',0)]}
    v_add_u32 v{V_TAPW}, s{S_T0}, v{V_TAPW}""")
    A(f"""v_and_b32 v{V_K1W}, 7, v{I16}
    v_lshlrev_b32 v{V_K1W}, 1, v{V_K1W}
    v_lshrrev_b32 v{V_K0W}, 3, v{I16}
    v_add_u32 v{V_K1W}, v{V_K1W}, v{V_K0W}
    v_lshlrev_b32 v{V_K1W}, 4, v{V_K1W}
    v_lshl_add_u32 v{V_K0W}, v{X2}, 8, v{V_K1W}
    v_lshl_add_u32 v{V_K0W}, v{X3}, 3, v{V_K0W}
    s_add_u32 s{S_T0}, s{S_SCR}, 1080
    v_sub_u32 v{V_K0W}, s{S_T0}, v{V_K0W}
    v_lshl_add_u32 v{V_K1W}, v{Q}, 8, v{V_K1W}
    s_add_u32 s{S_T0}, s{S_SCR}, {2*278}
    v_sub_u32 v{V_K1W}, s{S_T0}, v{V_K1W}""")
    A(f"""v_sub_u32 v{X2}, 15, v{I16}
    v_and_b32 v{X3}, 3, v{X2}
    v_mul_u32_u24 v{V_KR}, {KP}, v{X3}
    v_lshrrev_b32 v{X2}, 2, v{X2}
    v_lshl_add_u32 v{V_KR}, v{X2}, 3, v{V_KR}
    v_lshl_add_u32 v{V_KR}, v{Q}, 4, v{V_KR}
    v_add_u32 v{V_KR}, s{S_SCR}, v{V_KR}""")
    A(f"""v_add_u32 v{X2}, s{S_XT}, v{V_L16}
    s_mov_b32 exec_hi, 0xf
    ds_write_b128 v{X2}, {v(Z4,4)}
    s_mov_b64 exec, -1""")
    st(1)
    INV2PI = "0.15915494"
    zr, zi = alloc(), alloc()
    DT = zr + 2
    A(f"""v_lshlrev_b32 v{zr}, 16, v{P_LA}
    v_and_b32 v{zr+1}, 0xffff0000, v{P_LA}
    v_lshlrev_b32 v{DT}, 16, v{P_DT}
    v_mul_f32 v{zr}, s{S_L2E}, v{zr}
    v_mul_f32 v{zr+1}, s{S_L2E}, v{zr+1}
    v_mul_f32 v{DT}, s{S_L2E}, v{DT}
    v_exp_f32 v{zr}, v{zr}
    v_exp_f32 v{zr+1}, v{zr+1}
    v_exp_f32 v{DT}, v{DT}
    v_lshlrev_b32 v{zi}, 16, v{P_AI}
    v_and_b32 v{zi+1}, 0xffff0000, v{P_AI}
    v_cvt_pk_bf16_f32 v{zr+1}, v{zr}, v{zr+1}
    v_cvt_pk_bf16_f32 v{DT}, v{DT}, v{DT}
    v_lshlrev_b32 v{zr}, 16, v{zr+1}
    v_and_b32 v{zr+1}, 0xffff0000, v{zr+1}
    v_and_b32 v{DT}, 0xffff0000, v{DT}
    v_mul_f32 v{zr}, v{zr}, v{DT}
    v_mul_f32 v{zr+1}, v{zr+1}, v{DT}
    v_mul_f32 v{zi}, v{zi}, v{DT}
    v_mul_f32 v{zi+1}, v{zi+1}, v{DT}
    v_mul_f32 v{zr}, s{S_L2E}, v{zr}
    v_mul_f32 v{zr+1}, s{S_L2E}, v{zr+1}
    v_mul_f32 v{zi}, {INV2PI}, v{zi}
    v_mul_f32 v{zi+1}, {INV2PI}, v{zi+1}
    v_add_f32 v{DT}, v{DT}, v{DT}""")
    def direct(p):
        e = alloc(); t = alloc()
        pf = struct.unpack("<I", struct.pack("<f", float(p)))[0]
        for x in range(2):
            A(f"v_mul_f32 v{t+x}, {pf:#x}, v{zr+x}")
            A(f"v_mul_f32 v{t+2+x}, {pf:#x}, v{zi+x}")
        for x in range(2):
            A(f"v_exp_f32 v{t+x}, -v{t+x}")
            A(f"v_fract_f32 v{t+2+x}, v{t+2+x}")
        for x in range(2):
            A(f"v_cos_f32 v{e+2*x}, v{t+2+x}")
            A(f"v_sin_f32 v{e+2*x+1}, v{t+2+x}")
        for x in range(2):
            A(f"v_mul_f32 v{e+2*x}, v{t+x}, v{e+2*x}")
            A(f"v_mul_f32 v{e+2*x+1}, v{t+x}, v{e+2*x+1}")
        free(t)
        return e
    pend = []
    def drain(stage):
        if not pend: return
        if stage == 0:
            for x in pend[0][0]: A(x)
            pend[0] = ([], pend[0][1])
        else:
            c, w_ = pend.pop(0)
            for x in c: A(x)
            for x in w_: A(x)
    def flush_puts():
        while pend: drain(1)
    ncm = [0]
    def cmul(a_, b_):
        d = alloc()
        ncm[0] += 1
        if ncm[0] <= PKN:
            for x in (0, 2): A(f"v_pk_mul_f32 {v(d+x,2)}, {v(a_+x,2)}, {v(b_+x,2)} op_sel:[1,1] op_sel_hi:[1,0]")
            drain(0)
            for x in (0, 2): A(f"v_pk_fma_f32 {v(d+x,2)}, {v(a_+x,2)}, {v(b_+x,2)}, {v(d+x,2)} op_sel:[0,0,0] op_sel_hi:[0,1,1] neg_lo:[0,0,1]")
            drain(1)
        else:
            for x in (0, 2): A(f"v_mul_f32 v{d+x}, v{a_+x}, v{b_+x}")
            for x in (0, 2): A(f"v_mul_f32 v{d+x+1}, v{a_+x+1}, v{b_+x}")
            drain(0)
            for x in (0, 2): A(f"v_fma_f32 v{d+x}, -v{a_+x+1}, v{b_+x+1}, v{d+x}")
            for x in (0, 2): A(f"v_fmac_f32 v{d+x+1}, v{a_+x}, v{b_+x+1}")
            drain(1)
        return d
    wtmp = [alloc(), alloc()]
    wk = [0]
    def wr(w, row):
        return [f"ds_write_addtid_b32 v{w} offset:{row*TP}", f"ds_write_addtid_b32 v{w+1} offset:{row*TP+256}"]
    def put(e, row, neg=False):
        w = wtmp[(wk[0] >> 1) & 1] + 2 * (wk[0] & 1); wk[0] += 1
        n = "-" if neg else ""
        while len(pend) >= 2: drain(1)
        pend.append(([f"v_cvt_pk_bf16_f32 v{w}, v{e}, {n}v{e+1}", f"v_cvt_pk_bf16_f32 v{w+1}, v{e+2}, {n}v{e+3}"], wr(w, row)))
    def rdfr(base):
        flush_puts()
        for ks in range(8):
            A(f"ds_read_b128 {v(base+4*ks,4)}, v{V_TRd} offset:{64*ks}")
    def mm(D, swap):
        for ks in range(8):
            a_, b_ = (LF, HF) if swap else (HF, LF)
            A(f"v_mfma_f32_16x16x32_bf16 {v(D,4)}, {v(a_+4*ks,4)}, {v(b_+4*ks,4)}, {'0' if ks == 0 else v(D,4)}")
    R8 = direct(8)
    L = alloc()
    A(f"""v_lshlrev_b32 v{L}, 16, v{P_CR}
    v_lshlrev_b32 v{L+1}, 16, v{P_CI}
    v_and_b32 v{L+2}, 0xffff0000, v{P_CR}
    v_and_b32 v{L+3}, 0xffff0000, v{P_CI}""")
    for x in range(4): A(f"v_mul_f32 v{L+x}, v{DT}, v{L+x}")
    xload()
    for j in range(16):
        put(L, (j >> 1) + 8 * (j & 1), neg=True)
        if j < 15:
            n_ = cmul(L, R8); free(L); L = n_
    free(L)
    rdfr(LF)
    st(2)
    E1 = direct(1)
    G1 = direct(128)
    A(f"v_mov_b32 v{X2}, 0x3f80")
    A(f"ds_write_addtid_b32 v{X2}\nds_write_addtid_b32 v{X2} offset:256")
    put(G1, 8)
    H = {1: E1, 8: R8}
    for i in range(1, 8):
        if i > 1: H[i] = cmul(H[i-1], E1)
        put(H[i], i)
        t = cmul(H[i], G1); put(t, 8 + i); free(t)
        if i - 1 in (3, 5): free(H[i-1])
    free(H[7])
    rdfr(HF)
    if XPOS == 2: xpose()
    G2 = cmul(G1, G1); G3 = cmul(G2, G1); G4 = cmul(G3, G1)
    put(G2, 8)
    for gi, G in enumerate((G2, G3)):
        for k, i in enumerate((2, 4, 6, 8)):
            t = cmul(H[i], G); put(t, 4 * gi + k); free(t)
        if gi == 0: mm(DA, False)
    rdfr(HF)
    free(G2); free(G3); free(H[2]); free(H[6]); free(E1)
    if XPOS == 0: xpose()
    P = cmul(G4, H[4]); Qv = cmul(G4, R8)
    free(G4); free(H[4]); free(R8)
    for h in range(12):
        if h < 4:
            put(P, h)
            if h < 3: n_ = cmul(P, G1); free(P); P = n_
        put(Qv, 4 + h)
        if h < 11: n_ = cmul(Qv, G1); free(Qv); Qv = n_
        if h == 2: mm(DB, False)
    rdfr(HF)
    st(3)
    A(f"ds_write_b128 v{V_SCRV}, {v(Z4,4)}")
    A(f"ds_write_b128 v{V_SCRV}, {v(Z4,4)} offset:1024")
    PA, PB, PC = 216, 220, 224
    A(f"""v_lshlrev_b32 v{X2}, 16, v{P_DS}
    s_mov_b64 exec, 1
    v_add_f32 v{DA}, v{DA}, v{X2}
    s_mov_b64 exec, -1
    v_cvt_pk_bf16_f32 v{PA}, v{DA+3}, v{DA+2}
    v_cvt_pk_bf16_f32 v{PA+1}, v{DA+1}, v{DA}
    v_cvt_pk_bf16_f32 v{PB}, v{DB+3}, v{DB+3}
    v_cvt_pk_bf16_f32 v{PB+1}, v{DB+3}, v{DB+2}
    v_cvt_pk_bf16_f32 v{PB+2}, v{DB+1}, v{DB+1}
    v_cvt_pk_bf16_f32 v{PB+3}, v{DB+1}, v{DB}
    v_cvt_pk_bf16_f32 v{PA+2}, v{DB}, v{DB}
    v_mov_b32 v{X3}, s{S_SCR}""")
    mm(DC, True)
    A(f"""ds_write_b64 v{V_K0W}, {v(PA,2)}
    s_mov_b32 exec_hi, 0
    ds_write2_b32 v{V_K1W}, v{PB}, v{PB+1} offset0:0 offset1:1
    ds_write2_b32 v{V_K1W}, v{PB+2}, v{PB+3} offset0:2 offset1:3
    s_mov_b32 exec_lo, 0x80000000
    ds_write_b16 v{X3}, v{PB} offset:58
    s_mov_b32 exec_lo, 0
    s_mov_b32 exec_hi, 1
    ds_write_b32 v{X3}, v{PA+2} offset:572
    s_mov_b64 exec, -1""")
    if XPOS == 1: xpose()
    st(8)
    A(f"""v_readlane_b32 s{S_K1024}, v{DC+3}, 55
    s_mov_b32 exec_lo, 0
    s_mov_b32 exec_hi, {1 << (55-32):#x}
    v_mov_b32 v{DC+3}, 0
    s_mov_b64 exec, -1
    v_cvt_pk_bf16_f32 v{PC}, v{DC}, v{DC+1}
    v_cvt_pk_bf16_f32 v{PC+1}, v{DC+2}, v{DC+3}
    v_mov_b32 v{X3}, s{S_K1024}
    v_cvt_pk_bf16_f32 v{X3}, v{X3}, v{X3}
    v_lshl_add_u32 v{X2}, v0, 1, s{S_SCR}
    ds_write_b64 v{V_TAPW}, {v(PC,2)}
    s_mov_b64 exec, 0x7f
    ds_write_b16 v{X2}, v{X3} offset:{16*FIXP+38}
    s_mov_b64 exec, -1""")
    for rd in range(2):
        E = 188 + 8 * rd
        A(f"ds_read_b128 {v(E,4)}, v{V_SCRV} offset:{1024*rd}")
        A(f"ds_read_b64 {v(E+4,2)}, v{V_SCRV} offset:{1024*rd+16}")
    for rd in range(2):
        E = 188 + 8 * rd
        O = 204 + 12 * rd
        for i in range(4): A(f"v_alignbit_b32 v{O+i}, v{E+i+1}, v{E+i}, 16")
        A(f"ds_write_b128 v{V_SCRV}, {v(O,4)} offset:{KP + 1024*rd}")
        for i in range(4): A(f"v_mov_b32 v{O+4+i}, v{E+i+1}")
        A(f"ds_write_b128 v{V_SCRV}, {v(O+4,4)} offset:{2*KP + 1024*rd}")
        for i in range(4): A(f"v_alignbit_b32 v{O+8+i}, v{E+i+2}, v{E+i+1}, 16")
        A(f"ds_write_b128 v{V_SCRV}, {v(O+8,4)} offset:{3*KP + 1024*rd}")
    st(9)
    def afrag(w):
        off = 16 * (64 - 4 * w) if w < 17 else 16 * FIXP
        A(f"ds_read_b64 {v(AF+4*w,2)}, v{V_KR} offset:{off}")
        A(f"ds_read_b64 {v(AF+4*w+2,2)}, v{V_KR} offset:{off+8}")
    for w in (8, 16, 7, 15, 6, 14, 5, 13, 4, 12, 3, 11, 2, 10, 1, 9, 0, 17): afrag(w)
    tf = {}
    k = 0
    for pr in range(2):
        for D_ in (2, 3, 4):
            tf[("2", pr, D_)] = TF + 4 * k; k += 1
            for u in range(2):
                sg = (0, 8)[u] if pr == 0 else (4, 12)[u]
                A(f"ds_read_b64_tr_b16 {v(tf[('2',pr,D_)]+2*u,2)}, v{V_TAPR} offset:{2*TAPD[('2',sg)] - 1024 + 32*(D_-2)}")
    for D_ in (4, 5, 6, 7):
        tf[("3", 0, D_)] = TF + 4 * k; k += 1
        for u in range(2):
            A(f"ds_read_b64_tr_b16 {v(tf[('3',0,D_)]+2*u,2)}, v{V_TAPR} offset:{2*TAPD[('3',(4,12)[u])] - 1024 + 32*(D_-4)}")
    st(13)
    lp = A0.newlabel("L_xw"); le = A0.newlabel("L_xe")
    A0(f"s_mov_b32 s{S_T1}, 0")
    A0.label(lp)
    A0(f"""ds_read_b32 v{X2}, v{V_CNT}
    s_add_u32 s{S_T1}, s{S_T1}, 1
    s_cmp_gt_u32 s{S_T1}, 0x100000
    s_cbranch_scc1 {le}
    s_waitcnt lgkmcnt(0)
    v_readfirstlane_b32 s{S_T0}, v{X2}
    s_cmp_lt_u32 s{S_T0}, 8
    s_cbranch_scc1 {lp}""")
    A0.label(le)
    A.ds = []
    st(4)
    first = set()
    def accm(i, a_, b_):
        c = v(ACC + 4 * i, 4) if i in first else "0"
        first.add(i)
        return f"v_mfma_f32_16x16x32_bf16 {v(ACC+4*i,4)}, {v(a_,4)}, {v(b_,4)}, {c}"
    items = []
    for s_ in range(-8, 57):
        ms = [(i, AF + 4 * (8 * i - s_)) for i in range(8) if 0 <= 8 * i - s_ <= 16]
        items.append((64 * (s_ + 8), ms))
    for i in range(3, 8):
        items.append((2 * (256 * i - 760), [(i, AF + 68)]))
    NR, LA = 6, 5
    ZX = [212, 216]
    ZD = 220
    ZA = 244
    zsteps = []
    for cb in range(6):
        nz = 6 if cb < 4 else 4
        rd = [f"ds_read_b128 {v(ZX[0],4)}, v{V_ZX} offset:{512*cb+16}", f"ds_read_b128 {v(ZX[1],4)}, v{V_ZX} offset:{512*cb}"]
        zm = [f"v_mfma_f32_16x16x32_bf16 {v(ZD+4*k,4)}, {v(ZX[0] if WT[k][2] == -16 else ZX[1],4)}, {v(WC+4*k,4)}, 0" for k in range(nz)]
        za = [ZA, ZA + 4, X0]
        cv = []
        for k in range(nz):
            cv.append(f"v_cvt_pk_bf16_f32 v{za[k>>1]+2*(k&1)}, v{ZD+4*k}, v{ZD+4*k+1}")
            cv.append(f"v_cvt_pk_bf16_f32 v{za[k>>1]+2*(k&1)+1}, v{ZD+4*k+2}, v{ZD+4*k+3}")
        pm = []
        for pr in range(2):
            for D_ in (2, 3, 4):
                if cb + D_ <= 7: pm.append((cb + D_, za[pr], tf[("2", pr, D_)]))
        if cb < 4:
            for D_ in (4, 5, 6, 7):
                if cb + D_ <= 7: pm.append((cb + D_, za[2], tf[("3", 0, D_)]))
        zsteps.append((rd, zm, cv, pm))
    PER = 11
    for j in range(min(LA, len(items))):
        A(f"ds_read_b128 {v(BR+4*(j%NR),4)}, v{V_BX} offset:{items[j][0]}")
    pend_cv = []
    for j, (off, ms) in enumerate(items):
        cb, ph = divmod(j, PER)
        if cb < 6:
            rd, zm, cv, pm = zsteps[cb]
            if ph == 0:
                for x in rd: A(x)
            if ph == 3:
                for x in zm: A(x)
            if ph == 5: pend_cv = list(cv)
            if ph == 10:
                for x in pend_cv: A(x)
                pend_cv = []
                for (i, a_, b_) in pm: A(accm(i, a_, b_))
        for n_, (i, a_) in enumerate(ms):
            A(accm(i, a_, BR + 4 * (j % NR)))
            if n_ == 0 and j + LA < len(items):
                A(f"ds_read_b128 {v(BR+4*((j+LA)%NR),4)}, v{V_BX} offset:{items[j+LA][0]}")
            for _ in range(2 if n_ else 1):
                if pend_cv: A(pend_cv.pop(0))
    st(5)
    A(f"""s_lshl_b32 s{S_T0}, s{S_CH}, 12
    s_add_u32 s{S_T0}, s{S_T0}, {WS_BT}""")
    for i2 in range(4):
        o = BR + 4 * i2
        for x in range(4):
            A(f"v_cvt_pk_bf16_f32 v{o+x}, v{ACC+8*i2+2*x}, v{ACC+8*i2+2*x+1}")
        A(f"buffer_store_dwordx4 {v(o,4)}, v{V_L16}, {s(SWS,4)}, s{S_T0} offen offset:{1024*i2}")
    st(6)
    A("s_endpgm")

def gen_wtab(A):
    A.raw(".p2align 8")
    A.label("L_wtab")
    t = wtable()
    for i in range(0, len(t), 8):
        A.raw("  .long " + ", ".join(f"{x:#010x}" for x in t[i:i+8]))
```

```python
import sys
from asm import *
from l1gemm import *
from l2 import gen_l2
from ssm import gen_ssm, gen_wtab

stamps = "--stamps" in sys.argv
out = [a for a in sys.argv[1:] if not a.startswith("--")][0]

A = Asm()
HDR = """; generated by gen.py
; @launch kernel=l1_kernel grid=(248,1,1) block=(512,1,1) lds=163840
; @launch kernel=l2_kernel grid=(256,1,1) block=(256,1,1) lds=86016
.amdgcn_target "amdgcn-amd-amdhsa--gfx950"
.text
"""
A.raw(".globl l1_kernel\n.p2align 8\n.type l1_kernel,@function\nl1_kernel:")
if "--nopf" not in sys.argv:
    A("""s_getpc_b64 s[4:5]
    v_lshlrev_b32 v2, 7, v0
    v_min_u32 v2, L_code_end-l1_kernel-8, v2
    global_load_dword v253, v2, s[4:5]""")
A(f"""s_cmp_ge_u32 s2, 248
s_cbranch_scc1 L1_exit
s_load_dwordx16 s[16:31], s[0:1], 0
s_load_dwordx8 s[32:39], s[0:1], 64
s_load_dwordx4 s[40:43], s[0:1], 96
v_lshrrev_b32 v1, 6, v0
v_and_b32 v0, 63, v0
v_readfirstlane_b32 s{S_WAVE}, v1
s_and_b32 s3, s2, 7
s_lshr_b32 s4, s2, 3
s_mov_b32 s{S_L2E}, {LOG2E:#x}
s_mov_b32 s{S_EPS}, {EPS:#x}
s_and_b32 s5, s3, 3
s_lshl_b32 s5, s5, 2
s_lshr_b32 s6, s3, 2
v_lshrrev_b32 v251, 1, v0
v_mul_u32_u24 v251, 1152, v251
v_and_b32 v3, 1, v0
v_mul_u32_u24 v3, 140, v3
v_add_u32 v251, v251, v3
s_waitcnt lgkmcnt(0)""")
srd(A, SX, S_X, S_X+1, 2048*1152)
srd(A, SW, S_W, S_W+1, 576*3456)
srd(A, SWS, S_WS, S_WS+1, WS_SIZE)
srd(A, SDBG, S_DBG, S_DBG+1, 256)
srd(A, SG, S_GATE, S_GATE+1, 1152)
if stamps:
    A(f"""s_lshl_b32 s7, s2, 3
    s_add_u32 s7, s7, s{S_WAVE}
    s_lshl_b32 s7, s7, 6
    s_add_u32 s7, s7, {WS_STAMP}
    v_mov_b32 v254, s7""")
    stamp(A, 0, stamps)
A(f"""s_mul_i32 s9, s{S_WAVE}, 31
s_add_u32 s9, s9, s4
s_mul_i32 s9, s9, {32*1152}
s_mul_i32 s8, s3, 144
s_add_u32 s9, s9, s8""")
A(f"""s_cmp_lt_u32 s4, 9
s_cbranch_scc1 L1_ssm
s_cmp_gt_u32 s{S_WAVE}, 2
s_cbranch_scc1 L1_notouch
{"" if "--touch=0" in sys.argv else f"buffer_load_dword v253, v251, {s(SX,4)}, s9 offen"}
L1_notouch:
{"s_endpgm" if "--nogemm" in sys.argv else ""}
s_cmp_lt_u32 s4, 15
s_cbranch_scc1 L1_q""")
A(f"""s_sub_u32 s4, s4, 15
s_and_b32 s7, s4, 3
s_add_u32 s{S_RB}, s5, s7
s_lshr_b32 s8, s4, 2
s_lshl_b32 s6, s6, 2
s_add_u32 s{S_CG}, s6, s8
s_add_u32 s7, s7, s8
s_and_b32 s7, s7, 3
s_lshl_b32 s{S_ROT}, s7, 1
s_cmp_lt_u32 s{S_WAVE}, 4
s_cbranch_scc1 L1_kv_c
s_cmp_eq_u32 s{S_WAVE}, 7
s_cbranch_scc1 L1_kv_chore""")
gen_loader(A, "kv", stamps)
A.label("L1_kv_chore")
gen_chore(A, stamps)
A.raw(".p2align 3")
A.label("L1_kv_c")
gen_compute(A, "kv", stamps)
A.label("L1_q")
A(f"""s_sub_u32 s4, s4, 9
s_mul_i32 s6, s6, 6
s_add_u32 s4, s4, s6
s_and_b32 s7, s4, 3
s_add_u32 s{S_RB}, s5, s7
s_lshr_b32 s{S_CG}, s4, 2
s_add_u32 s7, s7, s{S_CG}
s_and_b32 s7, s7, 3
s_lshl_b32 s7, s7, 1
s_add_u32 s{S_ROT}, s7, 1
s_cmp_lt_u32 s{S_WAVE}, 4
s_cbranch_scc1 L1_q_c""")
gen_loader(A, "q", stamps)
A.raw(".p2align 3")
A.label("L1_q_c")
gen_compute(A, "q", stamps)
A.raw(".p2align 3")
A.label("L1_ssm")
gen_ssm(A, stamps)
A.label("L1_exit")
A("s_endpgm")
A.raw(".globl l2_kernel\n.p2align 8\n.type l2_kernel,@function\nl2_kernel:")
gen_l2(A, stamps)
gen_wtab(A)
A.label("L_code_end")
body = A.text()
if NODMA:
    body = "\n".join(l for l in body.split("\n") if not l.strip().endswith(" lds")) + "\n"
desc = '.section .rodata,"a"\n' + kdesc("l1_kernel", 256) + kdesc("l2_kernel", 512, accum=256)
open(out, "w").write(HDR + body + desc)
```

```python
from asm import *
from l1gemm import WS_STAMP, WS_SIZE
def gen_diag(A):
    A.raw(".globl dg_kernel\n.p2align 8\n.type dg_kernel,@function\ndg_kernel:")
    A(f"""s_cmp_lg_u32 s2, 0
    s_cbranch_scc1 L_dg_exit
    s_load_dwordx4 s[4:7], s[0:1], 96
    v_lshlrev_b32 v1, 9, v0
    v_add_u32 v1, {WS_STAMP}, v1
    v_add_u32 v2, 0x40000, v1
    v_lshlrev_b32 v3, 2, v0
    v_mov_b32 v4, 0
    v_mov_b32 v5, -1
    v_mov_b32 v20, 0
    v_cmp_eq_u32 vcc, 0, v0
    v_cndmask_b32 v4, v4, v5, vcc
    v_cmp_eq_u32 vcc, 5, v0
    v_cndmask_b32 v4, v4, v5, vcc
    v_cmp_eq_u32 vcc, 7, v0
    v_cndmask_b32 v4, v4, v5, vcc
    ds_write_b32 v3, v4
    s_waitcnt lgkmcnt(0)""")
    srd(A, 8, 6, 7, WS_SIZE)
    srd(A, 12, 4, 5, 256)
    A("s_barrier")
    for w in range(8):
        A(f"buffer_load_dwordx2 v[{30+2*w}:{31+2*w}], v1, s[8:11], 0 offen offset:{64*w+56}")
    for w in range(4):
        A(f"buffer_load_dwordx2 v[{50+2*w}:{51+2*w}], v2, s[8:11], 0 offen offset:{64*w+56}")
    A(f"buffer_load_dword v60, v1, s[8:11], 0 offen offset:{64*7}")
    A(f"buffer_load_dword v61, v1, s[8:11], 0 offen offset:{64*7+24}")
    A(f"buffer_load_dword v62, v2, s[8:11], 0 offen offset:0")
    A(f"buffer_load_dword v63, v2, s[8:11], 0 offen offset:24")
    A(f"buffer_load_dword v64, v1, s[8:11], 0 offen offset:0")
    A(f"buffer_load_dword v65, v1, s[8:11], 0 offen offset:8")
    A(f"buffer_load_dword v66, v1, s[8:11], 0 offen offset:20")
    A(f"buffer_load_dword v67, v1, s[8:11], 0 offen offset:24")
    A("s_waitcnt vmcnt(0)")
    for w in range(4):
        A(f"ds_min_u32 v20, v{50+2*w} offset:20\nds_max_u32 v20, v{50+2*w} offset:24\nds_min_u32 v20, v{51+2*w} offset:28\nds_max_u32 v20, v{51+2*w} offset:32")
    A("v_cmp_gt_u32 vcc, 248, v0\ns_and_saveexec_b64 s[20:21], vcc")
    for w in range(4):
        A(f"ds_min_u32 v20, v{30+2*w} offset:0\nds_max_u32 v20, v{30+2*w} offset:4")
    A("v_cmp_gt_u32 vcc, 72, v0\ns_and_saveexec_b64 s[22:23], vcc\ns_cbranch_execz L_dg1")
    for w in range(8):
        A(f"ds_max_u32 v20, v{31+2*w} offset:8")
    A.label("L_dg1")
    A("s_mov_b64 exec, s[22:23]\nv_cmp_le_u32 vcc, 120, v0\ns_and_saveexec_b64 s[22:23], vcc\ns_cbranch_execz L_dg2")
    for w in range(4):
        A(f"ds_max_u32 v20, v{31+2*w} offset:16")
    A.label("L_dg2")
    A("s_mov_b64 exec, s[22:23]\nv_cmp_le_u32 vcc, 72, v0\ns_and_b64 exec, exec, vcc\nv_cmp_gt_u32 vcc, 120, v0\ns_and_b64 exec, exec, vcc\ns_cbranch_execz L_dg3")
    for w in range(4):
        A(f"ds_max_u32 v20, v{31+2*w} offset:12")
    A.label("L_dg3")
    A("s_mov_b64 exec, -1")
    A(f"""v_sub_u32 v60, v61, v60
    v_sub_u32 v61, v45, v44
    v_sub_u32 v62, v63, v62
    v_sub_u32 v63, v51, v50
    v_sub_u32 v65, v65, v64
    v_sub_u32 v66, v66, v64
    v_sub_u32 v67, v67, v64
    v_cmp_eq_u32 vcc, 8, v0
    s_and_b64 exec, exec, vcc
    s_cbranch_execz L_dg4
    ds_write_b32 v20, v60 offset:36
    ds_write_b32 v20, v61 offset:40
    ds_write_b32 v20, v62 offset:44
    ds_write_b32 v20, v63 offset:48""")
    A.label("L_dg4")
    A(f"""s_mov_b64 exec, -1
    v_cmp_eq_u32 vcc, 200, v0
    s_and_b64 exec, exec, vcc
    s_cbranch_execz L_dg5
    ds_write_b32 v20, v65 offset:52
    ds_write_b32 v20, v66 offset:56
    ds_write_b32 v20, v67 offset:60""")
    A.label("L_dg5")
    A(f"""s_mov_b64 exec, -1
    s_waitcnt lgkmcnt(0)
    s_barrier
    ds_read_b32 v4, v3
    ds_read_b32 v5, v20
    s_waitcnt lgkmcnt(0)
    v_sub_u32 v6, v4, v5
    v_cmp_gt_u32 vcc, 9, v0
    v_cndmask_b32 v4, v4, v6, vcc
    v_cmp_gt_u32 vcc, 16, v0
    s_and_b64 exec, exec, vcc
    s_cbranch_execz L_dg_exit
    buffer_store_dword v4, v3, s[12:15], 0 offen""")
    A.label("L_dg_exit")
    A("s_endpgm")
```

```python
from asm import *
import sys
NOMFMA = '--nomfma' in sys.argv
NODMA = '--nodma' in sys.argv
LOOK = int([a for a in sys.argv if a.startswith('--look=')][0][7:]) if any(a.startswith('--look=') for a in sys.argv) else 3
LBAR = int([a for a in sys.argv if a.startswith('--lbar=')][0][7:]) if any(a.startswith('--lbar=') for a in sys.argv) else None

WS_PQ = 0
WS_KVQ = 0x240000
WS_G = 0x250000
WS_BT = 0x260000
WS_END = 0x4A0000
WS_STAMP = 0x500000
WS_SIZE = 0x600000

S_X, S_W, S_WO, S_LOGA, S_AIM, S_CRE, S_CIM = 16, 18, 20, 24, 26, 28, 30
S_LOGDT, S_DSKIP, S_GATE, S_OUT, S_DBG, S_WS = 32, 34, 36, 38, 40, 42
SX, SW, SWS, SDBG, SG = 44, 48, 52, 56, 60
S_WAVE, S_RB, S_CG = 64, 65, 66
S_T0, S_T1, S_T2, S_T3 = 67, 68, 69, 70
S_ROT = 71
S_L2E = 73
S_EPS = 74
S_ST, S_SLOT, S_CNT, S_SX, S_SW, S_GB = 75, 76, 77, 78, 79, 82
S_MASK = 84

KV_RD, KV_LX, KV_ZX, KV_LR, KV_ZR = 4096, 4608, 5120, 5376, 5440
LOG2E = 0x3FB8AA3B
EPS = 0x358637BD
XB = 16384

def stamp(A, idx, stamps, last=None, srd_=None):
    if not stamps: return
    if last is None: last = idx == 6
    A(f"""s_memtime s[80:81]
    s_waitcnt lgkmcnt(0)
    v_writelane_b32 v255, s80, {idx}""")
    if last:
        A(f"""s_memrealtime s[80:81]
        s_waitcnt lgkmcnt(0)
        v_writelane_b32 v255, s80, 15
        s_mov_b64 exec, 0xffff
        buffer_store_dword v255, v254, {s(srd_ if srd_ else SWS,4)}, 0 offen
        s_mov_b64 exec, -1""")

def kwait(A, which, stamps):
    A("s_waitcnt lgkmcnt(0)")
    tab = {"x": (SX, S_X, 2048*1152), "w": (SW, S_W, 576*3456), "ws": (SWS, S_WS, WS_SIZE), "dbg": (SDBG, S_DBG, 256), "g": (SG, S_GATE, 1152)}
    for w in which: srd(A, tab[w][0], tab[w][1], tab[w][1] + 1, tab[w][2])

def stamp0(A, stamps):
    if not stamps: return
    srd(A, SWS, S_WS, S_WS + 1, WS_SIZE)
    A(f"""s_lshl_b32 s7, s2, 3
    s_add_u32 s7, s7, s{S_WAVE}
    s_lshl_b32 s7, s7, 6
    s_add_u32 s7, s7, {WS_STAMP}
    v_lshl_add_u32 v254, v0, 2, s7
    v_mov_b32 v255, 0
    v_writelane_b32 v255, s92, 0
    v_writelane_b32 v255, s94, 14""")

def touch(A, s_idx, ssm=False):
    if ssm:
        A(f"""s_mul_i32 s9, s{S_WAVE}, 9
        s_add_u32 s9, s9, s{s_idx}
        s_add_u32 s9, s9, 88""")
    else:
        A(f"""s_lshl_b32 s9, s{s_idx}, 2
        s_add_u32 s9, s9, s{S_WAVE}
        s_sub_u32 s9, s9, 40""")
    A(f"""s_mul_i32 s9, s9, {16*1152}
    s_mul_i32 s8, s3, 144
    s_add_u32 s9, s9, s8
    v_lshrrev_b32 v251, 2, v0
    v_mul_u32_u24 v251, 1152, v251
    v_and_b32 v252, 3, v0
    v_lshlrev_b32 v252, 6, v252
    v_min_u32 v252, 140, v252
    v_add_u32 v251, v251, v252""")

def phi(A, regs, tmp):
    n = len(regs)
    for i in range(n):
        A(f"v_fma_f32 v{tmp[i]}, v{regs[i]}, s{S_L2E}, -s{S_L2E}")
    for i in range(n):
        A(f"v_exp_f32 v{tmp[i]}, v{tmp[i]} clamp")
    for i in range(n):
        A(f"v_max_f32 v{regs[i]}, v{regs[i]}, v{tmp[i]}")
    for i in range(n):
        A(f"v_add_f32 v{regs[i]}, s{S_EPS}, v{regs[i]}")

def params(typ):
    kv = typ == "kv"
    PITCH = 288 if kv else 384
    STG = XB + 64 * PITCH
    return kv, PITCH, STG

GATE_LDS = 4 * (XB + 64 * 288)

def gen_compute(A, typ, stamps=False):
    kv, PITCH, STG = params(typ)
    NT = 5 if kv else 6
    L = LOOK
    RING = 5 if kv else 6
    V_ACC = 0
    V_A = V_ACC + 4 * NT * 4
    V_B = V_A + 32
    V_AD = V_B + RING * 4
    V_AA = V_AD
    V_TR = V_AD + 2
    V_AAc = V_AD + 6
    V_TRc = V_AD + 8
    V_LANE = V_AD + 12
    V_T = V_AD + 13
    V_FREE = V_T + 4
    acc = lambda rt, t: V_ACC + (rt * NT + t) * 4
    areg = lambda ks, rt: V_A + (ks * 4 + rt) * 4
    A(f"""s_getpc_b64 s[12:13]""")
    lab = A.newlabel("L_pcc")
    A.label(lab)
    A(f"""s_sub_u32 s12, s12, {lab}-L_pc0
    s_subb_u32 s13, s13, 0
    v_add_u32 v2, 32768, v2
    v_min_u32 v2, L_code_end-L_pc0-8, v2
    global_load_dword v253, v2, s[12:13]""")
    kwait(A, ["ws", "dbg"] if kv else ["ws"], stamps)
    stamp0(A, stamps)
    A(f"s_mov_b32 s{S_EPS}, {EPS:#x}")
    A(f"v_mov_b32 v{V_LANE}, v0")
    A(f"""s_lshr_b32 s{S_T0}, s{S_WAVE}, 1
    s_and_b32 s{S_T1}, s{S_WAVE}, 1""")
    i_, q, rp, cc = V_T, V_T + 1, V_T + 2, V_T + 3
    A(f"""v_and_b32 v{i_}, 15, v{V_LANE}
    v_lshrrev_b32 v{q}, 4, v{V_LANE}
    v_bfe_u32 v{rp}, v{V_LANE}, 2, 2
    v_and_b32 v{cc}, 3, v{V_LANE}
    s_lshl_b32 s{S_T2}, s{S_T0}, 13
    v_lshrrev_b32 v{V_AAc}, 1, v{i_}
    v_xor_b32 v{V_AAc}, v{V_AAc}, v{q}
    v_lshlrev_b32 v{V_AAc}, 4, v{V_AAc}
    v_lshl_add_u32 v{V_AAc}, v{i_}, 7, v{V_AAc}
    v_add_u32 v{V_AAc}, s{S_T2}, v{V_AAc}
    v_xor_b32 v{V_AAc+1}, 64, v{V_AAc}""")
    if kv:
        A(f"""s_mul_i32 s{S_T2}, s{S_T1}, 72
        s_add_u32 s{S_T2}, s{S_T2}, {XB}
        v_lshl_add_u32 v{i_}, v{q}, 3, v{rp}
        v_and_b32 v{V_TRc+1}, 1, v{q}
        v_lshlrev_b32 v{V_TRc+1}, 2, v{V_TRc+1}
        v_xor_b32 v{V_TRc}, v{i_}, v{V_TRc+1}
        v_xor_b32 v{V_TRc+1}, 4, v{V_TRc}
        v_mul_u32_u24 v{V_TRc}, 288, v{V_TRc}
        v_mul_u32_u24 v{V_TRc+1}, 288, v{V_TRc+1}
        v_add_u32 v{V_TRc}, s{S_T2}, v{V_TRc}
        v_add_u32 v{V_TRc+1}, s{S_T2}, v{V_TRc+1}
        v_mul_u32_u24 v{rp}, 144, v{cc}
        v_add_u32 v{rp}, 32, v{rp}
        v_add_u32 v{V_TRc+2}, v{V_TRc}, v{rp}
        v_add_u32 v{V_TRc+3}, v{V_TRc+1}, v{rp}
        v_lshl_add_u32 v{V_TRc}, v{cc}, 3, v{V_TRc}
        v_lshl_add_u32 v{V_TRc+1}, v{cc}, 3, v{V_TRc+1}
        v_cmp_lt_u32 {s(S_MASK,2)}, 1, v{cc}
        v_lshlrev_b32 v{i_}, 3, v{i_}
        v_add_u32 v{rp}, 32, v{i_}
        v_cndmask_b32 v{V_TRc+2}, v{V_TRc+2}, v{i_}, {s(S_MASK,2)}
        v_cndmask_b32 v{V_TRc+3}, v{V_TRc+3}, v{rp}, {s(S_MASK,2)}""")
        coloff = [0, 40, 144, 184]
    else:
        A(f"""v_lshl_add_u32 v{i_}, v{q}, 3, v{rp}
        v_mul_u32_u24 v{i_}, 384, v{i_}
        v_lshl_add_u32 v{i_}, v{cc}, 3, v{i_}
        v_add_u32 v{i_}, {XB}, v{i_}
        v_lshrrev_b32 v{rp}, 1, v{rp}
        v_and_b32 v{q}, 1, v{q}
        v_lshl_add_u32 v{q}, v{q}, 1, v{rp}
        s_mul_i32 s{S_T2}, s{S_T1}, 6""")
        for j in range(4):
            A(f"""s_add_u32 s{S_T3}, s{S_T2}, {j}
            s_and_b32 s{S_CNT}, s{S_T3}, 3
            s_lshr_b32 s{S_T3}, s{S_T3}, 2
            s_lshl_b32 s{S_T3}, s{S_T3}, 7
            v_xor_b32 v{rp}, s{S_CNT}, v{q}
            v_lshl_add_u32 v{V_TRc+j}, v{rp}, 5, v{i_}
            v_add_u32 v{V_TRc+j}, s{S_T3}, v{V_TRc+j}""")
    V_QO = V_FREE
    if not kv:
        V_FREE += 12
        c_, P_, m_, t_ = V_T, V_T + 1, V_T + 2, V_T + 3
        for t in range(NT):
            o0, o1 = V_QO + 2 * t, V_QO + 2 * t + 1
            A(f"""s_mul_i32 s{S_T2}, s{S_CG}, 48
            s_mul_i32 s{S_T3}, s{S_T1}, 24
            s_add_u32 s{S_T2}, s{S_T2}, s{S_T3}
            s_add_u32 s{S_T2}, s{S_T2}, {4*t}
            v_lshrrev_b32 v{c_}, 4, v{V_LANE}
            v_add_u32 v{c_}, s{S_T2}, v{c_}
            v_mul_u32_u24 v{P_}, 7282, v{c_}
            v_lshrrev_b32 v{P_}, 16, v{P_}
            v_mul_u32_u24 v{m_}, 9, v{P_}
            v_sub_u32 v{m_}, v{c_}, v{m_}
            v_lshrrev_b32 v{c_}, 2, v{P_}
            v_mul_u32_u24 v{c_}, 9216, v{c_}
            v_and_b32 v{t_}, 15, v{V_LANE}
            v_lshl_add_u32 v{c_}, v{t_}, 4, v{c_}
            v_and_b32 v{P_}, 3, v{P_}
            v_lshlrev_b32 v{o0}, 8, v{m_}
            v_cmp_lt_u32 vcc, 4, v{m_}
            v_subrev_u32 v{t_}, {5*256 - 8}, v{o0}
            v_lshl_add_u32 v{o1}, v{P_}, 8, v{c_}
            v_cndmask_b32 v{o0}, v{o0}, v{t_}, vcc
            v_lshl_add_u32 v{o0}, v{P_}, 10, v{o0}
            v_cmp_eq_u32 vcc, 4, v{m_}
            v_add_u32 v{o0}, v{o0}, v{c_}
            v_add_u32 v{o1}, 8192, v{o1}
            v_cndmask_b32 v{o0}, v{o0}, v{o1}, vcc
            v_mov_b32 v{t_}, 4096
            v_cndmask_b32 v{t_}, v{t_}, 8, vcc
            v_add_u32 v{o1}, v{o0}, v{t_}""")
    for rt in range(4):
        for t in range(NT):
            one = (t < 2) if kv else True
            for r in range(4):
                A(f"v_mov_b32 v{acc(rt,t)+r}, {'1.0' if one else '0'}")
    A(f"""s_mov_b32 s{S_SLOT}, 0
    s_mov_b32 s{S_ST}, s{S_ROT}
    s_mov_b32 s{S_CNT}, 0""")
    stamp(A, 1, stamps)
    items = [(ks, t) for ks in range(2) for t in range(NT)]
    N = len(items)
    LB = NT - 1 if LBAR is None else LBAR
    assert N % RING == 0 and RING >= L + 1 and LB >= L and LB <= NT
    def rdB(ri):
        ks, t = items[ri % N]
        b = V_B + (ri % RING) * 4
        ko = ks * 32 * PITCH
        if kv:
            if t < 4:
                return [f"ds_read_b64_tr_b16 {v(b,2)}, v{V_TR} offset:{ko+coloff[t]}",
                        f"ds_read_b64_tr_b16 {v(b+2,2)}, v{V_TR+1} offset:{ko+coloff[t]}"]
            return [f"ds_read_b64_tr_b16 {v(b,2)}, v{V_TR+2} offset:{ko}",
                    f"ds_read_b64_tr_b16 {v(b+2,2)}, v{V_TR+3} offset:{ko}"]
        return [f"ds_read_b64_tr_b16 {v(b,2)}, v{V_TR+(t&3)} offset:{ko+(t>>2)*128}",
                f"ds_read_b64_tr_b16 {v(b+2,2)}, v{V_TR+(t&3)} offset:{ko+(t>>2)*128+4*384}"]
    rdA = lambda ks: [f"ds_read_b128 {v(areg(ks,rt),4)}, v{V_AA+ks} offset:{2048*rt}" for rt in range(4)]
    updA = [f"v_add_u32 v{V_AA}, s{S_SLOT}, v{V_AAc}", f"v_add_u32 v{V_AA+1}, s{S_SLOT}, v{V_AAc+1}"]
    if kv:
        updB = [f"v_add_u32 v{V_TR}, s{S_SLOT}, v{V_TRc}", f"v_add_u32 v{V_TR+1}, s{S_SLOT}, v{V_TRc+1}"]
        updB2 = [f"v_add_u32 v{V_TR+2}, v{V_T}, v{V_TRc+2}", f"v_add_u32 v{V_TR+3}, v{V_T}, v{V_TRc+3}"]
        pre = [f"s_lshl_b32 s{S_GB}, s{S_ST}, 8", f"s_add_u32 s{S_GB}, s{S_GB}, {GATE_LDS}",
               f"v_mov_b32 v{V_T}, s{S_SLOT}", f"v_mov_b32 v{V_T+1}, s{S_GB}",
               f"v_cndmask_b32 v{V_T}, v{V_T}, v{V_T+1}, {s(S_MASK,2)}",
               f"s_add_u32 s{S_ST}, s{S_ST}, 1", f"s_cmp_eq_u32 s{S_ST}, 9", f"s_cselect_b32 s{S_ST}, 0, s{S_ST}"]
    else:
        updB = [f"v_add_u32 v{V_TR}, s{S_SLOT}, v{V_TRc}", f"v_add_u32 v{V_TR+1}, s{S_SLOT}, v{V_TRc+1}"]
        updB2 = [f"v_add_u32 v{V_TR+2}, s{S_SLOT}, v{V_TRc+2}", f"v_add_u32 v{V_TR+3}, s{S_SLOT}, v{V_TRc+3}"]
        pre = []
    advs = [f"s_add_u32 s{S_SLOT}, s{S_SLOT}, {STG}", f"s_cmp_eq_u32 s{S_SLOT}, {4*STG}", f"s_cselect_b32 s{S_SLOT}, 0, s{S_SLOT}"]
    fill = {i: [] for i in range(N)}
    for idx in range(N):
        f = []
        if idx == N - LB:
            f += [("x", "s_barrier")] + [("x", u) for u in updA] + [("A0", r) for r in rdA(0)]
        if idx == N - L:
            f += [("x", u) for u in updB]
        f += [(f"B{(idx+L)%N}", r) for r in rdB(idx + L)]
        if idx == N - L:
            f += [("x", u) for u in updB2]
        if idx == N - L + 1 or (L == 1 and idx == N - 1):
            f += [("x", u) for u in advs]
        if idx == 0:
            f += [("A1", r) for r in rdA(1)]
        if idx == 1:
            f += [("x", u) for u in pre]
        fill[idx] = f
    ops = []
    for idx in range(N):
        ks, t = items[idx]
        ops.append(("W", idx))
        f = list(fill[idx])
        per = -(-len(f) // 4)
        for rt in range(4):
            ops.append(("M", idx, rt))
            for _ in range(per):
                if f: ops.append(("F",) + f.pop(0))
    def wait_for(pos, tags):
        best = None
        for tag in tags:
            c = 0; p = pos - 1
            while True:
                o = ops[p % len(ops)]
                if o[0] == "F" and o[2].startswith("ds_"):
                    if o[1] == tag: break
                    c += 1
                p -= 1
            best = c if best is None else min(best, c)
        return best
    A("\n".join(pre)) if pre else None
    first = True
    for idx in range(N - LB, N):
        for tag, ins in fill[idx]:
            if tag.startswith("B") and int(tag[1:]) >= L: continue
            A(ins)
            if ins == "s_barrier": stamp(A, 2, stamps)
    lp = A.newlabel("L_gl")
    A.raw(".p2align 3")
    A.label(lp)
    for pos, o in enumerate(ops):
        if o[0] == "W":
            idx = o[1]; ks, t = items[idx]
            tags = [f"B{idx}"] + ([f"A{ks}"] if t == 0 else [])
            A(f"s_waitcnt lgkmcnt({min(wait_for(pos, tags), 15)})")
        elif o[0] == "M":
            idx, rt = o[1], o[2]; ks, t = items[idx]
            b = V_B + (idx % RING) * 4
            d = v(acc(rt, t), 4)
            if NOMFMA: continue
            if kv: A(f"v_mfma_f32_16x16x32_bf16 {d}, {v(areg(ks,rt),4)}, {v(b,4)}, {d}")
            else: A(f"v_mfma_f32_16x16x32_bf16 {d}, {v(b,4)}, {v(areg(ks,rt),4)}, {d}")
        else:
            A(o[2])
    A(f"""s_add_u32 s{S_CNT}, s{S_CNT}, 1
    s_cmp_lt_u32 s{S_CNT}, 9
    s_cbranch_scc1 {lp}""")
    stamp(A, 5, stamps)
    TMP = V_FREE + (V_FREE & 1)
    A("s_waitcnt lgkmcnt(0)")
    if not kv:
        A(f"""s_lshl_b32 s{S_T2}, s{S_RB}, 2
        s_lshl_b32 s{S_T3}, s{S_T0}, 1
        s_add_u32 s{S_T2}, s{S_T2}, s{S_T3}
        s_mul_i32 s{S_T2}, s{S_T2}, 36864""")
        k = 0
        for rt in range(4):
            for t0 in range(0, NT, 2):
                r0 = acc(rt, t0)
                tm = TMP + (k % 4) * 12; k += 1
                phi(A, [r0 + i for i in range(8)], [tm + i for i in range(8)])
                for i in range(4):
                    A(f"v_cvt_pk_bf16_f32 v{tm+8+i}, v{r0+2*i}, v{r0+2*i+1}")
                A(f"buffer_store_dwordx2 {v(tm+8,2)}, v{V_QO+2*t0+(rt&1)}, {s(SWS,4)}, s{S_T2} offen")
                A(f"buffer_store_dwordx2 {v(tm+10,2)}, v{V_QO+2*t0+2+(rt&1)}, {s(SWS,4)}, s{S_T2} offen")
            if rt == 1: A(f"s_add_u32 s{S_T2}, s{S_T2}, 36864")
        stamp(A, 6, stamps)
        A("s_endpgm")
        return
    F = lambda t, m: TMP + (t * 2 + m) * 4
    T2 = TMP + 48
    D = T2 + 16
    assert D + 28 <= 253
    def pack(t, dst):
        for rt in range(4):
            r0 = acc(rt, t)
            o = F(dst, rt >> 1) + 2 * (rt & 1)
            A(f"v_cvt_pk_bf16_f32 v{o}, v{r0}, v{r0+1}")
            A(f"v_cvt_pk_bf16_f32 v{o+1}, v{r0+2}, v{r0+3}")
    col, qq = V_T, V_T + 1
    FLA, FLV = V_AA, V_AA + 1
    A(f"""s_lshl_b32 s{S_T2}, s{S_CG}, 2
    v_mov_b32 v{FLA}, s{S_T2}
    buffer_load_dword v{FLV}, v{FLA}, {s(SDBG,4)}, 0 offen sc0 sc1""")
    A(f"""v_and_b32 v{col}, 15, v{V_LANE}
    v_lshrrev_b32 v{qq}, 4, v{V_LANE}
    v_cmp_gt_u32 vcc, 4, v{col}
    v_mov_b32 v{V_T+2}, 0x3f803f80""")
    pack(2, 2); pack(3, 3); pack(4, 5)
    for i in range(8):
        A(f"v_cndmask_b32 v{F(5,0)+i}, v{F(5,0)+i}, v{V_T+2}, vcc")
    for rt in range(4):
        for i in range(4): A(f"v_mul_f32 v{V_A+4*rt+i}, s{S_L2E}, v{acc(rt,4)+i}")
    for i in range(16): A(f"v_exp_f32 v{V_A+i}, -v{V_A+i}")
    for i in range(16): A(f"v_add_f32 v{V_A+i}, 1.0, v{V_A+i}")
    for i in range(16): A(f"v_rcp_f32 v{V_A+i}, v{V_A+i}")
    for rt in range(4):
        for i in range(4): A(f"v_add_f32 v{acc(rt,4)+i}, 1.0, v{acc(rt,4)+i}")
    for t, dst in [(4, 4), (0, 0), (1, 1)]:
        regs = [acc(rt, t) + i for rt in range(4) for i in range(4)]
        phi(A, regs, [T2 + i for i in range(16)])
        pack(t, dst)
    MM = lambda p: D + 4 * p
    MR = lambda p: D + 8 + 4 * p
    RM = lambda p: D + 16 + 4 * p
    RR = D + 24
    A("s_nop 1")
    for m in range(2):
        c = lambda r: "0" if m == 0 else v(r, 4)
        A(f"v_mfma_f32_16x16x32_bf16 {v(RR,4)}, {v(F(4,m),4)}, {v(F(5,m),4)}, {c(RR)}")
        for p in range(2):
            A(f"v_mfma_f32_16x16x32_bf16 {v(RM(p),4)}, {v(F(4,m),4)}, {v(F(2+p,m),4)}, {c(RM(p))}")
            A(f"v_mfma_f32_16x16x32_bf16 {v(MM(p),4)}, {v(F(p,m),4)}, {v(F(2+p,m),4)}, {c(MM(p))}")
            A(f"v_mfma_f32_16x16x32_bf16 {v(MR(p),4)}, {v(F(p,m),4)}, {v(F(5,m),4)}, {c(MR(p))}")
    a_mm, a_mr, a_rm, a_rr = T2, T2 + 1, T2 + 4, T2 + 5
    A(f"""s_mul_i32 s{S_T2}, s{S_T0}, 6144
    s_lshl_b32 s{S_T3}, s{S_T1}, 11
    s_add_u32 s{S_T3}, s{S_T3}, s{S_T2}
    v_lshl_add_u32 v{a_mm}, v{V_LANE}, 4, s{S_T3}
    s_lshl_b32 s{S_T3}, s{S_T1}, 8
    s_add_u32 s{S_T3}, s{S_T3}, s{S_T2}
    v_lshl_add_u32 v{a_rm}, v{V_LANE}, 4, s{S_T3}
    v_and_b32 v{T2+2}, 1, v{col}
    v_lshl_add_u32 v{T2+2}, s{S_T1}, 1, v{T2+2}
    v_lshlrev_b32 v{a_rr}, 3, v{T2+2}
    v_add_u32 v{a_rr}, {KV_ZR}, v{a_rr}
    v_lshlrev_b32 v{a_mr}, 4, v{T2+2}
    v_lshl_add_u32 v{a_mr}, v{qq}, 6, v{a_mr}
    v_add_u32 v{a_mr}, {KV_ZX}, v{a_mr}
    v_lshlrev_b32 v{T2+2}, 1, v{col}
    v_add_u32 v{T2+2}, s{S_T1}, v{T2+2}
    v_lshlrev_b32 v{T2+6}, 3, v{T2+2}
    v_add_u32 v{T2+6}, {KV_LR - 64}, v{T2+6}
    v_lshlrev_b32 v{T2+2}, 4, v{T2+2}
    v_lshl_add_u32 v{T2+2}, v{qq}, 7, v{T2+2}
    v_add_u32 v{T2+2}, {KV_LX - 128}, v{T2+2}
    v_cndmask_b32 v{a_mr}, v{T2+2}, v{a_mr}, vcc
    v_cndmask_b32 v{a_rr}, v{T2+6}, v{a_rr}, vcc
    v_add_u32 v{a_mr}, s{S_T2}, v{a_mr}
    v_add_u32 v{a_rr}, s{S_T2}, v{a_rr}""")
    lab = A.newlabel("L_nog")
    A(f"""s_or_b32 s{S_T3}, s{S_CG}, s{S_T1}
    s_cmp_lg_u32 s{S_T3}, 0
    s_cbranch_scc1 {lab}
    s_lshl_b32 s{S_T3}, s{S_RB}, 9
    s_lshl_b32 s{S_CNT}, s{S_T0}, 8
    s_add_u32 s{S_T3}, s{S_T3}, s{S_CNT}
    s_add_u32 s{S_T3}, s{S_T3}, {WS_G}
    v_lshlrev_b32 v{T2+3}, 4, v{qq}
    s_mov_b32 exec_lo, 0x01000100
    s_mov_b32 exec_hi, 0x01000100""")
    for rt in range(4):
        A(f"buffer_store_dwordx4 {v(V_A+4*rt,4)}, v{T2+3}, {s(SWS,4)}, s{S_T3} offen offset:{64*rt}")
    A("s_mov_b64 exec, -1")
    A.label(lab)
    A("s_barrier")
    for p in range(2):
        A(f"ds_write_b128 v{a_mm}, {v(MM(p),4)} offset:{1024*p}")
    for p in range(2):
        m16 = (1 << p) | (3 << (4 + 2 * p))
        m32 = m16 | (m16 << 16)
        A(f"""s_mov_b32 exec_lo, {m32:#x}
        s_mov_b32 exec_hi, {m32:#x}
        ds_write_b128 v{a_mr}, {v(MR(p),4)}
        s_mov_b32 exec_lo, {m16:#x}
        s_mov_b32 exec_hi, 0
        ds_write_b64 v{a_rr}, {v(RR+2*p,2)}""")
    A("s_mov_b32 exec_lo, 0xffff")
    for p in range(2):
        A(f"ds_write_b64 v{a_rm}, {v(RM(p)+2*p,2)} offset:{KV_RD + 8*p}")
    A("s_mov_b64 exec, -1")
    A("s_waitcnt lgkmcnt(0)")
    A("s_barrier")
    ta = T2
    A(f"""s_lshl_b32 s{S_T0}, s{S_WAVE}, 8
    v_lshl_add_u32 v{ta}, v{V_LANE}, 2, s{S_T0}
    s_mul_i32 s{S_T1}, s{S_CG}, 6144
    s_add_u32 s{S_T1}, s{S_T1}, {WS_KVQ}
    s_add_u32 s{S_T2}, s{S_T1}, 4096""")
    R = V_ACC
    for i in range(6):
        for c in range(2):
            A(f"ds_read_b32 v{R+2*i+c}, v{ta} offset:{c*6144 + i*1024}")
    lpp = A.newlabel("L_poll"); le = A.newlabel("L_pend")
    A(f"s_mov_b32 s{S_CNT}, 0")
    A.label(lpp)
    A(f"""s_waitcnt vmcnt(0)
    v_readfirstlane_b32 s{S_T3}, v{FLV}
    s_cmp_lg_u32 s{S_T3}, 0
    s_cbranch_scc1 {le}
    s_add_u32 s{S_CNT}, s{S_CNT}, 1
    s_cmp_gt_u32 s{S_CNT}, 0x100000
    s_cbranch_scc1 {le}
    buffer_load_dword v{FLV}, v{FLA}, {s(SDBG,4)}, 0 offen sc0 sc1
    s_branch {lpp}""")
    A.label(le)
    for k in range(6):
        A(f"s_waitcnt lgkmcnt({10-2*k})")
        A(f"""v_add_f32 v{R+2*k}, v{R+2*k}, v{R+2*k+1}
        buffer_atomic_add_f32 v{R+2*k}, v{ta}, {s(SWS,4)}, s{S_T1 if k < 4 else S_T2} offen offset:{1024*(k%4)}""")
    stamp(A, 6, stamps)
    A("s_endpgm")

def x_voffsets(A, regs, s_first, tmp):
    t0, t1 = tmp
    A(f"""v_lshrrev_b32 v{t0}, 4, v0
    v_and_b32 v{t1}, 7, v0
    v_xor_b32 v{t1}, v{t1}, v{t0}
    s_and_b32 s{S_T3}, s{s_first}, 1
    s_lshl_b32 s{S_T3}, s{S_T3}, 2
    v_xor_b32 v{t1}, s{S_T3}, v{t1}
    v_lshrrev_b32 v{t0}, 3, v0
    v_mul_u32_u24 v{t0}, 1152, v{t0}
    v_lshl_add_u32 v{t1}, v{t1}, 4, v{t0}
    s_mul_i32 s{S_T3}, s{s_first}, 9216
    s_add_u32 s{S_T3}, s{S_T3}, s{S_T2}
    v_add_u32 v{t1}, s{S_T3}, v{t1}
    v_xor_b32 v{t0}, 64, v{t1}""")
    for k, r in enumerate(regs):
        A(f"v_add_u32 v{r}, {9216*k - 1024*(k%4)}, v{t0 if k % 2 else t1}")

def loader_loop(A, typ, issue, NI, nbar_extra, hooks=None):
    kv, PITCH, STG = params(typ)
    hooks = hooks or {}
    issue(); issue()
    for n in range(9):
        if n in hooks: hooks[n][0]()
        allowed = NI if n + 1 <= 8 else 0
        A(f"s_waitcnt vmcnt({allowed})")
        A("s_barrier")
        if n in hooks and hooks[n][1]: hooks[n][1]()
        if n + 2 < 9: issue()
    for _ in range(nbar_extra): A("s_barrier")

def adv(A, STG):
    A(f"""s_add_u32 s{S_ST}, s{S_ST}, 1
    s_cmp_eq_u32 s{S_ST}, 9
    s_cselect_b32 s{S_ST}, 0, s{S_ST}
    s_add_u32 s{S_SLOT}, s{S_SLOT}, {STG}
    s_cmp_eq_u32 s{S_SLOT}, {4*STG}
    s_cselect_b32 s{S_SLOT}, 0, s{S_SLOT}""")

def gen_loader(A, typ, stamps=False):
    kv, PITCH, STG = params(typ)
    PPR = PITCH // 16
    NX = 3 if kv else 4
    S_J, S_XL, S_WL = 86, 87, 88
    A(f"s_sub_u32 s{S_J}, s{S_WAVE}, 4")
    A(f"s_mul_i32 s{S_T2}, s{S_RB}, {128*1152}")
    A(f"s_mul_i32 s{S_T0}, s{S_J}, {NX}")
    xr = [10 + k for k in range(NX)]
    x_voffsets(A, xr, S_T0, (4, 5))
    A(f"s_lshl_b32 s{S_XL}, s{S_T0}, 10")
    A(f"s_mul_i32 s{S_T1}, s{S_J}, 384")
    A(f"s_mul_i32 s{S_WL}, s{S_J}, 6144")
    A(f"s_add_u32 s{S_WL}, s{S_WL}, {XB}")
    if kv:
        A(f"s_mul_i32 s{S_T3}, s{S_CG}, 144")
        A(f"s_add_u32 s{S_T3}, s{S_T3}, 1152")
    else:
        A(f"s_mul_i32 s{S_T3}, s{S_CG}, 384")
    wr = [20 + i for i in range(6)]
    for i in range(6):
        p, sl, pc, o = 4, 5, 6, wr[i]
        A(f"v_add_u32 v{p}, s{S_T1}, v0")
        if i: A(f"v_add_u32 v{p}, {64*i}, v{p}")
        A(f"v_mul_u32_u24 v{sl}, {3641 if kv else 2731}, v{p}")
        A(f"v_lshrrev_b32 v{sl}, 16, v{sl}")
        A(f"v_mul_u32_u24 v{pc}, {PPR}, v{sl}")
        A(f"v_sub_u32 v{pc}, v{p}, v{pc}")
        if kv:
            A(f"""v_lshrrev_b32 v7, 1, v{sl}
            v_and_b32 v7, 4, v7
            v_xor_b32 v{sl}, v{sl}, v7
            v_mul_u32_u24 v{o}, 3456, v{sl}
            v_lshl_add_u32 v{o}, v{pc}, 4, v{o}
            v_cmp_lt_u32 vcc, 8, v{pc}
            v_add_u32 v7, {1152-144}, v{o}
            s_nop 0
            v_cndmask_b32 v{o}, v{o}, v7, vcc""")
        else:
            A(f"""v_bfe_u32 v7, v{sl}, 1, 1
            v_bfe_u32 v8, v{sl}, 3, 1
            v_lshl_add_u32 v7, v8, 1, v7
            v_lshlrev_b32 v7, 1, v7
            v_xor_b32 v{pc}, v{pc}, v7
            v_mul_u32_u24 v{o}, 3456, v{sl}
            v_lshl_add_u32 v{o}, v{pc}, 4, v{o}""")
        A(f"v_add_u32 v{o}, s{S_T3}, v{o}")
        if i % 4: A(f"v_subrev_u32 v{o}, {1024*(i%4)}, v{o}")
    A(f"s_mov_b32 s{S_SLOT}, 0\ns_mov_b32 s{S_ST}, s{S_ROT}")
    touch(A, 10)
    kwait(A, ["x"], stamps)
    if "--touch=0" not in sys.argv: A(f"buffer_load_dword v253, v251, {s(SX,4)}, s9 offen")
    kwait(A, ["w"], stamps)
    sub = A.newlabel("L_iss")
    def issue():
        A(f"""s_lshl_b32 s{S_SX}, s{S_ST}, 7
        s_mul_i32 s{S_SW}, s{S_ST}, 221184
        s_add_u32 m0, s{S_SLOT}, s{S_XL}
        s_add_u32 s{S_T0}, s{S_SLOT}, s{S_WL}""")
        for k in range(NX):
            A(f"buffer_load_dwordx4 v{xr[k]}, {s(SX,4)}, s{S_SX} offen offset:{1024*k} lds")
        A(f"s_mov_b32 m0, s{S_T0}\ns_add_u32 s{S_T0}, s{S_T0}, 4096")
        for i in range(4):
            A(f"buffer_load_dwordx4 v{wr[i]}, {s(SW,4)}, s{S_SW} offen offset:{1024*i} lds")
        A(f"s_mov_b32 m0, s{S_T0}\ns_nop 0")
        for i in range(4, 6):
            A(f"buffer_load_dwordx4 v{wr[i]}, {s(SW,4)}, s{S_SW} offen offset:{1024*(i-4)} lds")
        adv(A, STG)
    NI = NX + 6
    stamp0(A, stamps)
    stamp(A, 1, stamps)
    issue()
    if stamps:
        stamp(A, 2, stamps)
        for n in range(8):
            issue()
            A(f"s_waitcnt vmcnt({NI})\ns_barrier")
            stamp(A, 3 + n, stamps, last=False)
        A("s_waitcnt vmcnt(0)\ns_barrier")
        stamp(A, 11, stamps, last=True)
        A("s_endpgm")
        return
    A(f"s_mov_b32 s{S_CNT}, 0")
    lp = A.newlabel("L_ld")
    A.label(lp)
    issue()
    A(f"""s_waitcnt vmcnt({NI})
    s_barrier
    s_add_u32 s{S_CNT}, s{S_CNT}, 1
    s_cmp_lt_u32 s{S_CNT}, 8
    s_cbranch_scc1 {lp}
    s_waitcnt vmcnt(0)
    s_barrier""")
    stamp(A, 6, stamps)
    A("s_endpgm")

def gen_chore(A, stamps=False):
    kv, PITCH, STG = params("kv")
    NX = 7
    A(f"s_mul_i32 s{S_T2}, s{S_RB}, {128*1152}")
    A(f"s_mov_b32 s{S_T0}, 9")
    xr = [10 + k for k in range(NX)]
    x_voffsets(A, xr, S_T0, (4, 5))
    A(f"s_mov_b32 s{S_SLOT}, 0\ns_mov_b32 s{S_ST}, s{S_ROT}")
    def issue():
        A(f"""s_lshl_b32 s{S_SX}, s{S_ST}, 7
        s_add_u32 m0, s{S_SLOT}, 9216
        s_add_u32 s{S_T0}, s{S_SLOT}, {9216+4096}""")
        for k in range(4):
            A(f"buffer_load_dwordx4 v{xr[k]}, {s(SX,4)}, s{S_SX} offen offset:{1024*k} lds")
        A(f"s_mov_b32 m0, s{S_T0}\ns_nop 0")
        for k in range(4, 7):
            A(f"buffer_load_dwordx4 v{xr[k]}, {s(SX,4)}, s{S_SX} offen offset:{1024*(k-4)} lds")
        adv(A, STG)
    A(f"v_lshlrev_b32 v1, 1, v0")
    touch(A, 10)
    kwait(A, ["x"], stamps)
    if "--touch=0" not in sys.argv: A(f"buffer_load_dword v253, v251, {s(SX,4)}, s9 offen")
    kwait(A, ["g", "ws", "dbg"], stamps)
    stamp0(A, stamps)
    for i in range(9):
        A(f"buffer_load_ushort v{30+i}, v1, {s(SG,4)}, 0 offen offset:{128*i}")
    issue()
    A(f"""v_lshrrev_b32 v4, 5, v0
    v_mul_u32_u24 v4, 9216, v4
    v_and_b32 v5, 31, v0
    v_lshl_add_u32 v4, v5, 3, v4
    v_add_u32 v4, {GATE_LDS}, v4
    v_mov_b32 v40, 0
    v_mov_b32 v41, 0
    v_mov_b32 v42, 0
    v_mov_b32 v43, 0
    v_lshlrev_b32 v1, 4, v0
    s_lshl_b32 s{S_T0}, s{S_CG}, 2
    v_mov_b32 v3, s{S_T0}
    v_mov_b32 v2, 1
    s_mul_i32 s{S_T1}, s{S_CG}, 6144
    s_add_u32 s{S_T1}, s{S_T1}, {WS_KVQ}
    s_add_u32 s{S_T2}, s{S_T1}, 4096
    s_waitcnt vmcnt({NX})""")
    for i in range(9):
        A(f"ds_write_b16 v4, v{30+i} offset:{256*i}")
    l1 = A.newlabel("L_nz")
    A(f"""s_cmp_lg_u32 s{S_RB}, 0
    s_cbranch_scc1 {l1}""")
    for i in range(6):
        A(f"buffer_store_dwordx4 v[40:43], v1, {s(SWS,4)}, s{S_T1 if i < 4 else S_T2} offen offset:{1024*(i%4)} sc0 sc1")
    A.label(l1)
    A(f"s_mov_b32 s{S_CNT}, 0")
    A("s_waitcnt lgkmcnt(0)")
    lp = A.newlabel("L_ch")
    A.label(lp)
    issue()
    A(f"""s_waitcnt vmcnt({NX})
    s_barrier""")
    l2 = A.newlabel("L_nf")
    A(f"""s_or_b32 s{S_T0}, s{S_RB}, s{S_CNT}
    s_cmp_lg_u32 s{S_T0}, 0
    s_cbranch_scc1 {l2}
    s_mov_b64 exec, 1
    buffer_store_dword v2, v3, {s(SDBG,4)}, 0 offen sc0 sc1
    s_mov_b64 exec, -1""")
    A.label(l2)
    A(f"""s_add_u32 s{S_CNT}, s{S_CNT}, 1
    s_cmp_lt_u32 s{S_CNT}, 8
    s_cbranch_scc1 {lp}
    s_waitcnt vmcnt(0)
    s_barrier""")
    stamp(A, 6, stamps)
    A("s_endpgm")
```

```python
from asm import *
from auto import Auto
from l1gemm import WS_PQ, WS_KVQ, WS_G, WS_BT, WS_STAMP, WS_SIZE, EPS
from l1gemm import stamp
from l1gemm import KV_RD, KV_LX, KV_ZX, KV_LR, KV_ZR

import sys
def opt(name, default):
    for a_ in sys.argv:
        if a_.startswith(f"--{name}="): return a_.split("=", 1)[1]
    return default
GAP = int(opt("l2gap", "12"))

class Sprinkle:
    def __init__(self, A): self.A = A; self.q = []; self.c = 0; self.hold = False
    def __getattr__(self, n): return getattr(self.A, n)
    def push(self, grp, cost=1): self.q.append((grp, cost))
    def pop(self):
        grp, cost = self.q.pop(0)
        for ins, tag in grp: self.A.one(ins, tag=tag)
        self.c = -(cost - 1) * GAP
    def drain(self, tag=None):
        while self.q and (tag is None or any(t == tag for g, _ in self.q for _, t in g)): self.pop()
    def __call__(self, text):
        for ln in text.strip("\n").split("\n"):
            ln = ln.strip()
            if not ln: continue
            if ln.startswith("s_mov_b32 exec"): self.hold = True
            self.A.one(ln)
            if ln == "s_mov_b64 exec, -1": self.hold = False
            self.c += 2 if ln.startswith("v_mfma") else 1
            if self.q and self.c >= GAP and not self.hold: self.pop()
    def wait_vm_tag(self, tag):
        self.drain(tag); self.A.wait_vm_tag(tag)

def gen_l2(A0, stamps=False):
    A = Sprinkle(Auto(A0))
    SWO, SOUT, SWS = 12, 16, 20
    S_G, S_RB, S_CB, S_X = 24, 25, 26, 31
    T0, T1, T2, T3 = 27, 28, 29, 30
    S_KV = 32
    S_PQ = 36
    S_GO = 40
    S_WB = 44
    S_PR = 34
    S_OWN = 45
    S_BT = 3
    M = 46
    REG = 21504
    ws = s(SWS, 4)
    def st(idx):
        if not stamps: return
        A.one("s_waitcnt lgkmcnt(0)")
        stamp(A0, idx, stamps, last=(idx == 6), srd_=SWS)
        A.A.t += 3
    if stamps: A0("s_memtime s[92:93]\ns_memrealtime s[94:95]")
    A0(f"""s_cmp_ge_u32 s2, 256
    s_cbranch_scc1 L2_exit
    s_load_dwordx2 s[4:5], s[0:1], 16
    s_load_dwordx2 s[6:7], s[0:1], 88
    s_load_dwordx2 s[8:9], s[0:1], 104""")
    A(f"""v_lshrrev_b32 v1, 6, v0
    v_and_b32 v0, 63, v0
    v_readfirstlane_b32 s{S_G}, v1
    s_and_b32 s3, s2, 7
    s_lshr_b32 s10, s2, 3
    s_and_b32 s{T0}, s3, 3
    s_lshl_b32 s{T0}, s{T0}, 3
    s_and_b32 s{T1}, s10, 7
    s_add_u32 s{S_RB}, s{T0}, s{T1}
    s_lshr_b32 s{T0}, s3, 2
    s_lshl_b32 s{T0}, s{T0}, 2
    s_lshr_b32 s{T1}, s10, 3
    s_add_u32 s{S_CB}, s{T0}, s{T1}
    s_xor_b32 s{S_X}, s{S_G}, s{T1}""")
    I16, Q = 1, 2
    V16, VRD, VLX, VLR, VZX, VZR, VG = 3, 4, 5, 6, 7, 8, 9
    VW0, VWL, VWT0, VWT2 = 10, 11, 12, 13
    VT0, VT1, VT2 = 14, 15, 16
    VB0, VB1 = 17, 18
    DIAG = 20
    X0, X1, X2, X3 = 22, 23, 24, 25
    GV = 26
    EPSV = 30
    A1 = 34
    A1m = lambda hl: A1 + 4 * hl
    A1l = lambda k: A1 + 32 + 4 * k
    A1d = lambda T, k: A1 + 52 + 12 * T + 4 * k
    PE = lambda j, p: 110 + 20 * j + 4 * p
    TR = lambda b: 190 + 28 * b
    RRV = 246
    KT = 130
    KM = lambda hl: KT + 4 * hl
    RD, LX, ZX0, ZX1 = KT + 32, KT + 36, KT + 40, KT + 44
    LR, ZR0, ZR1 = KT + 48, KT + 50, KT + 52
    ACC3 = A1
    WOF = lambda p, t: 4 * (p * 5 + t)
    PQA = lambda j: 100 + 26 * j
    ACCA = lambda j, t: 196 + 20 * j + 4 * t
    pq = lambda j, off, n: a(PQA(j) + off, n)
    acc = lambda j, t: (v(ACC3 + 4 * t, 4) if j == 3 else a(ACCA(j, t), 4))
    A(f"""v_and_b32 v{I16}, 15, v0
    v_lshrrev_b32 v{Q}, 4, v0
    v_lshlrev_b32 v{V16}, 4, v0
    v_lshrrev_b32 v{X0}, 5, v0
    v_mul_u32_u24 v{X0}, {6144-512}, v{X0}
    v_add_u32 v{VRD}, v{X0}, v{V16}
    v_bfe_u32 v{X0}, v0, 1, 1
    v_mul_u32_u24 v{X0}, 6144, v{X0}
    v_and_b32 v{X1}, 1, v0
    v_lshrrev_b32 v{X2}, 2, v0
    v_lshl_add_u32 v{X2}, v{X2}, 1, v{X1}
    v_lshl_add_u32 v{VLX}, v{X2}, 4, v{X0}
    v_and_b32 v{X2}, 7, v{X2}
    v_lshl_add_u32 v{VLR}, v{X2}, 3, v{X0}
    v_and_b32 v{X0}, 3, v0
    v_lshlrev_b32 v{VZR}, 3, v{X0}
    v_lshlrev_b32 v{VZX}, 4, v{X0}
    v_lshl_add_u32 v{VZX}, v{Q}, 6, v{VZX}
    v_lshlrev_b32 v{VG}, 2, v{I16}
    s_mul_i32 s{S_KV}, s{S_G}, 12288
    s_add_u32 s{S_KV}, s{S_KV}, {WS_KVQ + 4096}
    s_add_u32 s{S_KV+1}, s{S_KV}, 6144
    s_sub_u32 s{T2}, s{S_KV}, 4096
    s_sub_u32 s{T3}, s{S_KV+1}, 4096
    s_mul_i32 s11, s{S_G}, 9216""")
    for j in range(4):
        A(f"""s_xor_b32 s{T0}, s{S_X}, {j}
        s_lshl_b32 s{T1}, s{S_RB}, 2
        s_add_u32 s{T0}, s{T0}, s{T1}
        s_lshl_b32 s{S_GO+j}, s{T0}, 6
        s_add_u32 s{S_GO+j}, s{S_GO+j}, {WS_G}
        s_lshr_b32 s{T1}, s{T0}, 1
        s_mul_i32 s{T1}, s{T1}, 36864
        s_add_u32 s{T1}, s{T1}, s11""")
        if j % 2 == 0: A(f"s_add_u32 s{S_PR+j//2}, s{T1}, 8192")
        if j == 3: A(f"s_mov_b32 s{S_OWN}, s{T0}")
        A(f"""s_and_b32 s{T0}, s{T0}, 1
        s_lshl_b32 s{T0}, s{T0}, 12
        s_add_u32 s{S_PQ+j}, s{T1}, s{T0}""")
    A0("s_waitcnt lgkmcnt(0)")
    srd(A0, SWS, 8, 9, WS_SIZE)
    if stamps:
        A(f"""s_lshl_b32 s{T0}, s2, 3
        s_add_u32 s{T0}, s{T0}, s{S_G}
        s_lshl_b32 s{T0}, s{T0}, 6
        s_add_u32 s{T0}, s{T0}, {WS_STAMP + 0x40000}
        v_lshl_add_u32 v254, v0, 2, s{T0}
        v_mov_b32 v255, 0
        v_writelane_b32 v255, s92, 0
        v_writelane_b32 v255, s94, 14""")
        st(1)
    A(f"""buffer_load_dwordx4 {v(ZX0,4)}, v{VZX}, {ws}, s{S_KV} offen offset:{KV_ZX-4096}
    buffer_load_dwordx4 {v(ZX1,4)}, v{VZX}, {ws}, s{S_KV+1} offen offset:{KV_ZX-4096}
    buffer_load_dwordx2 {v(ZR0,2)}, v{VZR}, {ws}, s{S_KV} offen offset:{KV_ZR-4096}
    buffer_load_dwordx2 {v(ZR1,2)}, v{VZR}, {ws}, s{S_KV+1} offen offset:{KV_ZR-4096}
    buffer_load_dwordx4 {v(LX,4)}, v{VLX}, {ws}, s{S_KV} offen offset:{KV_LX-4096}
    buffer_load_dwordx2 {v(LR,2)}, v{VLR}, {ws}, s{S_KV} offen offset:{KV_LR-4096}
    buffer_load_dwordx4 {v(RD,4)}, v{VRD}, {ws}, s{S_KV} offen offset:{KV_RD-4096}""")
    for hl in range(8):
        A(f"buffer_load_dwordx4 {v(KM(hl),4)}, v{V16}, {ws}, s{T2 if hl < 4 else T3} offen offset:{1024*(hl&3)}")
    A(f"buffer_load_dwordx4 {v(RRV,4)}, v{V16}, {ws}, s{S_PR} offen")
    def load_pq(j, defer=True):
        for p in range(4):
            ins = f"buffer_load_dwordx4 {pq(j,6*p+2,4)}, v{V16}, {ws}, s{S_PQ+j} offen offset:{1024*p}"
            if defer: A.push([(ins, f"pq{j}")])
            else: A.one(ins)
    load_pq(0, False)
    A.push([(f"buffer_load_dword v{GV+j}, v{VG}, {ws}, s{S_GO+j} offen", "pq1") for j in range(4)], 2)
    load_pq(1)
    A.push([(f"buffer_load_dwordx4 {v(RRV+4,4)}, v{V16}, {ws}, s{S_PR+1} offen", "pq2")])
    load_pq(2); load_pq(3)
    srd(A0, SWO, 4, 5, 576 * 1152)
    srd(A0, SOUT, 6, 7, 2048 * 1152)
    A(f"""v_lshrrev_b32 v{X0}, 3, v0
    v_bfe_u32 v{X1}, v0, 4, 1
    v_lshlrev_b32 v{X1}, 2, v{X1}
    v_and_b32 v{X2}, 7, v0
    v_xor_b32 v{X2}, v{X2}, v{X1}
    v_lshlrev_b32 v{X2}, 4, v{X2}
    v_mul_u32_u24 v{VW0}, 1152, v{X0}
    v_add_u32 v{VW0}, v{VW0}, v{X2}
    v_and_b32 v{X0}, 3, v{X0}
    v_mul_u32_u24 v{X0}, 36, v{X0}
    v_lshrrev_b32 v{X1}, 5, v0
    v_add3_u32 v{X0}, v{X0}, v{X1}, 16
    v_mul_u32_u24 v{VWL}, 1152, v{X0}
    v_add_u32 v{VWL}, v{VWL}, v{X2}
    v_mul_u32_u24 v{X0}, 36, v{X1}
    v_bfe_u32 v{X1}, v0, 4, 1
    v_mul_u32_u24 v{X1}, 20, v{X1}
    v_add3_u32 v{X0}, v{X0}, v{X1}, v{I16}
    v_mul_u32_u24 v{VWT0}, 1152, v{X0}
    v_and_b32 v{X0}, 3, v0
    v_mul_u32_u24 v{X0}, 36, v{X0}
    v_bfe_u32 v{X1}, v0, 2, 2
    v_add3_u32 v{X0}, v{X0}, v{X1}, 16
    v_mul_u32_u24 v{VWT2}, 1152, v{X0}
    s_mul_i32 s{S_WB}, s{S_G}, {REG}
    s_mul_i32 s11, s{S_G}, {144*1152}
    s_mul_i32 s{T1}, s{S_CB}, 144
    s_add_u32 s11, s11, s{T1}""")
    wo = s(SWO, 4)
    TW = 10
    def wo_main(i, tag):
        if i < 16: rc = 36 * (i >> 2) + 20 * ((i >> 1) & 1) + 8 * (i & 1); vo = VW0
        else: rc = 2 * (i & 1); vo = VWL
        A.push([(f"s_add_u32 m0, s{S_WB}, {1024*i}", None), (f"s_add_u32 s{TW}, s11, {rc*1152}", None),
                (f"buffer_load_dwordx4 v{vo}, {wo}, s{TW} offen lds", tag)])
    def wo_tail(k, tag):
        g = [(f"s_add_u32 m0, s{S_WB}, {18432 + 1024*k}", None), (f"s_add_u32 s{TW}, s11, {128 + (72*1152 if k == 1 else 0)}", None)]
        if k == 2: g.append(("s_mov_b64 exec, 0xffff", None))
        g.append((f"buffer_load_dwordx4 v{VWT2 if k == 2 else VWT0}, {wo}, s{TW} offen lds", tag))
        if k == 2: g.append(("s_mov_b64 exec, -1", None))
        A.push(g, 1 if k == 2 else 4)
    def wo_group(p):
        if p in (0, 2): wo_tail(p // 2, f"wo{p}")
        if p == 4: wo_tail(2, "wo4")
        for i in (range(4 * p, 4 * p + 4) if p < 4 else (16, 17)): wo_main(i, f"wo{p}")
    for p in range(5): wo_group(p)
    st(2)
    def mask64(f):
        m = 0
        for l in range(64):
            if f(l & 15, l >> 4): m |= 1 << l
        return m
    masks = {}
    def getmask(m):
        if m not in masks:
            r = M + 2 * len(masks); masks[m] = r
            assert r + 1 < 80
            A(f"s_mov_b32 s{r}, {m & 0xffffffff:#x}\ns_mov_b32 s{r+1}, {m >> 32:#x}")
        return s(masks[m], 2)
    def setexec(m):
        A(f"s_mov_b32 exec_lo, {m & 0xffffffff:#x}\ns_mov_b32 exec_hi, {m >> 32:#x}")
    for r in range(76): A(f"v_mov_b32 v{A1+r}, 0")
    for r in range(4): A(f"v_mov_b32 v{EPSV+r}, {EPS:#x}")
    A(f"""v_bfe_u32 v{X0}, v0, 2, 2
    v_lshl_add_u32 v{X0}, v{Q}, 2, v{X0}
    v_bfe_u32 v{X1}, v0, 3, 1
    v_lshlrev_b32 v{X1}, 2, v{X1}
    v_and_b32 v{X2}, 3, v0
    v_xor_b32 v{X1}, v{X1}, v{X2}
    v_lshlrev_b32 v{X1}, 4, v{X1}
    v_lshl_add_u32 v{VT0}, v{X0}, 7, v{X1}
    v_add_u32 v{VT0}, s{S_WB}, v{VT0}
    v_xor_b32 v{VT1}, 64, v{VT0}
    v_and_b32 v{X1}, 1, v0
    v_lshlrev_b32 v{X1}, 3, v{X1}
    v_lshl_add_u32 v{VT2}, v{X0}, 4, v{X1}
    v_add_u32 v{VT2}, s{S_WB}, v{VT2}
    v_bfe_u32 v{X0}, v0, 2, 2
    v_lshl_add_u32 v{X1}, v{X0}, 3, v{X2}
    v_lshlrev_b32 v{X1}, 12, v{X1}
    v_lshl_add_u32 v{VB0}, v{Q}, 8, v{X1}
    v_and_b32 v{X0}, 1, v{X0}
    v_lshl_add_u32 v{X1}, v{X0}, 2, v{X2}
    v_lshlrev_b32 v{X1}, 12, v{X1}
    v_lshl_add_u32 v{VB1}, v{Q}, 8, v{X1}
    s_mul_i32 s{T0}, s{S_CB}, {72*4096}
    s_and_b32 s{T2}, s{S_OWN}, 15
    s_lshl_b32 s{T2}, s{T2}, 4
    s_add_u32 s{T0}, s{T0}, s{T2}
    s_lshr_b32 s{T2}, s{S_OWN}, 5
    s_lshl_b32 s{T2}, s{T2}, 10
    s_add_u32 s{T0}, s{T0}, s{T2}
    s_bfe_u32 s{T2}, s{S_OWN}, 0x10004
    s_lshl_b32 s{T2}, s{T2}, 3
    s_add_u32 s{T0}, s{T0}, s{T2}
    s_add_u32 s{S_BT}, s{T0}, {WS_BT}
""")
    A.one(f"s_bitcmp1_b32 s{S_X}, 0"); A.one("s_cselect_b64 s[78:79], -1, 0")
    MSW = "s[78:79]"
    for T in range(2):
        ZX, ZR = (ZX0, ZR0) if T == 0 else (ZX1, ZR1)
        A(f"""v_cvt_pk_bf16_f32 v{ZX}, v{ZX}, v{ZX+1}
        v_cvt_pk_bf16_f32 v{ZX+1}, v{ZX+2}, v{ZX+3}
        v_cvt_pk_bf16_f32 v{ZR}, v{ZR}, v{ZR+1}""")
        for ro, (k, h) in enumerate([(0, 1), (1, 0), (2, 0), (2, 1)]):
            m = getmask(mask64(lambda i, q: (i & 3) == ro))
            for x in range(2):
                A(f"v_cndmask_b32 v{A1d(T,k)+2*h+x}, 0, v{ZX+x}, {m}")
        for par in range(2):
            setexec(mask64(lambda i, q: (i & 1) == par and q == 2 * T + ((i & 3) >> 1)))
            A(f"v_mov_b32 v{A1d(T,0)+par}, v{ZR}")
        A("s_mov_b64 exec, -1")
    A(f"""v_cvt_pk_bf16_f32 v{LX}, v{LX}, v{LX+1}
    v_cvt_pk_bf16_f32 v{LX+1}, v{LX+2}, v{LX+3}
    v_cvt_pk_bf16_f32 v{LR}, v{LR}, v{LR+1}
    v_cvt_pk_bf16_f32 v{RD}, v{RD}, v{RD+1}
    v_cvt_pk_bf16_f32 v{RD+1}, v{RD+2}, v{RD+3}""")
    for p in range(4):
        for par in range(2):
            setexec(mask64(lambda i, q: (i & 3) == p and (i >> 3) == par))
            A(f"v_mov_b32 v{A1l(p)+2*par}, v{LX}\nv_mov_b32 v{A1l(p)+2*par+1}, v{LX+1}")
    for par in range(2):
        setexec(mask64(lambda i, q: q == (i & 3) and (i >> 3) == par))
        A(f"v_mov_b32 v{A1l(4)+par}, v{LR}")
    for p in range(4):
        setexec(0xffff << (16 * p))
        A(f"v_mov_b32 v{A1m(2*p)}, v{RD}\nv_mov_b32 v{A1m(2*p+1)+3}, v{RD+1}")
    A("s_mov_b64 exec, -1")
    for hl in range(8):
        mh = 2 if hl % 2 == 0 else 0
        A(f"""v_cvt_pk_bf16_f32 v{A1m(hl)+mh}, v{KM(hl)}, v{KM(hl)+1}
        v_cvt_pk_bf16_f32 v{A1m(hl)+mh+1}, v{KM(hl)+2}, v{KM(hl)+3}""")
    for t in range(5):
        if t < 4: off = (32 * (t >> 1) + 4 * (t & 1)) * 4096; vo = VB0
        else: off = 64 * 4096; vo = VB1
        A.push([(f"s_add_u32 s{TW}, s{S_BT}, {off}", None),
                (f"buffer_load_dwordx2 {a(WOF(4,t)+2,2)}, v{vo}, {ws}, s{TW} offen", "bt")], 4)
    mhi = getmask(mask64(lambda i, q: q >= 2))
    def rcopy(j):
        b = RRV + 4 * (j >> 1)
        lo, hi = (b, b + 2) if j % 2 == 0 else (b + 2, b)
        o = [f"v_cndmask_b32 v{X0+x}, v{lo+x}, v{hi+x}, {MSW}" for x in range(2)]
        for c in range(5):
            for x in range(2): o.append(f"v_accvgpr_write_b32 a{PQA(j)+6*c+x}, v{X0+x}")
        return o
    st(3)
    NUM = lambda j, hl: PE(j, hl >> 1) if hl % 2 == 0 else TR(j & 1) + 4 * (hl >> 1)
    NL = lambda j: PE(j, 4)
    DEN = lambda j: TR(j & 1) + 16
    SEL = lambda j: TR(j & 1) + 24
    def S1(j):
        o = []
        for T in range(2):
            for k in range(3):
                c = v(EPSV, 4) if k == 0 else v(DEN(j) + 4 * T, 4)
                o.append(f"v_mfma_f32_16x16x32_bf16 {v(DEN(j)+4*T,4)}, {v(A1d(T,k),4)}, {pq(j,12*T+4*k,4)}, {c}")
        for hl in range(8):
            p, par = hl >> 1, hl & 1
            o.append(f"v_mfma_f32_16x16x32_bf16 {v(NUM(j,hl),4)}, {v(A1m(hl),4)}, {pq(j,6*p+4*par,4)}, 0")
        o.append(f"v_mfma_f32_16x16x32_bf16 {v(NL(j),4)}, {v(A1l(4),4)}, {pq(j,0,4)}, 0")
        for p in range(4):
            o.append(f"v_mfma_f32_16x16x32_bf16 {v(NL(j),4)}, {v(A1l(p),4)}, {pq(j,6*p+2,4)}, {v(NL(j),4)}")
        return o
    def V1(j):
        o = []
        D = DEN(j)
        for h in range(8): o.append(f"v_rcp_f32 v{D+h}, v{D+h}")
        for h in range(8): o.append(f"v_mul_f32 v{D+h}, v{GV+j}, v{D+h}")
        for p in range(4): o.append(f"v_cndmask_b32 v{SEL(j)+p}, v{D+2*p}, v{D+2*p+1}, {mhi}")
        for hl in range(8):
            p, par = hl >> 1, hl & 1
            n = NUM(j, hl)
            for r in range(4): o.append(f"v_mul_f32 v{n+r}, v{D+hl}, v{n+r}")
            o.append(f"v_cvt_pk_bf16_f32 v{PE(j,p)+2*par}, v{n}, v{n+1}")
            o.append(f"v_cvt_pk_bf16_f32 v{PE(j,p)+2*par+1}, v{n+2}, v{n+3}")
        n = NL(j)
        for r in range(4): o.append(f"v_mul_f32 v{n+r}, v{SEL(j)+r}, v{n+r}")
        o.append(f"v_cvt_pk_bf16_f32 v{n}, v{n}, v{n+1}")
        o.append(f"v_cvt_pk_bf16_f32 v{n+1}, v{n+2}, v{n+3}")
        if j == 3:
            for x in range(2): o.append(f"v_mov_b32 v{n+2+x}, v{DIAG+x}")
        return o
    def S2(js, p):
        o = []
        for j in js:
            for t in range(5):
                c = "0" if p == 0 else acc(j, t)
                if p == 4 and j != 3:
                    o.append(f"v_mfma_f32_16x16x16_bf16 {acc(j,t)}, {a(WOF(p,t),2)}, {v(PE(j,p),2)}, {c}")
                else:
                    o.append(f"v_mfma_f32_16x16x32_bf16 {acc(j,t)}, {a(WOF(p,t),4)}, {v(PE(j,p),4)}, {c}")
        return o
    def wo_reads(p):
        o = []
        for t in range(5):
            for u in range(2):
                if p == 4 and u == 1: continue
                sl = 32 * p + 16 * u
                if t < 4:
                    o.append(f"ds_read_b64_tr_b16 {a(WOF(p,t)+2*u,2)}, v{VT0 if t < 2 else VT1} offset:{sl*128 + (t&1)*8}")
                else:
                    o.append(f"ds_read_b64_tr_b16 {a(WOF(p,t)+2*u,2)}, v{VT2} offset:{18432 + sl*16}")
        return o
    def interleave(ms, fs):
        per = -(-len(fs) // max(1, len(ms)))
        fs = list(fs)
        for m_ in ms:
            A(m_)
            for _ in range(per):
                if fs: A(fs.pop(0))
        for f_ in fs: A(f_)
    for x in rcopy(0): A(x)
    interleave(S1(0), rcopy(1))
    A.drain("pq2")
    interleave(S1(1), V1(0) + rcopy(2))
    A.drain("pq3")
    interleave(S1(2), V1(1) + rcopy(3))
    md0 = getmask(mask64(lambda i, q: q == (i >> 2) and (i & 2) == 0))
    md1 = getmask(mask64(lambda i, q: q == (i >> 2) and (i & 2) != 0))
    modd = getmask(mask64(lambda i, q: (i & 1) == 1))
    dg = [f"v_sub_f32 v{X2}, 1.0, v{GV+3}", f"v_cvt_pk_bf16_f32 v{X2}, v{X2}, 0", f"v_lshlrev_b32 v{X3}, 16, v{X2}",
          f"v_cndmask_b32 v{X2}, v{X2}, v{X3}, {modd}", f"v_cndmask_b32 v{DIAG}, 0, v{X2}, {md0}", f"v_cndmask_b32 v{DIAG+1}, 0, v{X2}, {md1}"]
    interleave(S1(3), V1(2) + dg)
    st(4)
    A.wait_vm_tag("wo1")
    for x in wo_reads(0): A(x)
    v13 = V1(3)
    interleave(S2((0, 1, 2), 0), wo_reads(1) + v13[:30])
    A.wait_vm_tag("wo4")
    interleave(S2((0, 1, 2), 1), wo_reads(2) + wo_reads(3) + wo_reads(4) + v13[30:45])
    A.drain()
    A(f"v_add_u32 v{X0}, s{S_WB}, v{V16}")
    wrj = lambda j: [f"ds_write_b128 v{X0}, {acc(j,t)} offset:{j*5120 + t*1024}" for t in range(5)]
    rest = lambda j: S2((j,), 2) + S2((j,), 3) + S2((j,), 4)
    interleave(rest(0), v13[45:])
    A("s_waitcnt lgkmcnt(0)")
    r1 = rest(1); r2 = rest(2)
    for x in r1[:5]: A(x)
    interleave(r1[5:], wrj(0))
    for x in r2[:5]: A(x)
    interleave(r2[5:], wrj(1))
    addr = []
    for j in range(3):
        addr += [f"s_xor_b32 s{T1}, s{S_G}, {j^3}", f"s_mul_i32 s{T1}, s{T1}, {REG}", f"v_add_u32 v{X1+j}, s{T1}, v{V16}"]
    addr += [f"s_mul_i32 s{T0}, s{S_OWN}, {16*1152}", f"s_mul_i32 s{T1}, s{S_CB}, 144", f"s_add_u32 s{T0}, s{T0}, s{T1}",
             f"v_mul_u32_u24 v{VRD}, 1152, v{I16}", f"v_lshl_add_u32 v{VLX}, v{Q}, 3, v{VRD}", f"v_lshl_add_u32 v{VRD}, v{Q}, 4, v{VRD}"]
    own = [x for p in range(5) for x in S2((3,), p)]
    interleave(own[:5], addr)
    interleave(own[5:15], wrj(2))
    A("s_waitcnt lgkmcnt(0)")
    A("s_barrier")
    RB = 110
    rds = [f"ds_read_b128 {v(RB+12*t+4*j,4)}, v{X1+j} offset:{j*5120 + t*1024}" for t in range(5) for j in range(3)]
    interleave(own[15:], rds)
    st(5)
    OUTR = 60
    for t in range(5):
        for r in range(4): A(f"v_add_f32 v{RB+12*t+r}, v{RB+12*t+r}, v{RB+12*t+4+r}")
        for r in range(4): A(f"v_add_f32 v{RB+12*t+r}, v{RB+12*t+r}, v{RB+12*t+8+r}")
    for t in range(5):
        for r in range(4): A(f"v_add_f32 v{ACC3+4*t+r}, v{ACC3+4*t+r}, v{RB+12*t+r}")
        A(f"v_cvt_pk_bf16_f32 v{OUTR+2*t}, v{ACC3+4*t}, v{ACC3+4*t+1}")
        A(f"v_cvt_pk_bf16_f32 v{OUTR+2*t+1}, v{ACC3+4*t+2}, v{ACC3+4*t+3}")
        if t in (1, 3):
            A(f"buffer_store_dwordx4 {v(OUTR+2*t-2,4)}, v{VRD}, {s(SOUT,4)}, s{T0} offen offset:{32*(t-1)}")
    A(f"""s_mov_b32 exec_hi, 0
    buffer_store_dwordx2 {v(OUTR+8,2)}, v{VLX}, {s(SOUT,4)}, s{T0} offen offset:128""")
    A("s_mov_b64 exec, -1")
    st(6)
    A0.label("L2_exit")
    A0("s_endpgm")
```

```python
from asm import *
from auto import Auto
from l1gemm import *
import struct, sys

def opt(name, default):
    for a_ in sys.argv:
        if a_.startswith(f"--{name}="): return a_.split("=", 1)[1]
    return default
TOUCH = int(opt("touch", "1"))
XPOS = int(opt("xpos", "1"))
PKN = int(opt("pkn", "99"))
PRIO = int(opt("prio", "2"))
XS = eval(opt("xs", "[[0,1,2,3],[4],[5],[6],[7]]"))

PADL = 288
XTP = (PADL + 2048) * 2
TP = 544
SCP = 16 * TP
XT0 = 8 * SCP
CNT = XT0 + 8 * XTP
KP = 2112
FIXP = 68
TAPD = {("2", 0): 8 * 74, ("2", 8): 8 * 80, ("2", 4): 8 * 86, ("2", 12): 8 * 92, ("3", 4): 8 * 98, ("3", 12): 8 * 108}
WT = [(0, 1, -16), (8, 1, -16), (4, 2, -16), (12, 2, -24), (4, 3, -16), (12, 4, -24)]

def wtable():
    out = []
    for (sg, hw, off) in WT:
        for l in range(64):
            r, q = l & 15, l >> 4
            el = [0x3f80 if abs(off + 8 * q + jj - (r - sg - 4)) <= hw else 0 for jj in range(8)]
            out += [el[2 * i] | (el[2 * i + 1] << 16) for i in range(4)]
    return out

def gen_ssm(A0, stamps=False):
    A = Auto(A0)
    S_SG, S_CH, S_SCR, S_XT = 65, 66, 75, 76
    S_K1024 = 77
    S_XR, S_ISB = 82, 83
    def st(idx):
        if stamps:
            A.one("s_waitcnt lgkmcnt(0)")
            stamp(A0, idx, stamps); A.t += 3
    A(f"""s_mul_i32 s{S_SG}, s3, 9
    s_add_u32 s{S_SG}, s{S_SG}, s4
    s_lshl_b32 s{S_CH}, s{S_SG}, 3
    s_add_u32 s{S_CH}, s{S_CH}, s{S_WAVE}
    s_lshl_b32 s{S_T0}, s{S_CH}, 8
    s_lshl_b32 s{S_T1}, s{S_CH}, 1""")
    V_TRd, V_XD, V_BX, V_ZX, V_TAPR, V_TAPW, V_K0W, V_K1W, V_KR, V_L16, V_SCRV, V_CNT, V_XG = range(1, 14)
    X0, X1, X2, X3 = 16, 17, 18, 19
    WC = 20
    ACC = 44
    TF = 76
    AF = 116
    BR = 188
    LF = 44
    HF = 76
    DA, DB, DC = 108, 112, 240
    pool = list(range(116, 196, 4)) + [228, 232, 236]
    def alloc(): return pool.pop(0)
    def free(r): pool.append(r)
    P_LA, P_AI, P_CR, P_CI, P_DT, P_DS = 244, 245, 246, 247, 248, 249
    touch(A0, 4, True)
    A(f"""v_lshl_add_u32 v{X0}, v0, 2, s{S_T0}
    v_mov_b32 v{X1}, s{S_T1}""")
    A0("s_waitcnt lgkmcnt(0)")
    A(f"""global_load_dword v{P_LA}, v{X0}, {s(S_LOGA,2)}
    global_load_ushort v{P_DT}, v{X1}, {s(S_LOGDT,2)}
    global_load_dword v{P_AI}, v{X0}, {s(S_AIM,2)}
    global_load_ushort v{P_DS}, v{X1}, {s(S_DSKIP,2)}
    global_load_dword v{P_CR}, v{X0}, {s(S_CRE,2)}
    global_load_dword v{P_CI}, v{X0}, {s(S_CIM,2)}""")
    kwait(A0, ["x", "ws"], stamps)
    if stamps:
        stamp0(A0, stamps)
    if TOUCH: A(f"buffer_load_dword v253, v251, {s(SX,4)}, s9 offen")
    Z4 = alloc()
    A(f"""v_mov_b32 v{Z4}, 0
    v_mov_b32 v{Z4+1}, 0
    v_mov_b32 v{Z4+2}, 0
    v_mov_b32 v{Z4+3}, 0
    v_mov_b32 v{V_CNT}, {CNT}
    ds_write_b32 v{V_CNT}, v{Z4}
    s_lshl_b32 s{S_T0}, s{S_SG}, 4
    v_mul_u32_u24 v{X2}, {8*1152}, v0
    v_add_u32 v{V_XG}, s{S_T0}, v{X2}
    s_add_u32 s{S_XR}, s4, s{S_WAVE}
    s_and_b32 s{S_XR}, s{S_XR}, 3
    s_lshr_b32 s{S_ISB}, s{S_WAVE}, 2
    s_waitcnt lgkmcnt(0)
    s_barrier""")
    def aonly(fn):
        lab = A0.newlabel("L_na")
        A(f"s_cmp_eq_u32 s{S_ISB}, 0")
        A0(f"s_cbranch_scc0 {lab}")
        fn()
        A0.label(lab)
    XL = 196
    S_XB0, S_XB1 = 86, 87
    def xload(ks, first=False):
        if not ks: return
        def f():
            if first:
                A0(f"s_mul_i32 s{S_XB0}, s{S_XR}, {512*1152}")
                A0(f"s_add_u32 s{S_XB1}, s{S_XB0}, {4*1152}")
            for k in ks:
                A0(f"buffer_load_dwordx4 {v(XL+4*k,4)}, v{V_XG}, {s(SX,4)}, s{S_XB0 if k < 4 else S_XB1} offen offset:{1152*(k%4)}")
        aonly(f)
    def pwait(n):
        l1 = A0.newlabel("L_pw"); l2 = A0.newlabel("L_pw")
        A0(f"""s_cmp_eq_u32 s{S_ISB}, 0
        s_cbranch_scc0 {l1}
        s_waitcnt vmcnt({n + TOUCH})
        s_branch {l2}""")
        A0.label(l1)
        A0(f"s_waitcnt vmcnt({TOUCH})")
        A0.label(l2)
        A.vm = []
    def xpose():
        PL, PH = 84, 85
        def f():
            A0(f"""s_mov_b32 s{PL}, 0x05040100
            s_mov_b32 s{PH}, 0x07060302
            s_lshl_b32 s{S_T3}, s{S_XR}, 10
            s_add_u32 s{S_T3}, s{S_T3}, {XT0 + 2*PADL}
            v_add_u32 v{V_XD}, s{S_T3}, v{V_L16}
            v_mov_b32 v{X2}, 1
            s_waitcnt vmcnt(0)""")
            for j in range(4):
                for hi in range(2):
                    o = 20 + 4 * ((2 * j + hi) % 4)
                    for k in range(4):
                        A0(f"v_perm_b32 v{o+k}, v{XL+8*k+4+j}, v{XL+8*k+j}, s{PH if hi else PL}")
                    A0(f"ds_write_b128 v{V_XD}, {v(o,4)} offset:{(2*j+hi)*XTP}")
            A0(f"""s_mov_b64 exec, 1
            ds_add_u32 v{V_CNT}, v{X2}
            s_mov_b64 exec, -1
            s_waitcnt lgkmcnt(0)""")
        A("s_waitcnt lgkmcnt(0)")
        aonly(f)
        A0("s_getpc_b64 s[78:79]")
        A0.label("L_ssm_pc")
        A(f"""s_add_u32 s78, s78, L_wtab-L_ssm_pc
        s_addc_u32 s79, s79, 0""")
        for i in range(6):
            if i == 4: A("s_add_u32 s78, s78, 4096\ns_addc_u32 s79, s79, 0")
            A(f"global_load_dwordx4 {v(WC+4*i,4)}, v{V_L16}, s[78:79] offset:{1024*(i%4)}")
    A(f"s_cmp_eq_u32 s{S_ISB}, 0")
    lab = A0.newlabel("L_np")
    A0(f"s_cbranch_scc0 {lab}\ns_setprio {PRIO}")
    A0.label(lab)
    xload(XS[0], True)
    I16, Q = X0, X1
    A(f"""v_lshlrev_b32 v{V_L16}, 4, v0
    s_mul_i32 s{S_SCR}, s{S_WAVE}, {SCP}
    s_mov_b32 m0, s{S_SCR}
    s_mul_i32 s{S_XT}, s{S_WAVE}, {XTP}
    s_add_u32 s{S_XT}, s{S_XT}, {XT0}
    v_and_b32 v{I16}, 15, v0
    v_lshrrev_b32 v{Q}, 4, v0
    v_mul_u32_u24 v{V_TRd}, {TP}, v{I16}
    v_lshl_add_u32 v{V_TRd}, v{Q}, 4, v{V_TRd}
    v_add_u32 v{V_TRd}, s{S_SCR}, v{V_TRd}
    v_add_u32 v{V_SCRV}, s{S_SCR}, v{V_L16}""")
    A(f"""v_lshlrev_b32 v{V_BX}, 5, v{I16}
    v_lshl_add_u32 v{V_BX}, v{Q}, 4, v{V_BX}
    s_add_u32 s{S_T0}, s{S_XT}, {2*(PADL-256-16)}
    v_add_u32 v{V_BX}, s{S_T0}, v{V_BX}""")
    A(f"""v_and_b32 v{X2}, 3, v0
    v_bfe_u32 v{X3}, v0, 2, 2
    v_lshl_add_u32 v{V_ZX}, v{X2}, 2, v{X3}
    v_lshlrev_b32 v{V_ZX}, 5, v{V_ZX}
    v_lshl_add_u32 v{V_ZX}, v{Q}, 4, v{V_ZX}
    s_add_u32 s{S_T0}, s{S_XT}, {2*(PADL-24)}
    v_add_u32 v{V_ZX}, s{S_T0}, v{V_ZX}""")
    A(f"""v_sub_u32 v{V_TAPR}, v{X2}, v{X3}
    v_lshlrev_b32 v{V_TAPR}, 3, v{V_TAPR}
    v_sub_u32 v{X2}, 4, v{Q}
    v_and_b32 v{X2}, 3, v{X2}
    v_mul_u32_u24 v{X2}, {KP}, v{X2}
    v_min_u32 v{X3}, 1, v{Q}
    v_lshlrev_b32 v{X3}, 3, v{X3}
    v_sub_u32 v{X2}, v{X2}, v{X3}
    s_add_u32 s{S_T0}, s{S_SCR}, 1024
    v_add3_u32 v{V_TAPR}, v{V_TAPR}, v{X2}, s{S_T0}""")
    A(f"""v_lshrrev_b32 v{X2}, 1, v{Q}
    v_lshrrev_b32 v{X3}, 2, v{I16}
    v_lshl_add_u32 v{X3}, v{X3}, 1, v{X2}
    v_mul_u32_u24 v{X3}, 96, v{X3}
    v_and_b32 v{V_TAPW}, 3, v{I16}
    v_lshl_add_u32 v{X3}, v{V_TAPW}, 4, v{X3}
    v_mul_u32_u24 v{V_TAPW}, 160, v{X2}
    v_lshl_add_u32 v{V_TAPW}, v{I16}, 4, v{V_TAPW}
    v_add_u32 v{V_TAPW}, {2*TAPD[('3',4)] - 2*TAPD[('2',0)] - 128}, v{V_TAPW}
    v_cmp_gt_u32 vcc, 8, v{I16}
    v_cndmask_b32 v{V_TAPW}, v{V_TAPW}, v{X3}, vcc
    v_and_b32 v{X3}, 1, v{Q}
    v_lshl_add_u32 v{V_TAPW}, v{X3}, 3, v{V_TAPW}
    s_add_u32 s{S_T0}, s{S_SCR}, {2*TAPD[('2',0)]}
    v_add_u32 v{V_TAPW}, s{S_T0}, v{V_TAPW}""")
    A(f"""v_and_b32 v{V_K1W}, 7, v{I16}
    v_lshlrev_b32 v{V_K1W}, 1, v{V_K1W}
    v_lshrrev_b32 v{V_K0W}, 3, v{I16}
    v_add_u32 v{V_K1W}, v{V_K1W}, v{V_K0W}
    v_lshlrev_b32 v{V_K1W}, 4, v{V_K1W}
    v_lshl_add_u32 v{V_K0W}, v{X2}, 8, v{V_K1W}
    v_lshl_add_u32 v{V_K0W}, v{X3}, 3, v{V_K0W}
    s_add_u32 s{S_T0}, s{S_SCR}, 1080
    v_sub_u32 v{V_K0W}, s{S_T0}, v{V_K0W}
    v_lshl_add_u32 v{V_K1W}, v{Q}, 8, v{V_K1W}
    s_add_u32 s{S_T0}, s{S_SCR}, {2*278}
    v_sub_u32 v{V_K1W}, s{S_T0}, v{V_K1W}""")
    A(f"""v_sub_u32 v{X2}, 15, v{I16}
    v_and_b32 v{X3}, 3, v{X2}
    v_mul_u32_u24 v{V_KR}, {KP}, v{X3}
    v_lshrrev_b32 v{X2}, 2, v{X2}
    v_lshl_add_u32 v{V_KR}, v{X2}, 3, v{V_KR}
    v_lshl_add_u32 v{V_KR}, v{Q}, 4, v{V_KR}
    v_add_u32 v{V_KR}, s{S_SCR}, v{V_KR}""")
    A(f"""v_add_u32 v{X2}, s{S_XT}, v{V_L16}
    s_mov_b32 exec_hi, 0xf
    ds_write_b128 v{X2}, {v(Z4,4)}
    s_mov_b64 exec, -1""")
    st(1)
    pwait(len(XS[0]))
    st(10)
    INV2PI = "0.15915494"
    zr, zi = alloc(), alloc()
    DT = zr + 2
    A(f"""v_lshlrev_b32 v{zr}, 16, v{P_LA}
    v_and_b32 v{zr+1}, 0xffff0000, v{P_LA}
    v_lshlrev_b32 v{DT}, 16, v{P_DT}
    v_mul_f32 v{zr}, s{S_L2E}, v{zr}
    v_mul_f32 v{zr+1}, s{S_L2E}, v{zr+1}
    v_mul_f32 v{DT}, s{S_L2E}, v{DT}
    v_exp_f32 v{zr}, v{zr}
    v_exp_f32 v{zr+1}, v{zr+1}
    v_exp_f32 v{DT}, v{DT}
    v_lshlrev_b32 v{zi}, 16, v{P_AI}
    v_and_b32 v{zi+1}, 0xffff0000, v{P_AI}
    v_cvt_pk_bf16_f32 v{zr+1}, v{zr}, v{zr+1}
    v_cvt_pk_bf16_f32 v{DT}, v{DT}, v{DT}
    v_lshlrev_b32 v{zr}, 16, v{zr+1}
    v_and_b32 v{zr+1}, 0xffff0000, v{zr+1}
    v_and_b32 v{DT}, 0xffff0000, v{DT}
    v_mul_f32 v{zr}, v{zr}, v{DT}
    v_mul_f32 v{zr+1}, v{zr+1}, v{DT}
    v_mul_f32 v{zi}, v{zi}, v{DT}
    v_mul_f32 v{zi+1}, v{zi+1}, v{DT}
    v_mul_f32 v{zr}, s{S_L2E}, v{zr}
    v_mul_f32 v{zr+1}, s{S_L2E}, v{zr+1}
    v_mul_f32 v{zi}, {INV2PI}, v{zi}
    v_mul_f32 v{zi+1}, {INV2PI}, v{zi+1}
    v_add_f32 v{DT}, v{DT}, v{DT}""")
    def direct(p):
        e = alloc(); t = alloc()
        pf = struct.unpack("<I", struct.pack("<f", float(p)))[0]
        for x in range(2):
            A(f"v_mul_f32 v{t+x}, {pf:#x}, v{zr+x}")
            A(f"v_mul_f32 v{t+2+x}, {pf:#x}, v{zi+x}")
        for x in range(2):
            A(f"v_exp_f32 v{t+x}, -v{t+x}")
            A(f"v_fract_f32 v{t+2+x}, v{t+2+x}")
        for x in range(2):
            A(f"v_cos_f32 v{e+2*x}, v{t+2+x}")
            A(f"v_sin_f32 v{e+2*x+1}, v{t+2+x}")
        for x in range(2):
            A(f"v_mul_f32 v{e+2*x}, v{t+x}, v{e+2*x}")
            A(f"v_mul_f32 v{e+2*x+1}, v{t+x}, v{e+2*x+1}")
        free(t)
        return e
    pend = []
    def drain(stage):
        if not pend: return
        if stage == 0:
            for x in pend[0][0]: A(x)
            pend[0] = ([], pend[0][1])
        else:
            c, w_ = pend.pop(0)
            for x in c: A(x)
            for x in w_: A(x)
    def flush_puts():
        while pend: drain(1)
    ncm = [0]
    def cmul(a_, b_):
        d = alloc()
        ncm[0] += 1
        if ncm[0] <= PKN:
            for x in (0, 2): A(f"v_pk_mul_f32 {v(d+x,2)}, {v(a_+x,2)}, {v(b_+x,2)} op_sel:[1,1] op_sel_hi:[1,0]")
            drain(0)
            for x in (0, 2): A(f"v_pk_fma_f32 {v(d+x,2)}, {v(a_+x,2)}, {v(b_+x,2)}, {v(d+x,2)} op_sel:[0,0,0] op_sel_hi:[0,1,1] neg_lo:[0,0,1]")
            drain(1)
        else:
            for x in (0, 2): A(f"v_mul_f32 v{d+x}, v{a_+x}, v{b_+x}")
            for x in (0, 2): A(f"v_mul_f32 v{d+x+1}, v{a_+x+1}, v{b_+x}")
            drain(0)
            for x in (0, 2): A(f"v_fma_f32 v{d+x}, -v{a_+x+1}, v{b_+x+1}, v{d+x}")
            for x in (0, 2): A(f"v_fmac_f32 v{d+x+1}, v{a_+x}, v{b_+x+1}")
            drain(1)
        return d
    wtmp = [alloc(), alloc()]
    wk = [0]
    def wr(w, row):
        return [f"ds_write_addtid_b32 v{w} offset:{row*TP}", f"ds_write_addtid_b32 v{w+1} offset:{row*TP+256}"]
    def put(e, row, neg=False):
        w = wtmp[(wk[0] >> 1) & 1] + 2 * (wk[0] & 1); wk[0] += 1
        n = "-" if neg else ""
        while len(pend) >= 2: drain(1)
        pend.append(([f"v_cvt_pk_bf16_f32 v{w}, v{e}, {n}v{e+1}", f"v_cvt_pk_bf16_f32 v{w+1}, v{e+2}, {n}v{e+3}"], wr(w, row)))
    def rdfr(base):
        flush_puts()
        for ks in range(8):
            A(f"ds_read_b128 {v(base+4*ks,4)}, v{V_TRd} offset:{64*ks}")
    def mm(D, swap):
        for ks in range(8):
            a_, b_ = (LF, HF) if swap else (HF, LF)
            A(f"v_mfma_f32_16x16x32_bf16 {v(D,4)}, {v(a_+4*ks,4)}, {v(b_+4*ks,4)}, {'0' if ks == 0 else v(D,4)}")
    R8 = direct(8)
    L = alloc()
    A(f"""v_lshlrev_b32 v{L}, 16, v{P_CR}
    v_lshlrev_b32 v{L+1}, 16, v{P_CI}
    v_and_b32 v{L+2}, 0xffff0000, v{P_CR}
    v_and_b32 v{L+3}, 0xffff0000, v{P_CI}""")
    for x in range(4): A(f"v_mul_f32 v{L+x}, v{DT}, v{L+x}")
    for j in range(16):
        if j == 2: xload(XS[1])
        if j == 10: xload(XS[2])
        put(L, (j >> 1) + 8 * (j & 1), neg=True)
        if j < 15:
            n_ = cmul(L, R8); free(L); L = n_
    free(L)
    rdfr(LF)
    st(2)
    xload(XS[3])
    E1 = direct(1)
    G1 = direct(128)
    A(f"v_mov_b32 v{X2}, 0x3f80")
    A(f"ds_write_addtid_b32 v{X2}\nds_write_addtid_b32 v{X2} offset:256")
    put(G1, 8)
    H = {1: E1, 8: R8}
    for i in range(1, 8):
        if i == 2: xload(XS[4])
        if i > 1: H[i] = cmul(H[i-1], E1)
        put(H[i], i)
        t = cmul(H[i], G1); put(t, 8 + i); free(t)
        if i - 1 in (3, 5): free(H[i-1])
    free(H[7])
    rdfr(HF)
    if XPOS == 2: xpose()
    G2 = cmul(G1, G1); G3 = cmul(G2, G1); G4 = cmul(G3, G1)
    put(G2, 8)
    for gi, G in enumerate((G2, G3)):
        for k, i in enumerate((2, 4, 6, 8)):
            t = cmul(H[i], G); put(t, 4 * gi + k); free(t)
        if gi == 0: mm(DA, False)
    rdfr(HF)
    free(G2); free(G3); free(H[2]); free(H[6]); free(E1)
    if XPOS == 0: xpose()
    P = cmul(G4, H[4]); Qv = cmul(G4, R8)
    free(G4); free(H[4]); free(R8)
    for h in range(12):
        if h < 4:
            put(P, h)
            if h < 3: n_ = cmul(P, G1); free(P); P = n_
        put(Qv, 4 + h)
        if h < 11: n_ = cmul(Qv, G1); free(Qv); Qv = n_
        if h == 2: mm(DB, False)
    rdfr(HF)
    st(3)
    A(f"ds_write_b128 v{V_SCRV}, {v(Z4,4)}")
    A(f"ds_write_b128 v{V_SCRV}, {v(Z4,4)} offset:1024")
    PA, PB, PC = 228, 232, 236
    A(f"""v_lshlrev_b32 v{X2}, 16, v{P_DS}
    s_mov_b64 exec, 1
    v_add_f32 v{DA}, v{DA}, v{X2}
    s_mov_b64 exec, -1
    v_cvt_pk_bf16_f32 v{PA}, v{DA+3}, v{DA+2}
    v_cvt_pk_bf16_f32 v{PA+1}, v{DA+1}, v{DA}
    v_cvt_pk_bf16_f32 v{PB}, v{DB+3}, v{DB+3}
    v_cvt_pk_bf16_f32 v{PB+1}, v{DB+3}, v{DB+2}
    v_cvt_pk_bf16_f32 v{PB+2}, v{DB+1}, v{DB+1}
    v_cvt_pk_bf16_f32 v{PB+3}, v{DB+1}, v{DB}
    v_cvt_pk_bf16_f32 v{PA+2}, v{DB}, v{DB}
    v_mov_b32 v{X3}, s{S_SCR}""")
    mm(DC, True)
    A(f"""ds_write_b64 v{V_K0W}, {v(PA,2)}
    s_mov_b32 exec_hi, 0
    ds_write2_b32 v{V_K1W}, v{PB}, v{PB+1} offset0:0 offset1:1
    ds_write2_b32 v{V_K1W}, v{PB+2}, v{PB+3} offset0:2 offset1:3
    s_mov_b32 exec_lo, 0x80000000
    ds_write_b16 v{X3}, v{PB} offset:58
    s_mov_b32 exec_lo, 0
    s_mov_b32 exec_hi, 1
    ds_write_b32 v{X3}, v{PA+2} offset:572
    s_mov_b64 exec, -1""")
    if XPOS == 1: xpose()
    st(8)
    A(f"""v_readlane_b32 s{S_K1024}, v{DC+3}, 55
    s_mov_b32 exec_lo, 0
    s_mov_b32 exec_hi, {1 << (55-32):#x}
    v_mov_b32 v{DC+3}, 0
    s_mov_b64 exec, -1
    v_cvt_pk_bf16_f32 v{PC}, v{DC}, v{DC+1}
    v_cvt_pk_bf16_f32 v{PC+1}, v{DC+2}, v{DC+3}
    v_mov_b32 v{X3}, s{S_K1024}
    v_cvt_pk_bf16_f32 v{X3}, v{X3}, v{X3}
    v_lshl_add_u32 v{X2}, v0, 1, s{S_SCR}
    ds_write_b64 v{V_TAPW}, {v(PC,2)}
    s_mov_b64 exec, 0x7f
    ds_write_b16 v{X2}, v{X3} offset:{16*FIXP+38}
    s_mov_b64 exec, -1""")
    for rd in range(2):
        E = 188 + 8 * rd
        A(f"ds_read_b128 {v(E,4)}, v{V_SCRV} offset:{1024*rd}")
        A(f"ds_read_b64 {v(E+4,2)}, v{V_SCRV} offset:{1024*rd+16}")
    for rd in range(2):
        E = 188 + 8 * rd
        O = 204 + 12 * rd
        for i in range(4): A(f"v_alignbit_b32 v{O+i}, v{E+i+1}, v{E+i}, 16")
        A(f"ds_write_b128 v{V_SCRV}, {v(O,4)} offset:{KP + 1024*rd}")
        for i in range(4): A(f"v_mov_b32 v{O+4+i}, v{E+i+1}")
        A(f"ds_write_b128 v{V_SCRV}, {v(O+4,4)} offset:{2*KP + 1024*rd}")
        for i in range(4): A(f"v_alignbit_b32 v{O+8+i}, v{E+i+2}, v{E+i+1}, 16")
        A(f"ds_write_b128 v{V_SCRV}, {v(O+8,4)} offset:{3*KP + 1024*rd}")
    st(9)
    def afrag(w):
        off = 16 * (64 - 4 * w) if w < 17 else 16 * FIXP
        A(f"ds_read_b64 {v(AF+4*w,2)}, v{V_KR} offset:{off}")
        A(f"ds_read_b64 {v(AF+4*w+2,2)}, v{V_KR} offset:{off+8}")
    for w in (8, 16, 7, 15, 6, 14, 5, 13, 4, 12, 3, 11, 2, 10, 1, 9, 0, 17): afrag(w)
    tf = {}
    k = 0
    for pr in range(2):
        for D_ in (2, 3, 4):
            tf[("2", pr, D_)] = TF + 4 * k; k += 1
            for u in range(2):
                sg = (0, 8)[u] if pr == 0 else (4, 12)[u]
                A(f"ds_read_b64_tr_b16 {v(tf[('2',pr,D_)]+2*u,2)}, v{V_TAPR} offset:{2*TAPD[('2',sg)] - 1024 + 32*(D_-2)}")
    for D_ in (4, 5, 6, 7):
        tf[("3", 0, D_)] = TF + 4 * k; k += 1
        for u in range(2):
            A(f"ds_read_b64_tr_b16 {v(tf[('3',0,D_)]+2*u,2)}, v{V_TAPR} offset:{2*TAPD[('3',(4,12)[u])] - 1024 + 32*(D_-4)}")
    st(13)
    lp = A0.newlabel("L_xw"); le = A0.newlabel("L_xe")
    A0(f"s_mov_b32 s{S_T1}, 0")
    l0 = A0.newlabel("L_x0")
    A0(f"s_branch {l0}")
    A0.label(lp)
    A0("s_sleep 2")
    A0.label(l0)
    A0(f"""ds_read_b32 v{X2}, v{V_CNT}
    s_add_u32 s{S_T1}, s{S_T1}, 1
    s_cmp_gt_u32 s{S_T1}, 0x100000
    s_cbranch_scc1 {le}
    s_waitcnt lgkmcnt(0)
    v_readfirstlane_b32 s{S_T0}, v{X2}
    s_cmp_lt_u32 s{S_T0}, 4
    s_cbranch_scc1 {lp}""")
    A0.label(le)
    A.ds = []
    st(4)
    first = set()
    def accm(i, a_, b_):
        c = v(ACC + 4 * i, 4) if i in first else "0"
        first.add(i)
        return f"v_mfma_f32_16x16x32_bf16 {v(ACC+4*i,4)}, {v(a_,4)}, {v(b_,4)}, {c}"
    items = []
    for s_ in range(-8, 57):
        ms = [(i, AF + 4 * (8 * i - s_)) for i in range(8) if 0 <= 8 * i - s_ <= 16]
        items.append((64 * (s_ + 8), ms))
    for i in range(3, 8):
        items.append((2 * (256 * i - 760), [(i, AF + 68)]))
    NR, LA = 6, 5
    ZX = [212, 216]
    ZD = 220
    ZA = 244
    zsteps = []
    for cb in range(6):
        nz = 6 if cb < 4 else 4
        rd = [f"ds_read_b128 {v(ZX[0],4)}, v{V_ZX} offset:{512*cb+16}", f"ds_read_b128 {v(ZX[1],4)}, v{V_ZX} offset:{512*cb}"]
        zm = [f"v_mfma_f32_16x16x32_bf16 {v(ZD+4*k,4)}, {v(ZX[0] if WT[k][2] == -16 else ZX[1],4)}, {v(WC+4*k,4)}, 0" for k in range(nz)]
        za = [ZA, ZA + 4, X0]
        cv = []
        for k in range(nz):
            cv.append(f"v_cvt_pk_bf16_f32 v{za[k>>1]+2*(k&1)}, v{ZD+4*k}, v{ZD+4*k+1}")
            cv.append(f"v_cvt_pk_bf16_f32 v{za[k>>1]+2*(k&1)+1}, v{ZD+4*k+2}, v{ZD+4*k+3}")
        pm = []
        for pr in range(2):
            for D_ in (2, 3, 4):
                if cb + D_ <= 7: pm.append((cb + D_, za[pr], tf[("2", pr, D_)]))
        if cb < 4:
            for D_ in (4, 5, 6, 7):
                if cb + D_ <= 7: pm.append((cb + D_, za[2], tf[("3", 0, D_)]))
        zsteps.append((rd, zm, cv, pm))
    PER = 11
    for j in range(min(LA, len(items))):
        A(f"ds_read_b128 {v(BR+4*(j%NR),4)}, v{V_BX} offset:{items[j][0]}")
    pend_cv = []
    for j, (off, ms) in enumerate(items):
        cb, ph = divmod(j, PER)
        if cb < 6:
            rd, zm, cv, pm = zsteps[cb]
            if ph == 0:
                for x in rd: A(x)
            if ph == 3:
                for x in zm: A(x)
            if ph == 5: pend_cv = list(cv)
            if ph == 10:
                for x in pend_cv: A(x)
                pend_cv = []
                for (i, a_, b_) in pm: A(accm(i, a_, b_))
        for n_, (i, a_) in enumerate(ms):
            A(accm(i, a_, BR + 4 * (j % NR)))
            if n_ == 0 and j + LA < len(items):
                A(f"ds_read_b128 {v(BR+4*((j+LA)%NR),4)}, v{V_BX} offset:{items[j+LA][0]}")
            for _ in range(2 if n_ else 1):
                if pend_cv: A(pend_cv.pop(0))
    st(5)
    A(f"""s_lshl_b32 s{S_T0}, s{S_CH}, 12
    s_add_u32 s{S_T0}, s{S_T0}, {WS_BT}""")
    for i2 in range(4):
        o = BR + 4 * i2
        for x in range(4):
            A(f"v_cvt_pk_bf16_f32 v{o+x}, v{ACC+8*i2+2*x}, v{ACC+8*i2+2*x+1}")
        A(f"buffer_store_dwordx4 {v(o,4)}, v{V_L16}, {s(SWS,4)}, s{S_T0} offen offset:{1024*i2}")
    st(6)
    A("s_endpgm")

def gen_wtab(A):
    A.raw(".p2align 8")
    A.label("L_wtab")
    t = wtable()
    for i in range(0, len(t), 8):
        A.raw("  .long " + ", ".join(f"{x:#010x}" for x in t[i:i+8]))
```

```python
import sys
from asm import *
from l1gemm import *
from l2 import gen_l2
from ssm import gen_ssm, gen_wtab

stamps = "--stamps" in sys.argv
out = [a for a in sys.argv[1:] if not a.startswith("--")][0]

A = Asm()
HDR = """; generated by gen.py
; @launch kernel=l1_kernel grid=(248,1,1) block=(512,1,1) lds=163840
; @launch kernel=l2_kernel grid=(256,1,1) block=(256,1,1) lds=86016
.amdgcn_target "amdgcn-amd-amdhsa--gfx950"
.text
"""
A.raw(".globl l1_kernel\n.p2align 8\n.type l1_kernel,@function\nl1_kernel:")
if stamps:
    A("s_memtime s[92:93]\ns_memrealtime s[94:95]")
A(f"""s_load_dwordx16 s[16:31], s[0:1], 0
s_load_dwordx8 s[32:39], s[0:1], 64
s_load_dwordx4 s[40:43], s[0:1], 96
s_getpc_b64 s[4:5]""")
A.label("L_pc0")
A(f"""v_lshlrev_b32 v2, 6, v0
v_lshrrev_b32 v1, 6, v0
global_load_dword v253, v2, s[4:5]
s_cmp_ge_u32 s2, 248
s_cbranch_scc1 L1_exit
v_readfirstlane_b32 s{S_WAVE}, v1
v_and_b32 v0, 63, v0
s_and_b32 s3, s2, 7
s_lshr_b32 s4, s2, 3
s_mov_b32 s{S_L2E}, {LOG2E:#x}
s_cmp_lt_u32 s4, 9
s_cbranch_scc1 L1_ssm
{"s_endpgm" if "--nogemm" in sys.argv else ""}
s_and_b32 s5, s3, 3
s_lshl_b32 s5, s5, 2
s_lshr_b32 s6, s3, 2
s_mov_b32 s10, s4
s_cmp_lt_u32 s4, 15
s_cbranch_scc1 L1_q""")
A(f"""s_sub_u32 s4, s4, 15
s_and_b32 s7, s4, 3
s_add_u32 s{S_RB}, s5, s7
s_lshr_b32 s8, s4, 2
s_lshl_b32 s6, s6, 2
s_add_u32 s{S_CG}, s6, s8
s_add_u32 s7, s7, s8
s_and_b32 s7, s7, 3
s_lshl_b32 s{S_ROT}, s7, 1
s_cmp_lt_u32 s{S_WAVE}, 4
s_cbranch_scc1 L1_kv_c
s_setprio 3
s_cmp_eq_u32 s{S_WAVE}, 7
s_cbranch_scc1 L1_kv_chore""")
gen_loader(A, "kv", stamps)
A.label("L1_q")
A(f"""s_sub_u32 s4, s4, 9
s_mul_i32 s6, s6, 6
s_add_u32 s4, s4, s6
s_and_b32 s7, s4, 3
s_add_u32 s{S_RB}, s5, s7
s_lshr_b32 s{S_CG}, s4, 2
s_add_u32 s7, s7, s{S_CG}
s_and_b32 s7, s7, 3
s_lshl_b32 s7, s7, 1
s_add_u32 s{S_ROT}, s7, 1
s_cmp_lt_u32 s{S_WAVE}, 4
s_cbranch_scc1 L1_q_c
s_setprio 3""")
gen_loader(A, "q", stamps)
A.label("L1_kv_chore")
gen_chore(A, stamps)
A.raw(".p2align 3")
A.label("L1_ssm")
gen_ssm(A, stamps)
A.raw(".p2align 3")
A.label("L1_kv_c")
gen_compute(A, "kv", stamps)
A.raw(".p2align 3")
A.label("L1_q_c")
gen_compute(A, "q", stamps)
A.label("L1_exit")
A("s_endpgm")
A.raw(".globl l2_kernel\n.p2align 8\n.type l2_kernel,@function\nl2_kernel:")
gen_l2(A, stamps)
DIAG = "--diag" in sys.argv
if DIAG:
    from diag import gen_diag
    gen_diag(A)
    HDR = HDR.replace(".amdgcn_target", "; @launch kernel=dg_kernel grid=(1,1,1) block=(256,1,1) lds=1024\n.amdgcn_target")
gen_wtab(A)
A.label("L_code_end")
body = A.text()
NT = [a_ for a_ in sys.argv if a_.startswith("--nt=")]
if NT:
    for c, reg in (("x", s(SX,4)), ("w", s(SW,4))):
        if c in NT[0][5:]:
            body = "\n".join((l[:-4] + " nt lds" if (l.endswith(" lds") and reg in l) else l) for l in body.split("\n"))
if NODMA:
    body = "\n".join(l for l in body.split("\n") if not l.strip().endswith(" lds")) + "\n"
desc = '.section .rodata,"a"\n' + kdesc("l1_kernel", 256) + kdesc("l2_kernel", 512, accum=256)
if DIAG: desc += kdesc("dg_kernel", 128)
open(out, "w").write(HDR + body + desc)
```

```python
import re
_reg = re.compile(r"^(-|abs\()?([vas])(\d+|\[(\d+):(\d+)\])\)?$")
TRANS = ("v_exp_f32", "v_log_f32", "v_rcp_f32", "v_rsq_f32", "v_sqrt_f32", "v_sin_f32", "v_cos_f32")
def regs(op):
    op = op.strip()
    if op == "vcc": return [("s", "vcc")]
    if op in ("exec", "exec_lo", "exec_hi", "m0", "off"): return []
    m = _reg.match(op)
    if not m: return []
    k = m.group(2)
    if m.group(4) is not None: return [(k, i) for i in range(int(m.group(4)), int(m.group(5)) + 1)]
    return [(k, int(m.group(3)))]
def split_ops(rest):
    out, depth, cur = [], 0, ""
    for ch in rest:
        if ch == "[": depth += 1
        if ch == "]": depth -= 1
        if ch == "," and depth == 0: out.append(cur); cur = ""
        else: cur += ch
    out.append(cur)
    last = out[-1].strip().split()
    out[-1] = last[0] if last else ""
    return [o.strip() for o in out], last[1:]
def parse(ins):
    ins = ins.strip()
    mn, _, rest = ins.partition(" ")
    ops, mods = split_ops(rest) if rest else ([], [])
    R = [regs(o) for o in ops]
    flat = lambda L: [x for l in L for x in l]
    d, u, kind = [], [], "other"
    if mn.startswith("v_mfma"):
        kind = "mfma"; d = R[0]; u = flat(R[1:])
    elif mn.startswith("v_cmp"):
        kind = "valu"; d = R[0]; u = flat(R[1:])
    elif mn.startswith("v_"):
        kind = "valu"; d = R[0]; u = flat(R[1:])
        if mn.startswith(("v_fmac", "v_mac", "v_dot2c", "v_permlane", "v_writelane")): u = u + R[0]
        if mn.startswith("v_permlane"): d = d + R[1]
        if mn.startswith("v_cndmask") and len(ops) == 3: u = u + [("s", "vcc")]
    elif mn.startswith("ds_read") or mn.startswith("ds_bpermute") or mn.startswith("ds_swizzle"):
        kind = "dsr"; d = R[0]; u = flat(R[1:])
    elif mn.startswith("ds_"):
        kind = "dsw"; u = flat(R)
    elif mn.startswith(("buffer_load", "global_load")):
        if "lds" in mods: kind = "vmw"; u = flat(R)
        else: kind = "vmr"; d = R[0]; u = flat(R[1:])
    elif mn.startswith(("buffer_store", "global_store", "buffer_atomic", "global_atomic")):
        kind = "vmw"; u = flat(R)
        if "atomic" in mn and "sc0" in mods: kind = "vmr"; d = R[0]
    elif mn.startswith("s_"):
        kind = "salu"
        if mn not in ("s_waitcnt", "s_nop", "s_barrier", "s_endpgm") and not mn.startswith(("s_cmp", "s_cbranch", "s_branch")):
            d = R[0] if R else []; u = flat(R[1:])
        elif mn.startswith("s_cmp"): u = flat(R)
    return mn, kind, d, u, R, mods

class Auto:
    def __init__(self, A):
        self.A = A
        self.t = 0
        self.ds = []
        self.vm = []
        self.lastw = {}
        self.mfma_c = {}
        self.store_rd = {}
    def emit(self, s):
        self.A(s)
        m = re.match(r"s_nop (\d+)", s)
        self.t += int(m.group(1)) + 1 if m else 1
    def __call__(self, text):
        for ln in text.strip("\n").split("\n"):
            ln = ln.strip()
            if ln: self.one(ln)
    def _need(self, q, touched):
        n = None
        for i, dset in enumerate(q):
            if dset & touched: n = len(q) - 1 - i
        return n
    def flush(self):
        self.ds, self.vm = [], []
    def wait_vm_tag(self, tag):
        n = None
        for i, dset in enumerate(self.vm):
            if tag in dset: n = len(self.vm) - 1 - i
        if n is not None:
            self.emit(f"s_waitcnt vmcnt({min(n,63)})"); self.vm = self.vm[len(self.vm) - min(n, 63):] if n else []
    def one(self, ins, tag=None):
        mn, kind, d, u, R, mods = parse(ins)
        if mn == "s_waitcnt":
            m = re.search(r"lgkmcnt\((\d+)\)", ins)
            if m: n = int(m.group(1)); self.ds = self.ds[len(self.ds) - n:] if n else []
            m = re.search(r"vmcnt\((\d+)\)", ins)
            if m: n = int(m.group(1)); self.vm = self.vm[len(self.vm) - n:] if n else []
            self.emit(ins); return
        touched = set(d) | set(u)
        w = []
        n = self._need(self.ds, touched)
        if n is not None:
            n = min(n, 15); w.append(f"lgkmcnt({n})"); self.ds = self.ds[len(self.ds) - n:] if n else []
        n = self._need(self.vm, touched)
        if n is not None:
            n = min(n, 63); w.append(f"vmcnt({n})"); self.vm = self.vm[len(self.vm) - n:] if n else []
        if w: self.emit("s_waitcnt " + " ".join(w))
        need = 0
        def req(r, dist):
            nonlocal need
            k, t0, _ = self.lastw[r]
            need = max(need, dist - (self.t - t0 - 1))
        for r in set(u):
            if r not in self.lastw: continue
            k, t0, tup = self.lastw[r]
            if k == "mfma":
                if kind == "mfma":
                    if r in R[3] and r not in R[1] and r not in R[2]:
                        if tuple(R[3]) + (mn,) != tup: req(r, 8)
                    else: req(r, 8)
                elif kind in ("valu", "dsw", "dsr", "vmw", "vmr"): req(r, 8)
            elif k in ("valu", "trans"):
                if r[0] == "s":
                    if kind == "valu": req(r, 4 if mn.startswith(("v_readlane", "v_writelane")) else 2)
                    elif kind in ("vmw", "vmr"): req(r, 5)
                else:
                    if kind == "mfma": req(r, 2)
                    elif mn.startswith(("v_readlane", "v_readfirstlane")): req(r, 1)
                    elif mn.startswith("v_permlane") or "dpp" in mn or any(m_.startswith(("row_", "quad_perm")) for m_ in mods): req(r, 2)
                    elif k == "trans" and kind == "valu" and mn not in TRANS: req(r, 1)
        for r in set(d):
            if r in self.lastw and self.lastw[r][0] == "mfma" and kind in ("valu", "dsr", "vmr"): req(r, 8)
            if r in self.lastw and self.lastw[r][0] == "mfma" and kind == "mfma" and tuple(d) + (mn,) != self.lastw[r][2]: req(r, 6)
            if kind == "valu" and r in self.mfma_c: need = max(need, 3 - (self.t - self.mfma_c[r] - 1))
            if kind in ("valu", "dsr", "vmr") and r in self.store_rd: need = max(need, 2 - (self.t - self.store_rd[r] - 1))
        while need > 0:
            k = min(need, 16); self.emit(f"s_nop {k-1}"); need -= k
        t = self.t
        self.emit(ins)
        wk = "trans" if mn.split("_e")[0] in TRANS else kind
        for r in d: self.lastw[r] = (wk, t, tuple(d) + (mn,))
        if kind == "mfma":
            for r in R[3]: self.mfma_c[r] = t
        if kind == "vmw" and ("x4" in mn or "x3" in mn) and "store" in mn:
            for r in R[0]: self.store_rd[r] = t
        if kind in ("dsr", "dsw"): self.ds.append(set(d))
        if kind in ("vmr", "vmw"): self.vm.append(set(d) | ({tag} if tag else set()))
```

```python
from asm import *
from auto import Auto
import sys
NOMFMA = '--nomfma' in sys.argv
NODMA = '--nodma' in sys.argv
LOOK = int([a for a in sys.argv if a.startswith('--look=')][0][7:]) if any(a.startswith('--look=') for a in sys.argv) else 3
LBAR = int([a for a in sys.argv if a.startswith('--lbar=')][0][7:]) if any(a.startswith('--lbar=') for a in sys.argv) else None

AUXSLEEP = int([a for a in sys.argv if a.startswith('--auxs=')][0][7:]) if any(a.startswith('--auxs=') for a in sys.argv) else 60
WS_PQ = 0
WS_KVQ = 0x240000
WS_G = 0x250000
WS_BT = 0x260000
WS_END = 0x4A0000
WS_STAMP = 0x500000
WS_WP = 0x600000
WPU = 21504
WS_SIZE = 0x700000

S_X, S_W, S_WO, S_LOGA, S_AIM, S_CRE, S_CIM = 16, 18, 20, 24, 26, 28, 30
S_LOGDT, S_DSKIP, S_GATE, S_OUT, S_DBG, S_WS = 32, 34, 36, 38, 40, 42
SX, SW, SWS, SDBG, SG = 44, 48, 52, 56, 60
S_WAVE, S_RB, S_CG = 64, 65, 66
S_T0, S_T1, S_T2, S_T3 = 67, 68, 69, 70
S_ROT = 71
S_L2E = 73
S_EPS = 74
S_ST, S_SLOT, S_CNT, S_SX, S_SW, S_GB = 75, 76, 77, 78, 79, 82
S_MASK = 84

KV_X, KV_RD, KV_LZ = 4096, 4864, 5376
FL = 0x4A0000
NREP = 16
FL_KV, FL_Q, FL_S = FL, FL + 8 * NREP * 256, FL + (8 * NREP + 192) * 256
NFLAG = 8 * NREP + 192 + 72
S_PB, S_EK, S_N1, S_CA, S_FA, S_B9, S_CINC = 96, 97, 98, 99, 100, 101, 91
EMP, LMP = 6656, 8672
PB_G, PJ_G, PK_G, CL_G = 40960, 7168, 28736, 69632
EM_G = PB_G + 2 * PK_G + 4 * PJ_G
CL_S = 4 * LMP
PB_S, PJ_S, PK_S = CL_S + 64, 20736, 7168
EM_S = PB_S + 4 * PJ_S
STGA, STGD = 34816, 122880
assert EM_G + 4 * EMP <= STGA + STGD
SPIN = 0x40000
LOG2E = 0x3FB8AA3B
EPS = 0x358637BD
XB = 16384

def stamp(A, idx, stamps, last=None, srd_=None):
    if not stamps: return
    if last is None: last = idx == 6
    A(f"""s_memtime s[80:81]
    s_waitcnt lgkmcnt(0)
    v_writelane_b32 v255, s80, {idx}""")
    if last:
        A(f"""s_memrealtime s[80:81]
        s_waitcnt lgkmcnt(0)
        v_writelane_b32 v255, s80, 15
        s_mov_b64 exec, 0xffff
        buffer_store_dword v255, v254, {s(srd_ if srd_ else SWS,4)}, 0 offen
        s_mov_b64 exec, -1""")

def kwait(A, which, stamps):
    A("s_waitcnt lgkmcnt(0)")
    tab = {"x": (SX, S_X, 2048*1152), "w": (SW, S_W, 576*3456), "ws": (SWS, S_WS, WS_SIZE), "dbg": (SDBG, S_DBG, 256), "g": (SG, S_GATE, 1152)}
    for w in which: srd(A, tab[w][0], tab[w][1], tab[w][1] + 1, tab[w][2])

def stamp0(A, stamps):
    if not stamps: return
    srd(A, SWS, S_WS, S_WS + 1, WS_SIZE)
    A(f"""s_lshl_b32 s7, s2, 3
    s_add_u32 s7, s7, s{S_WAVE}
    s_lshl_b32 s7, s7, 6
    s_add_u32 s7, s7, {WS_STAMP}
    v_lshl_add_u32 v254, v0, 2, s7
    v_mov_b32 v255, 0
    v_writelane_b32 v255, s92, 0
    v_writelane_b32 v255, s94, 14""")

def touch(A, s_idx, ssm=False):
    if ssm:
        A(f"""s_mul_i32 s9, s{S_WAVE}, 9
        s_add_u32 s9, s9, s{s_idx}
        s_add_u32 s9, s9, 88""")
    else:
        A(f"""s_lshl_b32 s9, s{s_idx}, 2
        s_add_u32 s9, s9, s{S_WAVE}
        s_sub_u32 s9, s9, 40""")
    A(f"""s_mul_i32 s9, s9, {16*1152}
    s_mul_i32 s8, s3, 144
    s_add_u32 s9, s9, s8
    v_lshrrev_b32 v251, 2, v0
    v_mul_u32_u24 v251, 1152, v251
    v_and_b32 v252, 3, v0
    v_lshlrev_b32 v252, 6, v252
    v_min_u32 v252, 140, v252
    v_add_u32 v251, v251, v252""")

def phi(A, regs, tmp):
    n = len(regs)
    for i in range(0, n, 2):
        assert regs[i+1] == regs[i] + 1 and regs[i] % 2 == 0 and tmp[i] % 2 == 0
        A(f"v_pk_fma_f32 {v(tmp[i],2)}, {v(regs[i],2)}, s[72:73], s[72:73] op_sel:[0,1,1] op_sel_hi:[1,1,1] neg_lo:[0,0,1] neg_hi:[0,0,1]")
    for i in range(n):
        A(f"v_exp_f32 v{tmp[i]}, v{tmp[i]} clamp")
    for i in range(n):
        A(f"v_max_f32 v{regs[i]}, v{regs[i]}, v{tmp[i]}")
    for i in range(0, n, 2):
        A(f"v_pk_add_f32 {v(regs[i],2)}, {v(regs[i],2)}, s[74:75] op_sel:[0,0] op_sel_hi:[1,0]")

def params(typ):
    kv = typ == "kv"
    PITCH = 288 if kv else 384
    STG = XB + 64 * PITCH
    return kv, PITCH, STG

GATE_LDS = 4 * (XB + 64 * 288)

def gen_compute(A, typ, stamps=False):
    kv, PITCH, STG = params(typ)
    NT = 5 if kv else 6
    L = LOOK
    RING = 5 if kv else 6
    V_ACC = 0
    V_A = V_ACC + 4 * NT * 4
    V_B = V_A + 32
    V_AD = V_B + RING * 4
    V_AA = V_AD
    V_TR = V_AD + 2
    V_AAc = V_AD + 6
    V_TRc = V_AD + 8
    V_LANE = V_AD + 12
    V_T = V_AD + 13
    V_AO = V_T + 4
    V_FREE = V_T + 6
    acc = lambda rt, t: V_ACC + (rt * NT + t) * 4
    areg = lambda ks, rt: V_A + (ks * 4 + rt) * 4
    A(f"""s_getpc_b64 s[12:13]""")
    lab = A.newlabel("L_pcc")
    A.label(lab)
    A(f"""s_sub_u32 s12, s12, {lab}-L_pc0
    s_subb_u32 s13, s13, 0
    v_add_u32 v2, 32768, v2
    v_min_u32 v2, L_code_end-L_pc0-8, v2
    global_load_dword v253, v2, s[12:13]""")
    kwait(A, ["ws", "dbg"] if kv else ["ws"], stamps)
    stamp0(A, stamps)
    A(f"s_mov_b32 s{S_EPS}, {EPS:#x}")
    A(f"v_mov_b32 v{V_LANE}, v0")
    A(f"""s_lshr_b32 s{S_T0}, s{S_WAVE}, 1
    s_and_b32 s{S_T1}, s{S_WAVE}, 1""")
    i_, q, rp, cc = V_T, V_T + 1, V_T + 2, V_T + 3
    A(f"""v_and_b32 v{i_}, 15, v{V_LANE}
    v_lshrrev_b32 v{q}, 4, v{V_LANE}
    v_bfe_u32 v{rp}, v{V_LANE}, 2, 2
    v_and_b32 v{cc}, 3, v{V_LANE}
    s_lshl_b32 s{S_T2}, s{S_T0}, 13
    v_lshrrev_b32 v{V_AAc}, 1, v{i_}
    v_xor_b32 v{V_AAc}, v{V_AAc}, v{q}
    v_lshlrev_b32 v{V_AAc}, 4, v{V_AAc}
    v_lshl_add_u32 v{V_AAc}, v{i_}, 7, v{V_AAc}
    v_add_u32 v{V_AAc}, s{S_T2}, v{V_AAc}""")
    if not kv:
        A(f"""s_lshl_b32 s{S_T2}, s{S_CG}, 1
        s_add_u32 s{S_T2}, s{S_T2}, s{S_T1}
        s_cmp_ge_u32 s{S_T2}, 3
        s_cselect_b32 s{S_T2}, 2048, 0
        v_add_u32 v{V_AAc}, s{S_T2}, v{V_AAc}""")
    else:
        A(f"v_mov_b32 v{V_AO}, 0")
    A(f"v_xor_b32 v{V_AAc+1}, 64, v{V_AAc}")
    if kv:
        A(f"""s_mul_i32 s{S_T2}, s{S_T1}, 72
        s_add_u32 s{S_T2}, s{S_T2}, {XB}
        v_lshl_add_u32 v{i_}, v{q}, 3, v{rp}
        v_and_b32 v{V_TRc+1}, 1, v{q}
        v_lshlrev_b32 v{V_TRc+1}, 2, v{V_TRc+1}
        v_xor_b32 v{V_TRc}, v{i_}, v{V_TRc+1}
        v_xor_b32 v{V_TRc+1}, 4, v{V_TRc}
        v_mul_u32_u24 v{V_TRc}, 288, v{V_TRc}
        v_mul_u32_u24 v{V_TRc+1}, 288, v{V_TRc+1}
        v_add_u32 v{V_TRc}, s{S_T2}, v{V_TRc}
        v_add_u32 v{V_TRc+1}, s{S_T2}, v{V_TRc+1}
        v_mul_u32_u24 v{rp}, 144, v{cc}
        v_add_u32 v{rp}, 32, v{rp}
        v_add_u32 v{V_TRc+2}, v{V_TRc}, v{rp}
        v_add_u32 v{V_TRc+3}, v{V_TRc+1}, v{rp}
        v_lshl_add_u32 v{V_TRc}, v{cc}, 3, v{V_TRc}
        v_lshl_add_u32 v{V_TRc+1}, v{cc}, 3, v{V_TRc+1}
        v_cmp_lt_u32 {s(S_MASK,2)}, 1, v{cc}
        v_lshlrev_b32 v{i_}, 3, v{i_}
        v_add_u32 v{rp}, 32, v{i_}
        v_cndmask_b32 v{V_TRc+2}, v{V_TRc+2}, v{i_}, {s(S_MASK,2)}
        v_cndmask_b32 v{V_TRc+3}, v{V_TRc+3}, v{rp}, {s(S_MASK,2)}""")
        coloff = [0, 40, 144, 184]
    else:
        A(f"""v_lshl_add_u32 v{i_}, v{q}, 3, v{rp}
        v_mul_u32_u24 v{i_}, 384, v{i_}
        v_lshl_add_u32 v{i_}, v{cc}, 3, v{i_}
        v_add_u32 v{i_}, {XB}, v{i_}
        v_lshrrev_b32 v{rp}, 1, v{rp}
        v_and_b32 v{q}, 1, v{q}
        v_lshl_add_u32 v{q}, v{q}, 1, v{rp}
        s_mul_i32 s{S_T2}, s{S_T1}, 6""")
        for j in range(4):
            A(f"""s_add_u32 s{S_T3}, s{S_T2}, {j}
            s_and_b32 s{S_CNT}, s{S_T3}, 3
            s_lshr_b32 s{S_T3}, s{S_T3}, 2
            s_lshl_b32 s{S_T3}, s{S_T3}, 7
            v_xor_b32 v{rp}, s{S_CNT}, v{q}
            v_lshl_add_u32 v{V_TRc+j}, v{rp}, 5, v{i_}
            v_add_u32 v{V_TRc+j}, s{S_T3}, v{V_TRc+j}""")
    V_QO = V_FREE
    if not kv:
        V_FREE += 6
        c_, P_, m_, t_ = V_T, V_T + 1, V_T + 2, V_T + 3
        for t in range(NT):
            o0 = V_QO + t
            A(f"""s_mul_i32 s{S_T2}, s{S_CG}, 48
            s_mul_i32 s{S_T3}, s{S_T1}, 24
            s_add_u32 s{S_T2}, s{S_T2}, s{S_T3}
            s_add_u32 s{S_T2}, s{S_T2}, {4*t}
            v_lshrrev_b32 v{c_}, 4, v{V_LANE}
            v_add_u32 v{c_}, s{S_T2}, v{c_}
            v_mul_u32_u24 v{P_}, 7282, v{c_}
            v_lshrrev_b32 v{P_}, 16, v{P_}
            v_mul_u32_u24 v{m_}, 9, v{P_}
            v_sub_u32 v{m_}, v{c_}, v{m_}
            v_lshrrev_b32 v{c_}, 1, v{P_}
            v_mul_u32_u24 v{c_}, 4608, v{c_}
            v_and_b32 v{P_}, 1, v{P_}
            v_cmp_lt_u32 vcc, 4, v{m_}
            v_lshl_add_u32 v{o0}, v{P_}, 3, v{m_}
            v_add_u32 v{t_}, 16, v{P_}
            v_subbrev_co_u32 v{o0}, vcc, 0, v{o0}, vcc
            v_cmp_eq_u32 vcc, 4, v{m_}
            v_and_b32 v{m_}, 15, v{V_LANE}
            v_lshl_add_u32 v{c_}, v{m_}, 4, v{c_}
            v_cndmask_b32 v{o0}, v{o0}, v{t_}, vcc
            v_lshl_add_u32 v{o0}, v{o0}, 8, v{c_}""")
    A(f"""s_mov_b32 s{S_EK}, 1
    s_mov_b32 s{S_B9}, 0
    s_mov_b32 s{S_CINC}, 0""")
    if kv:
        A(f"""s_mov_b32 s{S_N1}, 4
        s_mul_i32 s{S_FA}, s{S_CG}, {NREP*256}
        s_mov_b32 s{S_CA}, 1
        s_add_u32 s{S_FA}, s{S_FA}, {FL_KV}""")
        a_mm, a_mr, a_rm, a_rr, a_ta, a_tb, a_g, a_c = range(245, 253)
        col, qq, x0, x1 = V_T, V_T + 1, V_T + 2, V_T + 3
        A(f"""v_and_b32 v{col}, 15, v{V_LANE}
        v_lshrrev_b32 v{qq}, 4, v{V_LANE}
        v_cmp_gt_u32 vcc, 4, v{col}
        s_mul_i32 s{S_T2}, s{S_T0}, {STGD}
        s_add_u32 s{S_T2}, s{S_T2}, {STGA}
        s_lshl_b32 s{S_T3}, s{S_T1}, 11
        s_add_u32 s{S_T3}, s{S_T3}, s{S_T2}
        v_lshl_add_u32 v{a_mm}, v{V_LANE}, 4, s{S_T3}
        s_lshl_b32 s{S_T3}, s{S_T1}, 8
        s_add_u32 s{S_T3}, s{S_T3}, s{S_T2}
        v_lshl_add_u32 v{a_rm}, v{V_LANE}, 4, s{S_T3}
        v_and_b32 v{x0}, 1, v{col}
        v_add_u32 v{a_rr}, 8, v{x0}
        v_bfe_u32 v{x1}, v{col}, 1, 1
        v_lshl_add_u32 v{x0}, v{x0}, 2, v{x1}
        v_cndmask_b32 v{x0}, v{x0}, v{a_rr}, vcc
        v_lshl_add_u32 v{x0}, s{S_T1}, 1, v{x0}
        v_lshl_add_u32 v{a_rr}, v{x0}, 3, s{S_T2}
        v_mul_u32_u24 v{a_mr}, 192, v{qq}
        v_lshl_add_u32 v{a_mr}, v{x0}, 4, v{a_mr}
        v_add_u32 v{a_mr}, s{S_T2}, v{a_mr}
        v_mov_b32 v{a_c}, {CL_G}
        s_lshl_b32 s{S_T2}, s{S_WAVE}, 8
        v_lshl_add_u32 v{a_ta}, v{V_LANE}, 2, s{S_T2}
        v_add_u32 v{a_tb}, {STGA + STGD}, v{a_ta}
        s_lshl_b32 s{S_T2}, s{S_CG}, 13
        s_lshl_b32 s{S_T3}, s{S_RB}, 9
        s_add_u32 s{S_T2}, s{S_T2}, s{S_T3}
        s_lshl_b32 s{S_T3}, s{S_T0}, 8
        s_add_u32 s{S_T2}, s{S_T2}, s{S_T3}
        s_add_u32 s{S_T2}, s{S_T2}, {WS_G}
        v_lshl_add_u32 v{a_g}, v{qq}, 4, s{S_T2}
        s_mul_i32 s{S_SX}, s{S_CG}, 6144
        s_add_u32 s{S_SX}, s{S_SX}, {WS_KVQ}
        s_add_u32 s{S_SW}, s{S_SX}, 4096""")
    else:
        A(f"""s_mov_b32 s{S_N1}, 1
        s_mov_b32 s{S_CA}, 0
        s_lshl_b32 s{S_FA}, s{S_RB}, 1
        s_add_u32 s{S_FA}, s{S_FA}, s{S_T0}
        s_mul_i32 s{S_FA}, s{S_FA}, 6
        s_lshl_b32 s{S_T2}, s{S_CG}, 1
        s_add_u32 s{S_FA}, s{S_FA}, s{S_T2}
        s_add_u32 s{S_FA}, s{S_FA}, s{S_T1}
        s_lshl_b32 s{S_FA}, s{S_FA}, 8
        s_add_u32 s{S_FA}, s{S_FA}, {FL_Q}""")
    for rt in range(4):
        for t in range(NT):
            one = (t < 2) if kv else True
            for r in range(4):
                if kv and t == 4: A(f"v_cndmask_b32 v{acc(rt,t)+r}, 0, 1.0, vcc")
                else: A(f"v_mov_b32 v{acc(rt,t)+r}, {'1.0' if one else '0'}")
    A(f"""s_mov_b32 s{S_SLOT}, 0
    s_mov_b32 s{S_ST}, s{S_ROT}
    s_mov_b32 s{S_CNT}, 0""")
    stamp(A, 1, stamps)
    items = [(ks, t) for ks in range(2) for t in range(NT)]
    N = len(items)
    LB = NT - 1 if LBAR is None else LBAR
    assert N % RING == 0 and RING >= L + 1 and LB >= L and LB <= NT
    def rdB(ri):
        ks, t = items[ri % N]
        b = V_B + (ri % RING) * 4
        ko = ks * 32 * PITCH
        if kv:
            if t < 4:
                return [f"ds_read_b64_tr_b16 {v(b,2)}, v{V_TR} offset:{ko+coloff[t]}",
                        f"ds_read_b64_tr_b16 {v(b+2,2)}, v{V_TR+1} offset:{ko+coloff[t]}"]
            return [f"ds_read_b64_tr_b16 {v(b,2)}, v{V_TR+2} offset:{ko}",
                    f"ds_read_b64_tr_b16 {v(b+2,2)}, v{V_TR+3} offset:{ko}"]
        return [f"ds_read_b64_tr_b16 {v(b,2)}, v{V_TR+(t&3)} offset:{ko+(t>>2)*128}",
                f"ds_read_b64_tr_b16 {v(b+2,2)}, v{V_TR+(t&3)} offset:{ko+(t>>2)*128+4*384}"]
    rdA = lambda ks: [f"ds_read_b128 {v(areg(ks,rt),4)}, v{V_AA+ks} offset:{2048*rt}" for rt in range(4)]
    updA = [f"v_add_u32 v{V_AA}, s{S_SLOT}, v{V_AAc}", f"v_add_u32 v{V_AA+1}, s{S_SLOT}, v{V_AAc+1}"]
    if not kv:
        rdA = lambda ks: [f"ds_read_b128 {v(areg(ks,rt),4)}, v{(V_AO if rt & 1 else V_AA)+ks} offset:{4096*(rt>>1)}" for rt in range(4)]
        updA += [f"v_xor_b32 v{V_AO}, 2048, v{V_AA}", f"v_xor_b32 v{V_AO+1}, 2048, v{V_AA+1}"]
    if kv:
        updB = [f"v_add_u32 v{V_TR}, s{S_SLOT}, v{V_TRc}", f"v_add_u32 v{V_TR+1}, s{S_SLOT}, v{V_TRc+1}"]
        updB2 = [f"v_add_u32 v{V_TR+2}, v{V_T}, v{V_TRc+2}", f"v_add_u32 v{V_TR+3}, v{V_T}, v{V_TRc+3}"]
        pre = [f"s_lshl_b32 s{S_GB}, s{S_ST}, 8", f"s_add_u32 s{S_GB}, s{S_GB}, {GATE_LDS}",
               f"v_mov_b32 v{V_T}, s{S_SLOT}", f"v_mov_b32 v{V_T+1}, s{S_GB}",
               f"v_cndmask_b32 v{V_T}, v{V_T}, v{V_T+1}, {s(S_MASK,2)}",
               f"s_add_u32 s{S_ST}, s{S_ST}, 1", f"s_cmp_eq_u32 s{S_ST}, 9", f"s_cselect_b32 s{S_ST}, 0, s{S_ST}"]
    else:
        updB = [f"v_add_u32 v{V_TR}, s{S_SLOT}, v{V_TRc}", f"v_add_u32 v{V_TR+1}, s{S_SLOT}, v{V_TRc+1}"]
        updB2 = [f"v_add_u32 v{V_TR+2}, s{S_SLOT}, v{V_TRc+2}", f"v_add_u32 v{V_TR+3}, s{S_SLOT}, v{V_TRc+3}"]
        pre = []
    advs = [f"s_add_u32 s{S_SLOT}, s{S_SLOT}, {STG}", f"s_cmp_eq_u32 s{S_SLOT}, {4*STG}", f"s_cselect_b32 s{S_SLOT}, 0, s{S_SLOT}"]
    fill = {i: [] for i in range(N)}
    for idx in range(N):
        f = []
        if idx == N - LB:
            f += [("x", "s_barrier")] + [("x", u) for u in updA] + [("A0", r) for r in rdA(0)]
        if idx == N - L:
            f += [("x", u) for u in updB]
        f += [(f"B{(idx+L)%N}", r) for r in rdB(idx + L)]
        if idx == N - L:
            f += [("x", u) for u in updB2]
        if idx == N - L + 1 or (L == 1 and idx == N - 1):
            f += [("x", u) for u in advs]
        if idx == 0:
            f += [("A1", r) for r in rdA(1)]
        if idx == 1:
            f += [("x", u) for u in pre]
        if idx == 2 and kv:
            f += [("x", f"buffer_load_dword v{V_AO+1}, v{V_AO}, {s(SDBG,4)}, 0 offen sc0 sc1")]
        fill[idx] = f
    ops = []
    for idx in range(N):
        ks, t = items[idx]
        ops.append(("W", idx))
        f = list(fill[idx])
        per = -(-len(f) // 4)
        for rt in range(4):
            ops.append(("M", idx, rt))
            for _ in range(per):
                if f: ops.append(("F",) + f.pop(0))
    def wait_for(pos, tags):
        best = None
        for tag in tags:
            c = 0; p = pos - 1
            while True:
                o = ops[p % len(ops)]
                if o[0] == "F" and o[2].startswith("ds_"):
                    if o[1] == tag: break
                    c += 1
                p -= 1
            best = c if best is None else min(best, c)
        return best
    A("\n".join(pre)) if pre else None
    first = True
    for idx in range(N - LB, N):
        for tag, ins in fill[idx]:
            if tag.startswith("B") and int(tag[1:]) >= L: continue
            A(ins)
            if ins == "s_barrier": stamp(A, 2, stamps)
    lp = A.newlabel("L_gl")
    A.raw(".p2align 3")
    A.label(lp)
    for pos, o in enumerate(ops):
        if o[0] == "W":
            idx = o[1]; ks, t = items[idx]
            tags = [f"B{idx}"] + ([f"A{ks}"] if t == 0 else [])
            A(f"s_waitcnt lgkmcnt({min(wait_for(pos, tags), 15)})")
        elif o[0] == "M":
            idx, rt = o[1], o[2]; ks, t = items[idx]
            b = V_B + (idx % RING) * 4
            d = v(acc(rt, t), 4)
            if NOMFMA: continue
            if kv: A(f"v_mfma_f32_16x16x32_bf16 {d}, {v(areg(ks,rt),4)}, {v(b,4)}, {d}")
            else: A(f"v_mfma_f32_16x16x32_bf16 {d}, {v(b,4)}, {v(areg(ks,rt),4)}, {d}")
        else:
            A(o[2])
    A(f"""s_add_u32 s{S_CNT}, s{S_CNT}, 1
    s_cmp_lt_u32 s{S_CNT}, 9
    s_cbranch_scc1 {lp}""")
    stamp(A, 5, stamps)
    TMP = V_FREE + (V_FREE & 1)
    A("s_waitcnt lgkmcnt(0)")
    if not kv:
        A(f"""s_lshl_b32 s{S_T2}, s{S_RB}, 2
        s_lshl_b32 s{S_T3}, s{S_T0}, 1
        s_add_u32 s{S_T2}, s{S_T2}, s{S_T3}
        s_mul_i32 s{S_T2}, s{S_T2}, 36864""")
        A(f"""v_mov_b32 v{V_T}, {CL_G}
        v_mov_b32 v{V_T+1}, 1
        s_mov_b64 exec, 1
        ds_add_u32 v{V_T}, v{V_T+1}
        s_mov_b64 exec, -1""")
        k = 0
        for rp_ in range(2):
            for t in range(NT):
                regs = [acc(2 * rp_ + x, t) + i for x in range(2) for i in range(4)]
                tm = TMP + (k % 4) * 12; k += 1
                phi(A, regs, [tm + i for i in range(8)])
                for i in range(4):
                    A(f"v_cvt_pk_bf16_f32 v{tm+8+i}, v{regs[2*i]}, v{regs[2*i+1]}")
                A(f"buffer_store_dwordx4 {v(tm+8,4)}, v{V_QO+t}, {s(SWS,4)}, s{S_T2} offen sc0 sc1")
            if rp_ == 0: A(f"s_add_u32 s{S_T2}, s{S_T2}, 36864")
        stamp(A, 6, stamps)
        A("s_branch L_p2")
        return
    F = lambda t, m: TMP + (t * 2 + m) * 4
    T2 = TMP + 48
    D = T2 + 16
    assert D + 28 <= 245
    FLA, FLV = V_AO, V_AO + 1
    A(f"""v_mov_b32 v{V_T+2}, 0x3f803f80
    v_mov_b32 v{V_T+3}, 1""")
    rdy_wait(A, FLA, FLV, S_CNT, S_T3)
    E = Auto(A)
    def pack(t, dst, rts=range(4)):
        o_ = []
        for rt in rts:
            r0 = acc(rt, t)
            o = F(dst, rt >> 1) + 2 * (rt & 1)
            o_.append(f"v_cvt_pk_bf16_f32 v{o}, v{r0}, v{r0+1}")
            o_.append(f"v_cvt_pk_bf16_f32 v{o+1}, v{r0+2}, v{r0+3}")
        return o_
    def phil(t, m, tb):
        L_ = Asm()
        phi(L_, [acc(rt, t) + i for rt in (2 * m, 2 * m + 1) for i in range(4)], [tb + i for i in range(8)])
        return [x.strip() for x in L_.lines] + pack(t, t, (2 * m, 2 * m + 1))
    MM = lambda p: D + 4 * p
    MR = lambda p: D + 8 + 4 * p
    RM = lambda p: D + 16 + 4 * p
    RR = D + 24
    mf = lambda d_, a_, b_, m: f"v_mfma_f32_16x16x32_bf16 {v(d_,4)}, {v(F(a_,m),4)}, {v(F(b_,m),4)}, {'0' if m == 0 else v(d_,4)}"
    def under(vs, ms):
        ms = list(ms)
        for x in vs:
            if ms and x.startswith("v_exp"): E(ms.pop(0))
            E(x)
        for x in ms: E(x)
    mk = lambda p: ((1 << p) | (3 << (4 + 2 * p)))
    wr_mm = lambda p: f"""ds_write_b128 v{a_mm}, {v(MM(p),4)} offset:{1024*p}
        s_mov_b32 exec_lo, {mk(p) | (mk(p) << 16):#x}
        s_mov_b32 exec_hi, {mk(p) | (mk(p) << 16):#x}
        ds_write_b128 v{a_mr}, {v(MR(p),4)} offset:{KV_X}
        s_mov_b64 exec, -1"""
    under(phil(0, 0, T2), [])
    lab = A.newlabel("L_nog")
    A(f"""s_cmp_lg_u32 s{S_T1}, 0
    s_cbranch_scc1 {lab}
    s_mov_b32 exec_lo, 0x01000100
    s_mov_b32 exec_hi, 0x01000100""")
    for rt in range(4):
        A(f"buffer_store_dwordx4 {v(acc(rt,4),4)}, v{a_g}, {s(SWS,4)}, 0 offen offset:{64*rt} sc0 sc1")
    A("s_mov_b64 exec, -1")
    A.label(lab)
    for x in pack(2, 2) + pack(4, 5): E(x)
    for i in range(8):
        E(f"v_cndmask_b32 v{F(5,0)+i}, v{F(5,0)+i}, v{V_T+2}, vcc")
    under(phil(0, 1, T2 + 8), [mf(MM(0), 0, 2, 0), mf(MR(0), 0, 5, 0)])
    under(phil(1, 0, T2), [mf(MM(0), 0, 2, 1), mf(MR(0), 0, 5, 1)])
    for x in pack(3, 3): E(x)
    E(wr_mm(0))
    under(phil(1, 1, T2 + 8), [mf(MM(1), 1, 3, 0), mf(MR(1), 1, 5, 0)])
    under(phil(4, 0, T2), [mf(MM(1), 1, 3, 1), mf(MR(1), 1, 5, 1)])
    E(wr_mm(1))
    under(phil(4, 1, T2 + 8), [mf(RR, 4, 5, 0), mf(RM(0), 4, 2, 0), mf(RM(1), 4, 3, 0)])
    for x in [mf(RR, 4, 5, 1), mf(RM(0), 4, 2, 1), mf(RM(1), 4, 3, 1)]: E(x)
    E("s_mov_b32 exec_hi, 0")
    for p in range(2):
        E(f"""s_mov_b32 exec_lo, {mk(p):#x}
        ds_write_b64 v{a_rr}, {v(RR+2*p,2)} offset:{KV_LZ}""")
    E("s_mov_b32 exec_lo, 0xffff")
    for p in range(2):
        E(f"ds_write_b64 v{a_rm}, {v(RM(p)+2*p,2)} offset:{KV_RD + 8*p}")
    E(f"""s_mov_b32 exec_lo, 1
    ds_add_u32 v{a_c}, v{V_T+3}
    s_mov_b64 exec, -1""")
    lpp = A.newlabel("L_e2"); le = A.newlabel("L_e2e")
    A(f"s_mov_b32 s{S_CNT}, 0")
    A.label(lpp)
    A(f"""ds_read_b32 v{V_T+3}, v{a_c}
    s_add_u32 s{S_CNT}, s{S_CNT}, 1
    s_cmp_gt_u32 s{S_CNT}, {SPIN}
    s_cbranch_scc1 {le}
    s_waitcnt lgkmcnt(0)
    v_readfirstlane_b32 s{S_T3}, v{V_T+3}
    s_and_b32 s{S_T3}, s{S_T3}, 0xff
    s_cmp_lg_u32 s{S_T3}, 4
    s_cbranch_scc1 {lpp}""")
    A.label(le)
    R = V_A
    for i in range(6):
        for c in range(2):
            A(f"ds_read_b32 v{R+2*i+c}, v{a_tb if c else a_ta} offset:{(0 if c else STGA) + i*1024}")
    for k in range(6):
        A(f"s_waitcnt lgkmcnt({10-2*k})")
        A(f"""v_add_f32 v{R+2*k}, v{R+2*k}, v{R+2*k+1}
        buffer_atomic_add_f32 v{R+2*k}, v{a_ta}, {s(SWS,4)}, s{S_SX if k < 4 else S_SW} offen offset:{1024*(k%4)} sc1""")
    stamp(A, 6, stamps)
    A("s_branch L_p2")

def loader_params(A):
    A(f"""s_mov_b32 s{S_EK}, 1
    s_mov_b32 s{S_B9}, 1
    s_mov_b32 s{S_CINC}, 0x100
    s_mov_b32 s{S_N1}, 0
    s_mov_b32 s{S_CA}, 0
    s_mov_b32 s{S_FA}, 0
    v_mov_b32 v10, v9""")

def x_voffsets(A, regs, s_first, tmp):
    t0, t1 = tmp
    A(f"""v_lshrrev_b32 v{t0}, 4, v0
    v_and_b32 v{t1}, 7, v0
    v_xor_b32 v{t1}, v{t1}, v{t0}
    s_and_b32 s{S_T3}, s{s_first}, 1
    s_lshl_b32 s{S_T3}, s{S_T3}, 2
    v_xor_b32 v{t1}, s{S_T3}, v{t1}
    v_lshrrev_b32 v{t0}, 3, v0
    v_mul_u32_u24 v{t0}, 1152, v{t0}
    v_lshl_add_u32 v{t1}, v{t1}, 4, v{t0}
    s_mul_i32 s{S_T3}, s{s_first}, 9216
    s_add_u32 s{S_T3}, s{S_T3}, s{S_T2}
    v_add_u32 v{t1}, s{S_T3}, v{t1}
    v_xor_b32 v{t0}, 64, v{t1}""")
    for k, r in enumerate(regs):
        A(f"v_add_u32 v{r}, {9216*k - 1024*(k%4)}, v{t0 if k % 2 else t1}")

def loader_loop(A, typ, issue, NI, nbar_extra, hooks=None):
    kv, PITCH, STG = params(typ)
    hooks = hooks or {}
    issue(); issue()
    for n in range(9):
        if n in hooks: hooks[n][0]()
        allowed = NI if n + 1 <= 8 else 0
        A(f"s_waitcnt vmcnt({allowed})")
        A("s_barrier")
        if n in hooks and hooks[n][1]: hooks[n][1]()
        if n + 2 < 9: issue()
    for _ in range(nbar_extra): A("s_barrier")

def adv(A, STG):
    A(f"""s_add_u32 s{S_ST}, s{S_ST}, 1
    s_cmp_eq_u32 s{S_ST}, 9
    s_cselect_b32 s{S_ST}, 0, s{S_ST}
    s_add_u32 s{S_SLOT}, s{S_SLOT}, {STG}
    s_cmp_eq_u32 s{S_SLOT}, {4*STG}
    s_cselect_b32 s{S_SLOT}, 0, s{S_SLOT}""")

def gen_loader(A, typ, stamps=False):
    kv, PITCH, STG = params(typ)
    PPR = PITCH // 16
    NX = 3 if kv else 4
    S_J, S_XL, S_WL = 86, 87, 88
    A(f"s_sub_u32 s{S_J}, s{S_WAVE}, 4")
    A(f"s_mul_i32 s{S_T2}, s{S_RB}, {128*1152}")
    A(f"s_mul_i32 s{S_T0}, s{S_J}, {NX}")
    xr = [10 + k for k in range(NX)]
    x_voffsets(A, xr, S_T0, (4, 5))
    A(f"s_lshl_b32 s{S_XL}, s{S_T0}, 10")
    A(f"s_mul_i32 s{S_T1}, s{S_J}, 384")
    A(f"s_mul_i32 s{S_WL}, s{S_J}, 6144")
    A(f"s_add_u32 s{S_WL}, s{S_WL}, {XB}")
    if kv:
        A(f"s_mul_i32 s{S_T3}, s{S_CG}, 144")
        A(f"s_add_u32 s{S_T3}, s{S_T3}, 1152")
    else:
        A(f"s_mul_i32 s{S_T3}, s{S_CG}, 384")
    wr = [20 + i for i in range(6)]
    for i in range(6):
        p, sl, pc, o = 4, 5, 6, wr[i]
        A(f"v_add_u32 v{p}, s{S_T1}, v0")
        if i: A(f"v_add_u32 v{p}, {64*i}, v{p}")
        A(f"v_mul_u32_u24 v{sl}, {3641 if kv else 2731}, v{p}")
        A(f"v_lshrrev_b32 v{sl}, 16, v{sl}")
        A(f"v_mul_u32_u24 v{pc}, {PPR}, v{sl}")
        A(f"v_sub_u32 v{pc}, v{p}, v{pc}")
        if kv:
            A(f"""v_lshrrev_b32 v7, 1, v{sl}
            v_and_b32 v7, 4, v7
            v_xor_b32 v{sl}, v{sl}, v7
            v_mul_u32_u24 v{o}, 3456, v{sl}
            v_lshl_add_u32 v{o}, v{pc}, 4, v{o}
            v_cmp_lt_u32 vcc, 8, v{pc}
            v_add_u32 v7, {1152-144}, v{o}
            s_nop 0
            v_cndmask_b32 v{o}, v{o}, v7, vcc""")
        else:
            A(f"""v_bfe_u32 v7, v{sl}, 1, 1
            v_bfe_u32 v8, v{sl}, 3, 1
            v_lshl_add_u32 v7, v8, 1, v7
            v_lshlrev_b32 v7, 1, v7
            v_xor_b32 v{pc}, v{pc}, v7
            v_mul_u32_u24 v{o}, 3456, v{sl}
            v_lshl_add_u32 v{o}, v{pc}, 4, v{o}""")
        A(f"v_add_u32 v{o}, s{S_T3}, v{o}")
        if i % 4: A(f"v_subrev_u32 v{o}, {1024*(i%4)}, v{o}")
    A(f"s_mov_b32 s{S_SLOT}, 0\ns_mov_b32 s{S_ST}, s{S_ROT}")
    touch(A, 10)
    kwait(A, ["x"], stamps)
    if "--touch=0" not in sys.argv: A(f"buffer_load_dword v253, v251, {s(SX,4)}, s9 offen")
    kwait(A, ["w"], stamps)
    smp = f"buffer_load_dword v9, v8, {s(SDBG,4)}, 0 offen sc0 sc1"
    def issue():
        A(f"""s_lshl_b32 s{S_SX}, s{S_ST}, 7
        s_mul_i32 s{S_SW}, s{S_ST}, 221184
        s_add_u32 m0, s{S_SLOT}, s{S_XL}
        s_add_u32 s{S_T0}, s{S_SLOT}, s{S_WL}""")
        for k in range(NX):
            A(f"buffer_load_dwordx4 v{xr[k]}, {s(SX,4)}, s{S_SX} offen offset:{1024*k} lds")
        A(f"s_mov_b32 m0, s{S_T0}\ns_add_u32 s{S_T0}, s{S_T0}, 4096")
        for i in range(4):
            A(f"buffer_load_dwordx4 v{wr[i]}, {s(SW,4)}, s{S_SW} offen offset:{1024*i} lds")
        A(f"s_mov_b32 m0, s{S_T0}\ns_nop 0")
        for i in range(4, 6):
            A(f"buffer_load_dwordx4 v{wr[i]}, {s(SW,4)}, s{S_SW} offen offset:{1024*(i-4)} lds")
        adv(A, STG)
    NI = NX + 6
    stamp0(A, stamps)
    stamp(A, 1, stamps)
    issue()
    kwait(A, ["dbg"], stamps)
    A("v_mov_b32 v8, 0")
    if stamps:
        stamp(A, 2, stamps)
        for n in range(8):
            A(smp)
            issue()
            A(f"s_waitcnt vmcnt({NI})\ns_barrier")
            stamp(A, 3 + n, stamps, last=False)
        loader_params(A)
        stamp(A, 11, stamps, last=True)
        A("s_branch L_p2b")
        return
    A(f"s_mov_b32 s{S_CNT}, 0")
    lp = A.newlabel("L_ld")
    A.label(lp)
    A(smp)
    issue()
    A(f"""s_waitcnt vmcnt({NI})
    s_barrier
    s_add_u32 s{S_CNT}, s{S_CNT}, 1
    s_cmp_lt_u32 s{S_CNT}, 8
    s_cbranch_scc1 {lp}""")
    loader_params(A)
    A("s_branch L_p2b")

def gen_chore(A, stamps=False):
    kv, PITCH, STG = params("kv")
    NX = 7
    A(f"s_mul_i32 s{S_T2}, s{S_RB}, {128*1152}")
    A(f"s_mov_b32 s{S_T0}, 9")
    xr = [10 + k for k in range(NX)]
    x_voffsets(A, xr, S_T0, (4, 5))
    A(f"s_mov_b32 s{S_SLOT}, 0\ns_mov_b32 s{S_ST}, s{S_ROT}")
    def issue():
        A(f"""s_lshl_b32 s{S_SX}, s{S_ST}, 7
        s_add_u32 m0, s{S_SLOT}, 9216
        s_add_u32 s{S_T0}, s{S_SLOT}, {9216+4096}""")
        for k in range(4):
            A(f"buffer_load_dwordx4 v{xr[k]}, {s(SX,4)}, s{S_SX} offen offset:{1024*k} lds")
        A(f"s_mov_b32 m0, s{S_T0}\ns_nop 0")
        for k in range(4, 7):
            A(f"buffer_load_dwordx4 v{xr[k]}, {s(SX,4)}, s{S_SX} offen offset:{1024*(k-4)} lds")
        adv(A, STG)
    A(f"v_lshlrev_b32 v1, 1, v0")
    touch(A, 10)
    kwait(A, ["x"], stamps)
    if "--touch=0" not in sys.argv: A(f"buffer_load_dword v253, v251, {s(SX,4)}, s9 offen")
    kwait(A, ["g"], stamps)
    stamp0(A, stamps)
    for i in range(9):
        A(f"buffer_load_ushort v{30+i}, v1, {s(SG,4)}, 0 offen offset:{128*i}")
    issue()
    A(f"""v_lshrrev_b32 v4, 5, v0
    v_mul_u32_u24 v4, 9216, v4
    v_and_b32 v5, 31, v0
    v_lshl_add_u32 v4, v5, 3, v4
    v_add_u32 v4, {GATE_LDS}, v4
    s_waitcnt vmcnt({NX})""")
    for i in range(9):
        A(f"ds_write_b16 v4, v{30+i} offset:{256*i}")
    A(f"s_mov_b32 s{S_CNT}, 0")
    A("s_waitcnt lgkmcnt(0)")
    kwait(A, ["dbg"], stamps)
    A("v_mov_b32 v8, 0")
    lp = A.newlabel("L_ch")
    A.label(lp)
    A(f"buffer_load_dword v9, v8, {s(SDBG,4)}, 0 offen sc0 sc1")
    issue()
    A(f"""s_waitcnt vmcnt({NX})
    s_barrier""")
    A(f"""s_add_u32 s{S_CNT}, s{S_CNT}, 1
    s_cmp_lt_u32 s{S_CNT}, 8
    s_cbranch_scc1 {lp}""")
    loader_params(A)
    stamp(A, 6, stamps)
    A("s_branch L_p2b")

def rdy_wait(A, fla, flv, sc, st_, first="s_waitcnt vmcnt(0)"):
    lp = A.newlabel("L_zp"); le = A.newlabel("L_ze")
    A(f"s_mov_b32 s{sc}, 0")
    A(first)
    A.label(lp)
    A(f"""v_readfirstlane_b32 s{st_}, v{flv}
    s_cmp_eq_u32 s{st_}, 8
    s_cbranch_scc1 {le}
    s_add_u32 s{sc}, s{sc}, 1
    s_cmp_gt_u32 s{sc}, {SPIN}
    s_cbranch_scc1 {le}
    buffer_load_dword v{flv}, v{fla}, {s(SDBG,4)}, 0 offen sc0 sc1
    s_waitcnt vmcnt(0)
    s_branch {lp}""")
    A.label(le)

def gen_aux(A, stamps=False):
    IMG = 73728
    S_KH_, S_B_, S_J_ = 5, 6, 8
    A(f"""s_bfe_u32 s{S_KH_}, s3, 0x10001
    s_and_b32 s{S_B_}, s3, 1
    s_and_b32 s{S_J_}, s{S_WAVE}, 3
    s_lshr_b32 s{S_T0}, s3, 2
    s_lshl_b32 s{S_T0}, s{S_T0}, 1
    s_add_u32 s{S_CG}, s{S_T0}, s{S_B_}
    s_mul_i32 s{S_T0}, s{S_CG}, 288
    s_mul_i32 s{S_T1}, s{S_KH_}, {288*1152}
    s_add_u32 s{S_SW}, s{S_T0}, s{S_T1}""")
    for i in range(11):
        A(f"""s_add_u32 s{S_T1}, s{S_WAVE}, {8*i}
        s_min_u32 s{S_T1}, s{S_T1}, 80
        s_lshl_b32 s{S_T1}, s{S_T1}, 6
        v_add_u32 v2, s{S_T1}, v0
        v_mul_u32_u24 v3, 58255, v2
        v_lshrrev_b32 v3, 20, v3
        v_mul_u32_u24 v3, {1152-288}, v3
        v_lshl_add_u32 v{20+i}, v2, 4, v3""")
    A("s_waitcnt lgkmcnt(0)")
    srd(A, SW, S_WO, S_WO + 1, 576 * 1152)
    for i in range(11):
        A(f"""s_add_u32 s{S_T1}, s{S_WAVE}, {8*i}
        s_min_u32 s{S_T1}, s{S_T1}, 80
        s_lshl_b32 s{S_T1}, s{S_T1}, 10
        s_add_u32 m0, s{S_T1}, {IMG}
        s_nop 0
        buffer_load_dwordx4 v{20+i}, {s(SW,4)}, s{S_SW} offen lds""")
    kwait(A, ["ws", "dbg"], stamps)
    stamp0(A, stamps)
    A(f"""s_mov_b32 s{S_EK}, 1
    s_mov_b32 s{S_B9}, 0
    s_mov_b32 s{S_CINC}, 0x101
    s_mov_b32 s{S_N1}, 0
    s_mov_b32 s{S_CA}, 0
    s_mov_b32 s{S_FA}, 0
    v_mov_b32 v4, {CL_G}
    v_mov_b32 v8, 0
    v_mov_b32 v9, 0
    v_mov_b32 v10, 0
    v_mov_b32 v11, 0
    ds_write_b128 v4, v[8:11]
    v_lshlrev_b32 v1, 4, v0""")
    l1 = A.newlabel("L_zf"); l2 = A.newlabel("L_zd")
    assert NFLAG % 8 == 0 and NFLAG // 8 <= 64
    A(f"""s_cmp_ge_u32 s{S_WAVE}, 6
    s_cbranch_scc1 {l1}
    s_mul_i32 s{S_T1}, s3, 6144
    s_lshl_b32 s{S_T2}, s{S_WAVE}, 10
    s_add_u32 s{S_T1}, s{S_T1}, s{S_T2}
    s_add_u32 s{S_T1}, s{S_T1}, {WS_KVQ}
    buffer_store_dwordx4 v[8:11], v1, {s(SWS,4)}, s{S_T1} offen sc0 sc1
    s_branch {l2}""")
    A.label(l1)
    A(f"""s_mul_i32 s{S_T1}, s3, {NFLAG // 8 * 256}
    s_add_u32 s{S_T1}, s{S_T1}, {FL}
    v_min_u32 v2, {NFLAG // 8 - 1}, v0
    v_lshlrev_b32 v2, 8, v2
    buffer_store_dword v8, v2, {s(SWS,4)}, s{S_T1} offen sc0 sc1""")
    A.label(l2)
    VT, VTL, VT8, VT8L = 12, 13, 14, 15
    A(f"""v_lshrrev_b32 v2, 2, v0
    v_mul_u32_u24 v2, 288, v2
    v_and_b32 v3, 3, v0
    s_lshl_b32 s{S_T0}, s{S_J_}, 6
    s_lshl_b32 s{S_T1}, s{S_B_}, 5
    s_add_u32 s{S_T0}, s{S_T0}, s{S_T1}
    s_add_u32 s{S_T0}, s{S_T0}, {IMG}
    v_lshl_add_u32 v{VT}, v3, 4, v2
    v_add_u32 v{VT}, s{S_T0}, v{VT}
    v_add_u32 v16, {180*288}, v{VT}
    s_mul_i32 s{S_T1}, s{S_J_}, 20736
    s_lshl_b32 s{S_T2}, s{S_B_}, 8
    s_sub_u32 s{S_T1}, s{S_T1}, s{S_T2}
    s_add_u32 s{S_T1}, s{S_T1}, {IMG + 256}
    v_lshl_add_u32 v{VT8}, v3, 3, v2
    v_add_u32 v{VT8}, s{S_T1}, v{VT8}
    v_bfe_u32 v2, v0, 3, 1
    v_mul_u32_u24 v2, 36, v2
    v_bfe_u32 v5, v0, 2, 1
    v_lshl_add_u32 v2, v5, 1, v2
    v_lshrrev_b32 v6, 4, v0
    v_mul_u32_u24 v5, 72, v6
    v_add3_u32 v5, v5, v2, 16
    v_mul_u32_u24 v5, 288, v5
    v_lshl_add_u32 v5, v3, 4, v5
    v_add_u32 v{VTL}, s{S_T0}, v5
    v_and_b32 v5, 1, v6
    v_add3_u32 v5, v5, v2, 16
    v_mul_u32_u24 v5, 288, v5
    v_lshl_add_u32 v5, v3, 3, v5
    v_add_u32 v{VT8L}, s{S_T1}, v5
    v_lshlrev_b32 v7, 3, v0
    s_lshl_b32 s{S_T0}, s{S_CG}, 3
    s_lshl_b32 s{S_T1}, s{S_KH_}, 2
    s_add_u32 s{S_T0}, s{S_T0}, s{S_T1}
    s_add_u32 s{S_T0}, s{S_T0}, s{S_J_}
    s_mul_i32 s{S_T0}, s{S_T0}, {WPU}
    s_add_u32 s{S_T0}, s{S_T0}, {WS_WP}
    s_waitcnt vmcnt(0) lgkmcnt(0)
    s_barrier""")
    stamp(A, 1, stamps)
    l3 = A.newlabel("L_ph"); l4 = A.newlabel("L_pd")
    A(f"""s_cmp_ge_u32 s{S_WAVE}, 4
    s_cbranch_scc1 {l3}""")
    for hh in range(2):
        E = Auto(A)
        blocks = range(10) if hh == 0 else range(10, 21)
        for n in blocks:
            r = 40 + 4 * n
            for u in range(2):
                if n < 16: E(f"ds_read_b64_tr_b16 {v(r+2*u,2)}, v{VT if n < 10 else 16} offset:{(36*((n>>1)-(5 if n >= 10 else 0))+20*u)*288+8*(n&1)}")
                elif n < 18: E(f"ds_read_b64_tr_b16 {v(r+2*u,2)}, v{VTL} offset:{288*u+8*(n&1)}")
                elif n < 20: E(f"ds_read_b64_tr_b16 {v(r+2*u,2)}, v{VT8} offset:{(36*(n-18)+20*u)*288}")
                elif u == 0: E(f"ds_read_b64_tr_b16 {v(r,2)}, v{VT8L}")
        for n in blocks:
            r = 40 + 4 * n
            if n % 4 == 0 or n == blocks[0]: E(f"s_add_u32 s{S_T1}, s{S_T0}, {4096*(n>>2)}")
            if n < 20: E(f"buffer_store_dwordx4 {v(r,4)}, v1, {s(SWS,4)}, s{S_T1} offen offset:{1024*(n&3)} sc0 sc1")
            else: E(f"buffer_store_dwordx2 {v(r,2)}, v7, {s(SWS,4)}, s{S_T1} offen sc0 sc1")
        if hh == 0:
            A(f"s_branch {l4}")
            A.label(l3)
    A.label(l4)
    l5 = A.newlabel("L_nf"); l6 = A.newlabel("L_np")
    A(f"""s_waitcnt vmcnt(0)
    s_barrier
    s_cmp_lg_u32 s{S_WAVE}, 0
    s_cbranch_scc1 {l5}
    v_mov_b32 v2, 1
    s_mov_b64 exec, 1
    buffer_atomic_add v2, v8, {s(SDBG,4)}, 0 offen sc1
    s_mov_b64 exec, -1""")
    A.label(l5)
    stamp(A, 2, stamps)
    rdy_wait(A, 8, 10, S_CNT, S_T3)
    stamp(A, 3, stamps)
    A(f"""s_cmp_ge_u32 s{S_WAVE}, 4
    s_cbranch_scc1 {l6}
    s_lshr_b32 s{S_T0}, s3, 2
    s_lshl_b32 s{S_T0}, s{S_T0}, 4
    s_add_u32 s{S_T0}, s{S_T0}, s{S_WAVE}
    s_mul_i32 s{S_T0}, s{S_T0}, {WPU}
    s_add_u32 s{S_T0}, s{S_T0}, {WS_WP + 4*WPU}
    s_mov_b32 s{S_CNT}, 0""")
    lp = A.newlabel("L_pf")
    A.label(lp)
    A(f"""buffer_load_dwordx4 v[12:15], v1, {s(SWS,4)}, s{S_T0} offen sc1
    s_add_u32 s{S_T0}, s{S_T0}, 1024
    s_add_u32 s{S_CNT}, s{S_CNT}, 1
    s_sub_u32 s{S_T2}, s{S_T0}, {5*WPU}
    s_cmp_eq_u32 s{S_CNT}, 21
    s_cselect_b32 s{S_T0}, s{S_T2}, s{S_T0}
    s_cmp_lt_u32 s{S_CNT}, 42
    s_cbranch_scc1 {lp}
    s_waitcnt vmcnt(0)""")
    A.label(l6)
    stamp(A, 6, stamps)
    A("s_branch L_p2")
```

```python
from asm import *
from auto import Auto
from l1gemm import *
import sys

def opt(name, default):
    for a_ in sys.argv:
        if a_.startswith(f"--{name}="): return a_.split("=", 1)[1]
    return default
FINE = "--fine" in sys.argv
THR = int(opt("thr", "4"))
PSLEEP = int(opt("psleep", "0"))
OUTB = opt("outb", "").replace("_", " ")

def gen_p2(A0, stamps=False):
    A = Auto(A0)
    SWO, SOUT = SW, SX
    ws, wo = s(SWS, 4), s(SWO, 4)
    S_J, S_KH, S_RP, S_CM = 3, 4, 5, 6
    T0, T1, T2, T3 = 7, 8, 9, 10
    S_KV0, S_KV1, S_PQ0, S_PQ1, S_G0, S_G1 = 11, 12, 13, 14, 15, 60
    S_BT0, S_BT1, S_BT8, S_O0, S_O8 = 61, 62, 63, 65, 66
    S_P = 67
    S_C8, S_WB, S_W8, S_ER, S_BOK, S_PBV, TD = 70, 73, 74, 75, 76, 71, 77
    M8A, M8S = 78, 82
    MK = [84, 86, 88, 24, 26, 28, 30, 32, 34, 36, 22, 16, 18]
    I16, Q, V16, VX, VS, VR, VG, VFL, VSF, FLV, SFV = range(1, 12)
    VT = [12, 13, 14]
    VT8, VMB = 15, 16
    VP = [17, 18, 19, 20]
    VLF, VLW = 21, 22
    VO = [23, 24, 25, 26]
    VEW, VER, VB0, VB8, VOUT, VOUT8 = 27, 28, 29, 30, 31, 32
    X0, X1, X2, X3, VC = 35, 36, 37, 38, 39
    GV, DIAG, EPSV = 40, 42, 44
    AM = lambda h: 48 + 6 * h
    MG = lambda h: 72 + 6 * h
    PQ = lambda h: 96 + 6 * h
    XR, SR, RR_ = 122, 126, 130
    VW0, VWL, VW8, VW8L = 122, 123, 124, 125
    NUM = lambda l, h: 134 + 16 * l + 4 * h
    DD = lambda l: (126, 122)[l]
    TT = 130
    UU = lambda l: (4, 12)[l]
    PE = lambda l, p: NUM(l, 2 * p)
    NL = lambda l: 166 + 2 * l
    WOF = lambda st, c: 172 + 8 * st + 4 * c
    W8 = lambda p: 244 + 4 * p
    W8L = 252
    ACC = lambda l, c: 48 + 8 * l + 4 * c
    AC8 = lambda l: 64 + 4 * l
    BTF = [44, 46, 170]
    OFR = [[108, 112, 116, 150, 154, 158, 162, 122, 130], [72 + 4 * k for k in range(9)]]
    OF = lambda l, st: OFR[l][st]
    P8 = [72 + 4 * k for k in range(8)]
    EX = [104, 56]
    seen = set()
    def st(idx, last=False):
        if not stamps or idx in seen: return
        seen.add(idx)
        A.one("s_waitcnt lgkmcnt(0)")
        stamp(A0, idx, stamps, last=last)
        A.t += 3
    A0.raw(".p2align 6")
    A0.label("L_p2")
    A(f"""v_mbcnt_lo_u32_b32 v0, -1, 0
    v_mbcnt_hi_u32_b32 v0, -1, v0
    v_mov_b32 v{X2}, 0""")
    srd(A0, SDBG, S_DBG, S_DBG + 1, 256)
    A0(f"buffer_load_dword v{FLV}, v{X2}, {s(SDBG,4)}, 0 offen sc0 sc1")
    A0.label("L_p2b")
    srd(A0, SWS, S_WS, S_WS + 1, WS_SIZE)
    if stamps:
        A(f"""v_add_u32 v254, 0x40000, v254
        v_mov_b32 v255, 0
        v_writelane_b32 v255, s92, 0
        v_writelane_b32 v255, s94, 14""")
        st(1)
    A(f"""s_and_b32 s{S_J}, s{S_WAVE}, 3
    s_lshr_b32 s{S_KH}, s{S_WAVE}, 2
    v_lshlrev_b32 v{V16}, 4, v0
    v_lshlrev_b32 v{VT8}, 3, v0
    v_mov_b32 v{X1}, 0
    v_mov_b32 v{X2}, 0
    v_mov_b32 v{X3}, 1
    v_mov_b64 {v(W8L,2)}, 0
    s_cmp_eq_u32 s{S_EK}, 0
    s_cselect_b32 s{S_PBV}, {PB_S - PB_G}, 0
    s_cselect_b32 s{T0}, {PJ_S - PJ_G}, 0
    s_cselect_b32 s{T1}, {PK_S - PK_G}, 0
    s_cselect_b32 s{T2}, {CL_S - CL_G}, 0
    s_add_u32 s{S_PBV}, s{S_PBV}, {PB_G}
    s_add_u32 s{T0}, s{T0}, {PJ_G}
    s_add_u32 s{T1}, s{T1}, {PK_G}
    s_add_u32 s{T2}, s{T2}, {CL_G}
    s_mul_i32 s{T0}, s{T0}, s{S_J}
    s_add_u32 s{S_P}, s{S_PBV}, s{T0}
    s_add_u32 s{S_P+1}, s{S_P}, s{T1}
    s_add_u32 s{S_P+2}, s{S_P+1}, s{T1}
    v_mov_b32 v{VC}, s{T2}
    s_cmp_eq_u32 s{S_KH}, s{S_EK}
    s_cselect_b32 s{S_ER}, 1, 0""")
    l_nd = A0.newlabel("L_nd"); l_e0 = A0.newlabel("L_e0")
    A0(f"""s_cbranch_scc0 {l_nd}
    s_bfe_u32 s{T1}, s2, 0x10002
    s_lshl_b32 s{T1}, s{T1}, 4
    s_lshr_b32 s{T0}, s2, 7
    s_lshl_b32 s{T0}, s{T0}, 3
    s_add_u32 s{T0}, s{T0}, s{T1}
    s_add_u32 s{T0}, s{T0}, s{S_WAVE}
    s_xor_b32 s{T1}, s{T0}, 4
    s_mul_i32 s{S_WB}, s{T0}, {WPU}
    s_mul_i32 s{S_W8}, s{T1}, {WPU}
    s_add_u32 s{S_WB}, s{S_WB}, {WS_WP}
    s_add_u32 s{S_W8}, s{S_W8}, {WS_WP}
    s_cmp_eq_u32 s{S_B9}, 1
    s_cbranch_scc1 {l_e0}
    s_waitcnt vmcnt(0)""")
    A0.label(l_e0)
    rdy_wait(A0, X2, FLV, T3, T2, first="s_nop 0")
    def own(k):
        for n in range(7 * k, 7 * k + 7):
            if n % 4 == 0 or n % 7 == 0: A0(f"s_add_u32 s{TD}, s{S_WB}, {4096*(n>>2)}")
            if n < 20: A0(f"buffer_load_dwordx4 {v(172+4*n,4)}, v{V16}, {ws}, s{TD} offen offset:{1024*(n&3)} sc1")
            else: A0(f"s_mov_b32 exec_hi, 0\nbuffer_load_dwordx2 {v(W8L,2)}, v{VT8}, {ws}, s{TD} offen sc1\ns_mov_b64 exec, -1")
    def dma(k):
        for n in range(7 * k, 7 * k + 7):
            A0(f"""s_add_u32 m0, s{S_P+k}, {1024*(n%7)}
            s_add_u32 s{TD}, s{S_W8}, {1024*n}""")
            if n == 20: A0("s_mov_b64 exec, 0xffff")
            if THR: A0(f"s_waitcnt vmcnt({THR})")
            A0(f"buffer_load_dwordx4 v{V16}, {ws}, s{TD} offen sc1 lds")
            if n == 20: A0("s_mov_b64 exec, -1")
    l_n9 = A0.newlabel("L_n9"); l_n8 = A0.newlabel("L_n8")
    own(0)
    A0(f"""s_cmp_eq_u32 s{S_B9}, 0
    s_cbranch_scc1 {l_n8}
    s_waitcnt vmcnt(7)
    s_barrier
    ds_write_b64 v{VC}, {v(X1,2)}""")
    A0.label(l_n8)
    own(1)
    A0(f"""s_cmp_eq_u32 s{S_B9}, 0
    s_cbranch_scc1 {l_n9}
    s_waitcnt lgkmcnt(0)
    s_barrier""")
    A0.label(l_n9)
    own(2)
    A0("s_setprio 0")
    A0.label(l_nd)
    A(f"v_lshrrev_b32 v{Q}, 4, v0")
    def part_a():
        L_ = Asm(); A = Auto(L_)
        A(f"""s_and_b32 s{T0}, s2, 3
        s_lshl_b32 s{T0}, s{T0}, 4
        s_bfe_u32 s{S_RP}, s2, 0x40003
        s_add_u32 s{S_RP}, s{S_RP}, s{T0}
        v_and_b32 v{I16}, 15, v0
        v_and_b32 v{X0}, 3, v0
        v_add_u32 v{X1}, 8, v{X0}
        v_min_u32 v{X1}, v{X1}, v{I16}
        v_mul_u32_u24 v{VX}, 192, v{Q}
        v_lshl_add_u32 v{VX}, v{X1}, 4, v{VX}
        v_lshrrev_b32 v{X1}, 1, v{X1}
        v_lshlrev_b32 v{X1}, 4, v{X1}
        v_add_u32 v{X1}, {KV_LZ - KV_RD}, v{X1}
        v_cmp_gt_u32 vcc, 32, v0
        v_and_b32 v{VR}, 511, v{V16}
        v_lshlrev_b32 v{VG}, 2, v{I16}
        v_cndmask_b32 v{VS}, v{X1}, v{V16}, vcc
        s_mul_i32 s{S_KV0}, s{S_WAVE}, 6144
        s_add_u32 s{S_KV0}, s{S_KV0}, {WS_KVQ}
        s_add_u32 s{S_KV1}, s{S_KV0}, 4096
        s_mul_i32 s{T0}, s{S_RP}, 36864
        s_mul_i32 s{T1}, s{S_WAVE}, 4608
        s_add_u32 s{S_PQ0}, s{T0}, s{T1}
        s_add_u32 s{S_PQ1}, s{S_PQ0}, 4096
        s_lshl_b32 s{T0}, s{S_RP}, 1
        s_add_u32 s{T0}, s{T0}, s{S_KH}
        s_lshl_b32 s{S_G0}, s{T0}, 6
        s_lshl_b32 s{T1}, s{S_WAVE}, 13
        s_add_u32 s{S_G0}, s{S_G0}, s{T1}
        s_add_u32 s{S_G0}, s{S_G0}, {WS_G}
        s_xor_b32 s{S_G1}, s{S_G0}, 64
        s_mul_i32 s{T0}, s{S_WAVE}, {NREP}
        s_and_b32 s{T1}, s2, {NREP-1}
        s_add_u32 s{T0}, s{T0}, s{T1}
        s_lshl_b32 s{T0}, s{T0}, 8
        s_add_u32 s{T0}, s{T0}, {FL_KV}
        v_mov_b32 v{VFL}, s{T0}
        s_lshr_b32 s{T0}, s{S_RP}, 1
        s_mul_i32 s{T0}, s{T0}, 6
        s_add_u32 s{T0}, s{T0}, {FL_Q >> 8}
        s_mul_i32 s{T1}, s{S_WAVE}, 3
        s_add_u32 s{T2}, s{T1}, 2
        s_lshr_b32 s{T1}, s{T1}, 2
        s_lshr_b32 s{T2}, s{T2}, 2
        s_add_u32 s{T1}, s{T1}, s{T0}
        s_add_u32 s{T2}, s{T2}, s{T0}
        s_lshl_b32 s{T1}, s{T1}, 8
        s_lshl_b32 s{T2}, s{T2}, 8
        v_writelane_b32 v{VFL}, s{T1}, 1
        v_writelane_b32 v{VFL}, s{T2}, 2""")
        return [x.strip() for x in L_.lines]
    for x in part_a(): A0(x)
    st(2)
    def cwait():
        lp = A0.newlabel("L_cw"); le = A0.newlabel("L_ce")
        A0(f"s_mov_b32 s{T3}, 0")
        A0.label(lp)
        A0(f"""ds_read_b32 v{X0}, v{VC}
        s_add_u32 s{T3}, s{T3}, 1
        s_cmp_gt_u32 s{T3}, {SPIN}
        s_cbranch_scc1 {le}
        s_waitcnt lgkmcnt(0)
        v_readfirstlane_b32 s{T2}, v{X0}
        s_cmp_eq_u32 s{T2}, 0x404
        s_cbranch_scc1 {le}
        s_sleep 1
        s_branch {lp}""")
        A0.label(le)
    l_w = A0.newlabel("L_w")
    A0(f"""s_cmp_eq_u32 s{S_ER}, 1
    s_cbranch_scc1 {l_w}""")
    rdy_wait(A0, X2, FLV, T3, T2)
    A0.label(l_w)
    A0(f"""v_mov_b32 v{X1}, 16
    v_lshlrev_b32 v{X2}, 8, v0""")
    l_ns = A0.newlabel("L_ns"); l_s2 = A0.newlabel("L_s2"); l_sx = A0.newlabel("L_sx")
    A0(f"""s_cmp_eq_u32 s{S_N1}, 0
    s_cbranch_scc1 {l_ns}
    s_mov_b64 exec, 1
    s_cmp_eq_u32 s{S_N1}, 1
    s_cbranch_scc1 {l_s2}
    ds_add_rtn_u32 v{X0}, v{VC}, v{X3} offset:4
    s_sub_u32 s{T3}, s{S_N1}, 1
    s_waitcnt lgkmcnt(0)
    v_readfirstlane_b32 s{T2}, v{X0}
    s_cmp_lg_u32 s{T2}, s{T3}
    s_cbranch_scc1 {l_sx}
    s_cmp_eq_u32 s{S_CA}, 0
    s_cbranch_scc1 {l_s2}
    s_mov_b64 exec, {(1 << NREP) - 1:#x}
    buffer_atomic_add v{X3}, v{X2}, {ws}, s{S_FA} offen sc1
    s_branch {l_sx}""")
    A0.label(l_s2)
    A0(f"buffer_store_dword v{X1}, v{X2}, {ws}, s{S_FA} offen sc0 sc1")
    A0.label(l_sx)
    A0("s_mov_b64 exec, -1")
    A0.label(l_ns)
    st(3)
    pollreq = f"""s_mov_b64 exec, 7
    v_mov_b32 v{FLV}, 0
    buffer_atomic_add v{FLV}, v{VFL}, {ws}, 0 offen sc0 sc1
    s_mov_b64 exec, -1"""
    l_c1 = A0.newlabel("L_c1"); l_c2 = A0.newlabel("L_c2")
    A0(f"""s_cmp_eq_u32 s{S_ER}, 1
    s_cbranch_scc0 {l_c1}""")
    for k in range(3): dma(k)
    if FINE: st(6)
    A0(pollreq)
    A0(f"""v_mov_b32 v{X1}, s{S_CINC}
    s_waitcnt vmcnt(1)
    s_mov_b64 exec, 1
    ds_add_u32 v{VC}, v{X1}
    s_mov_b64 exec, -1""")
    if FINE: st(7)
    cwait()
    A0(f"s_branch {l_c2}")
    A0.label(l_c1)
    cwait()
    A0(pollreq)
    for k in range(3): A0(f"v_add_u32 v{VT[k]}, s{S_P+k}, v{V16}")
    A0(f"v_add_u32 v{VT8}, s{S_P+2}, v{VT8}")
    for n in range(20): A0(f"ds_read_b128 {v(172+4*n,4)}, v{VT[n//7]} offset:{1024*(n%7)}")
    A0(f"s_mov_b32 exec_hi, 0\nds_read_b64 {v(W8L,2)}, v{VT8} offset:6144\ns_mov_b64 exec, -1")
    A0.label(l_c2)
    A0("s_setprio 0")
    st(4)
    def poll(vaddr, vdst, mask, need=None, atomic=True, pending=False):
        lp = A0.newlabel("L_fp"); le = A0.newlabel("L_fe"); l1 = A0.newlabel("L_f1")
        A0(f"s_mov_b32 s{T3}, 0\ns_mov_b64 exec, {mask:#x}")
        if pending: A0(f"s_branch {l1}")
        A0.label(lp)
        if PSLEEP: A0(f"s_sleep {PSLEEP}")
        if atomic: A0(f"v_mov_b32 v{vdst}, 0\nbuffer_atomic_add v{vdst}, v{vaddr}, {ws}, 0 offen sc0 sc1")
        else: A0(f"buffer_load_dword v{vdst}, v{vaddr}, {ws}, 0 offen sc0 sc1")
        A0.label(l1)
        A0(f"""s_add_u32 s{T3}, s{T3}, 1
        s_waitcnt vmcnt(0)
        v_cmp_ne_u32 vcc, 16, v{vdst}
        s_cmp_gt_u32 s{T3}, {SPIN}
        s_cbranch_scc1 {le}
        s_and_b32 s{T2}, vcc_lo, {need or mask:#x}
        s_cbranch_scc1 {lp}""")
        A0.label(le)
        A0("s_mov_b64 exec, -1")
    SC = "sc1"
    poll(VFL, FLV, 0x7, 0x6, pending=True)
    A.flush(); A.lastw = {}
    st(5)
    A(f"buffer_load_dwordx4 {v(RR_,4)}, v{VR}, {ws}, s{S_PQ1} offen {SC}")
    for h in range(4):
        A(f"buffer_load_dwordx4 {v(PQ(h)+2,4)}, v{V16}, {ws}, s{S_PQ0} offen offset:{1024*h} {SC}")
    l_kv = A0.newlabel("L_kv")
    A0(f"s_cbranch_vccz {l_kv}")
    poll(VFL, FLV, 0x1)
    A0.label(l_kv)
    st(12)
    A(f"""buffer_load_dwordx4 {v(XR,4)}, v{VX}, {ws}, s{S_KV1} offen offset:{KV_X-4096} {SC}
    buffer_load_dwordx4 {v(SR,4)}, v{VS}, {ws}, s{S_KV1} offen offset:{KV_RD-4096} {SC}""")
    for l in (1, 0):
        A(f"buffer_load_dword v{GV+l}, v{VG}, {ws}, s{S_G0 if l == 0 else S_G1} offen {SC}")
    for h in range(4):
        A(f"buffer_load_dwordx4 {v(AM(h)+2,4)}, v{V16}, {ws}, s{S_KV0} offen offset:{1024*h} {SC}")
    def mask64(f):
        m = 0
        for l in range(64):
            if f(l & 15, l >> 4): m |= 1 << l
        return m
    masks = {}
    def getmask(f):
        m = mask64(f)
        if m not in masks:
            r = MK[len(masks)]
            src = [(m0_, k) for m0_ in masks for k in range(1, 17) if (m0_ << k) == m]
            if m < (1 << 31): A(f"s_mov_b64 {s(r,2)}, {m:#x}")
            elif src: A(f"s_lshl_b64 {s(r,2)}, {s(masks[src[0][0]],2)}, {src[0][1]}")
            else: A(f"s_mov_b32 s{r}, {m & 0xffffffff:#x}\ns_mov_b32 s{r+1}, {m >> 32:#x}")
            masks[m] = r
        return s(masks[m], 2)
    mh = [getmask(lambda i, q: (i & 3) == h) for h in range(4)]
    mq = [getmask(lambda i, q: q == p) for p in range(2)]
    ms = [getmask(lambda i, q: q >= 2 and (i & 3) == 2 * (q & 1) + par) for par in range(2)]
    zr = [AM(h) for h in range(4)] + [MG(h) + x for h in range(4) for x in (0, 5)] + [MG(h) + x for h in (2, 3) for x in (1, 4)]
    zr += [PQ(0), PQ(4) + 1]
    for r in zr: A(f"v_mov_b32 v{r}, 0")
    for r in (NL(0), NL(1), BTF[2], EPSV, EPSV + 2): A(f"v_mov_b64 {v(r,2)}, 0")
    A("s_waitcnt lgkmcnt(0)")
    A("s_mov_b32 exec_lo, 0")
    for r in range(4): A(f"v_mov_b32 v{EPSV+r}, {EPS:#x}")
    A(f"""s_mov_b64 exec, -1
    s_bfe_u32 s{T1}, s2, 0x10002
    s_mul_i32 s{T1}, s{T1}, 288
    s_lshr_b32 s{T0}, s2, 7
    s_mul_i32 s{S_CM}, s{T0}, 160
    s_add_u32 s{S_CM}, s{S_CM}, s{T1}
    s_lshl_b32 s{S_C8}, s{T0}, 4
    s_add_u32 s{S_C8}, s{S_C8}, s{T1}
    s_add_u32 s{S_C8}, s{S_C8}, 128
    s_cmp_eq_u32 s{S_EK}, 0
    s_cselect_b32 s{S_BOK}, {EM_S - EM_G}, 0
    s_add_u32 s{S_BOK}, s{S_BOK}, {EM_G}
    s_cmp_eq_u32 s{S_ER}, 1
    s_cselect_b32 s{T1}, {EMP ^ LMP}, 0
    s_cselect_b32 s{T0}, s{S_BOK}, 0
    s_cselect_b32 s{T2}, 0, s{S_BOK}
    s_xor_b32 s{T3}, s{T1}, {EMP}
    s_xor_b32 s{T1}, s{T1}, {LMP}
    v_add_u32 v{VP[0]}, s{T0}, v{V16}
    v_add_u32 v{VO[0]}, s{T2}, v{V16}""")
    for k in range(1, 4):
        A(f"v_add_u32 v{VP[k]}, s{T1}, v{VP[k-1]}\nv_add_u32 v{VO[k]}, s{T3}, v{VO[k-1]}")
    A(f"""v_mul_u32_u24 v{VLF}, s{T1}, v{Q}
    v_lshl_add_u32 v{VLF}, v{I16}, 4, v{VLF}
    v_add_u32 v{VLF}, s{T0}, v{VLF}
    s_mul_i32 s{T2}, s{S_J}, s{T1}
    s_add_u32 s{T2}, s{T2}, s{T0}
    v_add_u32 v{VMB}, s{T2}, v{V16}
    v_lshlrev_b32 v{VLW}, 3, v{Q}
    v_lshl_add_u32 v{VLW}, v{I16}, 4, v{VLW}
    v_add_u32 v{VLW}, s{T2}, v{VLW}
    s_lshr_b32 s{T0}, s{S_CM}, 3
    s_lshl_b32 s{T1}, s{S_J}, 2
    s_add_u32 s{T0}, s{T0}, s{T1}
    s_add_u32 s{T0}, s{T0}, {FL_S >> 8}
    v_add_lshl_u32 v{VSF}, v0, s{T0}, 8
    s_lshl_b32 s{M8A}, 0x000f000f, s{T1}
    s_mov_b32 s{M8A+1}, s{M8A}
    s_lshr_b32 s{T0}, s{S_C8}, 3
    s_lshr_b32 s{T1}, s{S_J}, 1
    s_add_u32 s{T0}, s{T0}, s{T1}
    s_add_u32 s{T0}, s{T0}, {FL_S >> 8}
    s_lshl_b32 s{T0}, s{T0}, 8
    v_writelane_b32 v{VSF}, s{T0}, 4
    s_mov_b32 s{S_BOK}, 0""")
    late = Asm(); LA = Auto(late)
    srd(late, SOUT, S_OUT, S_OUT + 1, 2048 * 1152)
    LA(f"""s_lshl_b32 s{T0}, s{S_WAVE}, 11
    s_xor_b32 s{T1}, s{T0}, 8192
    s_add_u32 s{T0}, s{T0}, s{S_PBV}
    s_add_u32 s{T1}, s{T1}, s{S_PBV}
    v_add_u32 v{VEW}, s{T0}, v{V16}
    v_add_u32 v{VER}, s{T1}, v{V16}
    v_and_b32 v{X0}, 3, v0
    v_lshlrev_b32 v{X0}, 3, v{X0}
    v_lshl_add_u32 v{X0}, v{Q}, 5, v{X0}
    v_lshrrev_b32 v{X1}, 2, v{I16}
    v_lshl_add_u32 v{VB0}, v{X1}, 15, v{X0}
    v_lshl_add_u32 v{VB8}, v{X1}, 14, v{X0}
    v_mul_u32_u24 v{X1}, 1152, v{I16}
    v_lshl_add_u32 v{VOUT}, v{Q}, 4, v{X1}
    v_lshl_add_u32 v{VOUT8}, v{Q}, 3, v{X1}
    s_lshl_b32 s{T0}, s{S_RP}, 1
    s_add_u32 s{T0}, s{T0}, s{S_KH}
    s_lshl_b32 s{T2}, s{S_J}, 5
    s_add_u32 s{T2}, s{T2}, s{S_CM}
    s_mul_i32 s{T1}, s{T0}, {8*1152}
    s_add_u32 s{S_O0}, s{T1}, s{T2}
    s_add_u32 s{S_O8}, s{T1}, s{S_C8}
    s_lshl_b32 s{S_O0}, s{S_O0}, 1
    s_lshl_b32 s{S_O8}, s{S_O8}, 1
    s_lshl_b32 s{T3}, s{T0}, 7
    s_add_u32 s{T3}, s{T3}, {WS_BT}
    s_lshl_b32 s{T2}, s{T2}, 12
    s_add_u32 s{S_BT0}, s{T3}, s{T2}
    s_add_u32 s{S_BT1}, s{S_BT0}, {4*4096}
    s_lshl_b32 s{T2}, s{S_C8}, 12
    s_add_u32 s{S_BT8}, s{T3}, s{T2}
    s_lshl_b32 s{T0}, s{S_J}, 4
    s_lshl_b64 {s(M8S,2)}, 0xffff, s{T0}""")
    for x in late.lines: A(x.strip())
    md0 = getmask(lambda i, q: q == (i >> 2) and (i & 2) == 0)
    md1 = getmask(lambda i, q: q == (i >> 2) and (i & 2) != 0)
    modd = getmask(lambda i, q: (i & 1) == 1)
    st(13)
    for h in range(4):
        A(f"v_mov_b32 v{PQ(h)+1}, v{RR_+(h&1)}")
        A(f"v_mov_b32 v{PQ(h+1)}, v{RR_+2+(h&1)}")
    A(f"""v_cvt_pk_bf16_f32 v{XR}, v{XR}, v{XR+1}
    v_cvt_pk_bf16_f32 v{XR+1}, v{XR+2}, v{XR+3}""")
    for h in range(4):
        for x in range(2): A(f"v_cndmask_b32 v{MG(h)+2+x}, 0, v{XR+x}, {mh[h]}")
    A(f"""v_cvt_pk_bf16_f32 v{SR}, v{SR}, v{SR+1}
    v_cvt_pk_bf16_f32 v{SR+1}, v{SR+2}, v{SR+3}""")
    for h in range(2):
        for x in (4, 1): A(f"v_cndmask_b32 v{MG(h)+x}, 0, v{SR+h}, {ms[h]}")
    st(6)
    MF = "v_mfma_f32_16x16x32_bf16"
    mg = lambda l, h: f"{MF} {v(DD(l),4)}, {v(MG(h)+2*l,4)}, {v(PQ(h)+4*l,4)}, {v(EPSV,4) if h == 0 else v(DD(l),4)}"
    nm = lambda l, h: f"{MF} {v(NUM(l,h),4)}, {v(AM(h)+2*l,4)}, {v(PQ(h)+4*l,4)}, 0"
    sig = [f"v_mul_f32 v{GV+l}, {LOG2E:#x}, v{GV+l}" for l in (1, 0)] + [f"v_exp_f32 v{GV+l}, -v{GV+l}" for l in (1, 0)] + \
          [f"v_add_f32 v{GV+l}, 1.0, v{GV+l}" for l in (1, 0)]
    amr = [f"v_cndmask_b32 v{AM(h)+1}, 0, v{SR+(h&1)}, {mq[h>>1]}" for h in range(4)]
    def amb(h):
        r = AM(h)
        return [f"v_cvt_pk_bf16_f32 v{r+2}, v{r+2}, v{r+3}", f"v_cvt_pk_bf16_f32 v{r+3}, v{r+4}, v{r+5}",
                f"v_mov_b32 v{r+4}, v{r+1}", f"v_mov_b32 v{r+5}, 0"]
    def den(l):
        o = []
        D, T, U = DD(l), TT, UU(l)
        for r in range(4): o.append(f"v_mul_f32 v{U+r}, v{GV+l}, v{D+r}")
        for r in range(4): o.append(f"v_mul_f32 v{T+r}, v{GV+l}, v{D+r}")
        for r in range(4): o.append(f"v_permlane32_swap_b32 v{T+r}, v{U+r}")
        for r in range(4): o.append(f"v_rcp_f32 v{U+r}, v{U+r}")
        return o
    def num(l, pk):
        o = []
        D, U = DD(l), UU(l)
        if pk:
            for x in (0, 2): o.append(f"v_pk_mul_f32 {v(D+x,2)}, {v(D+x,2)}, {v(U+x,2)}")
        else:
            for x in range(4): o.append(f"v_mul_f32 v{D+x}, v{D+x}, v{U+x}")
        o.append("s_mov_b32 exec_hi, 0\n" + f"v_cvt_pk_bf16_f32 v{NL(l)}, v{D}, v{D+1}\nv_cvt_pk_bf16_f32 v{NL(l)+1}, v{D+2}, v{D+3}\n"
                 + f"ds_write_b64 v{VLW}, {v(NL(l),2)} offset:{4096+256*l}\ns_mov_b64 exec, -1")
        for h in range(4):
            n = NUM(l, h); e = h & 1
            if pk:
                for x in (0, 2):
                    o.append(f"v_pk_mul_f32 {v(n+x,2)}, {v(n+x,2)}, {v(U+(h&2),2)} op_sel:[0,{e}] op_sel_hi:[1,{e}]")
            else:
                for x in range(4): o.append(f"v_mul_f32 v{n+x}, v{n+x}, v{U+h}")
            o.append(f"v_cvt_pk_bf16_f32 v{PE(l,h>>1)+2*e}, v{n}, v{n+1}")
            o.append(f"v_cvt_pk_bf16_f32 v{PE(l,h>>1)+2*e+1}, v{n+2}, v{n+3}" +
                     (f"\nds_write_b128 v{VMB}, {v(PE(l,h>>1),4)} offset:{2048*l+1024*(h>>1)}" if e else ""))
        return o
    def ct8(l):
        return [f"v_mfma_f32_16x16x16_bf16 {v(AC8(l),4)}, {v(W8L,2)}, {v(NL(l),2)}, 0"] + \
               [f"{MF} {v(AC8(l),4)}, {v(W8(p),4)}, {v(PE(l,p),4)}, {v(AC8(l),4)}" for p in range(2)]
    def interleave(ms_, fs, per=None):
        per = per or -(-len(fs) // max(1, len(ms_)))
        fs = list(fs)
        for m_ in ms_:
            A(m_)
            for _ in range(per):
                if fs: A(fs.pop(0))
        for f_ in fs: A(f_)
    dg = [f"v_rcp_f32 v{X2}, v{GV}", f"v_sub_f32 v{X2}, 1.0, v{X2}", f"v_cvt_pk_bf16_f32 v{X2}, v{X2}, 0", f"v_lshlrev_b32 v{X3}, 16, v{X2}",
          f"v_cndmask_b32 v{X2}, v{X2}, v{X3}, {modd}", f"v_cndmask_b32 v{DIAG}, 0, v{X2}, {md0}", f"v_cndmask_b32 v{DIAG+1}, 0, v{X2}, {md1}"]
    sfreq = f"""s_mov_b64 exec, 0x1f
    buffer_load_dword v{SFV}, v{VSF}, {ws}, 0 offen sc0 sc1
    s_mov_b64 exec, -1"""
    interleave([mg(1, h) for h in range(4)], amr + sig, 3)
    interleave([mg(0, h) for h in range(4)], amb(0) + amb(1), 2)
    d1 = den(1)
    A(nm(1, 0))
    for x in amb(2): A(x)
    A(nm(1, 1))
    for x in amb(3): A(x)
    A(sfreq)
    interleave([nm(1, 2), nm(1, 3)] + [nm(0, h) for h in range(4)], d1[:12], 2)
    for x in d1[12:] + num(1, True): A(x)
    A("s_waitcnt lgkmcnt(0)")
    st(7)
    A("s_barrier")
    st(8)
    def rdo(l, st_):
        if st_ == 8: return f"ds_read_b128 {v(OF(l,st_),4)}, v{VLF} offset:{4096+256*l}"
        return f"ds_read_b128 {v(OF(l,st_),4)}, v{VP[st_>>1]} offset:{2048*l+1024*(st_&1)}"
    mm = lambda l: [f"{MF} {v(ACC(l,c),4)}, {v(WOF(st_,c),4)}, {v(OF(l,st_),4)}, {v(ACC(l,c),4) if st_ else '0'}" for st_ in range(9) for c in range(2)]
    def btload(E):
        E(f"""buffer_load_dwordx2 {v(BTF[0],2)}, v{VB0}, {ws}, s{S_BT0} offen {SC}
        buffer_load_dwordx2 {v(BTF[1],2)}, v{VB0}, {ws}, s{S_BT1} offen {SC}
        s_mov_b64 exec, {s(M8A,2)}
        buffer_load_dwordx2 {v(BTF[2],2)}, v{VB8}, {ws}, s{S_BT8} offen {SC}
        s_mov_b64 exec, -1""")
    c1 = ct8(1)
    A(c1[0])
    for st_ in range(9): A(rdo(1, st_))
    d0 = den(0)
    interleave(c1[1:], d0[:8], 4)
    m1 = mm(1)
    n0 = num(0, False)
    interleave(m1[:4], d0[8:], 2)
    interleave(m1[4:14], n0, 3)
    A(f"s_mov_b64 exec, 0x1f\nv_cmp_ne_u32 vcc, 16, v{SFV}\ns_mov_b64 exec, -1")
    A(f"ds_write_b128 v{VMB}, {v(AC8(1),4)} offset:5632")
    A("s_waitcnt lgkmcnt(0)")
    A("s_barrier")
    c0 = ct8(0)
    A(c0[0])
    for st_ in range(9): A(rdo(0, st_))
    l_nbt = A0.newlabel("L_nbt")
    A0(f"s_cbranch_vccnz {l_nbt}\ns_mov_b32 s{S_BOK}, 1")
    btload(A0)
    A0.label(l_nbt)
    interleave(c0[1:] + m1[14:], dg, 2)
    m0_ = mm(0)
    A(m0_[0]); A(m0_[1])
    A(f"ds_write_b128 v{VMB}, {v(AC8(0),4)} offset:4608")
    A(m0_[2]); A(m0_[3])
    for c in range(2): A(f"ds_write_b128 v{VEW}, {v(ACC(1,c),4)} offset:{1024*c}")
    A(m0_[4]); A(m0_[5])
    A("s_waitcnt lgkmcnt(0)")
    A("s_barrier")
    st(9)
    r8 = [f"ds_read_b128 {v(P8[k],4)}, v{VP[k]} offset:4608" for k in range(4)] + \
         [f"ds_read_b128 {v(P8[4+k],4)}, v{VO[k]} offset:5632" for k in range(4)] + \
         [f"ds_read_b128 {v(EX[c],4)}, v{VER} offset:{1024*c}" for c in range(2)]
    a8 = []
    for (d_, s_) in [(0, 1), (2, 3), (4, 5), (6, 7), (0, 2), (4, 6), (0, 4)]:
        a8 += [f"v_add_f32 v{P8[d_]+r}, v{P8[d_]+r}, v{P8[s_]+r}" for r in range(4)]
    interleave(m0_[6:8], r8, 5)
    interleave(m0_[8:], a8, 3)
    l_bt = A0.newlabel("L_bt")
    A0(f"s_cmp_eq_u32 s{S_BOK}, 1\ns_cbranch_scc1 {l_bt}")
    poll(VSF, SFV, 0x1f, atomic=False)
    btload(A0)
    A0.label(l_bt)
    A("s_waitcnt vmcnt(0)")
    st(10)
    for c in range(2):
        A(f"v_mfma_f32_16x16x16_bf16 {v(EX[c],4)}, {v(BTF[c],2)}, {v(DIAG,2)}, {v(EX[c],4)}")
    A(f"v_mfma_f32_16x16x16_bf16 {v(P8[0],4)}, {v(BTF[2],2)}, {v(DIAG,2)}, {v(P8[0],4)}")
    OUTR = 134
    for c in range(2):
        for x in (0, 2): A(f"v_pk_add_f32 {v(ACC(0,c)+x,2)}, {v(ACC(0,c)+x,2)}, {v(EX[c]+x,2)}")
        A(f"v_cvt_pk_bf16_f32 v{OUTR+2*c}, v{ACC(0,c)}, v{ACC(0,c)+1}")
        A(f"v_cvt_pk_bf16_f32 v{OUTR+2*c+1}, v{ACC(0,c)+2}, v{ACC(0,c)+3}")
    A(f"""buffer_store_dwordx4 {v(OUTR,4)}, v{VOUT}, {s(SOUT,4)}, s{S_O0} offen {OUTB}
    v_cvt_pk_bf16_f32 v{OUTR+4}, v{P8[0]}, v{P8[0]+1}
    v_cvt_pk_bf16_f32 v{OUTR+5}, v{P8[0]+2}, v{P8[0]+3}
    s_mov_b64 exec, {s(M8S,2)}
    buffer_store_dwordx2 {v(OUTR+4,2)}, v{VOUT8}, {s(SOUT,4)}, s{S_O8} offen {OUTB}
    s_mov_b64 exec, -1""")
    st(11, last=True)
    A0("s_endpgm")
```

```python
from asm import *
from auto import Auto
from l1gemm import *
import struct, sys

def opt(name, default):
    for a_ in sys.argv:
        if a_.startswith(f"--{name}="): return a_.split("=", 1)[1]
    return default
TOUCH = int(opt("touch", "1"))
XPOS = int(opt("xpos", "1"))
PKN = int(opt("pkn", "99"))
PRIO = int(opt("prio", "2"))
XS = eval(opt("xs", "[[0,1],[2,3],[4,5],[6],[7]]"))

WOPF = int(opt("wopf", "0"))
PRIOB = int(opt("priob", "1"))
PADL = 288
XTP = (PADL + 2048) * 2
TP = 544
SCPB = LMP
SCA = PB_S + PK_S
XTA = SCA + SCPB
XTB = EM_S + 4 * EMP
assert XTB + 4 * XTP <= 163840 and PK_S + SCPB + XTP <= PJ_S
CNT = CL_S
KP = 2112
FIXP = 68
TAPD = {("2", 0): 8 * 74, ("2", 8): 8 * 80, ("2", 4): 8 * 86, ("2", 12): 8 * 92, ("3", 4): 8 * 98, ("3", 12): 8 * 108}
WT = [(0, 1, -16), (8, 1, -16), (4, 2, -16), (12, 2, -24), (4, 3, -16), (12, 4, -24)]

def wtable():
    out = []
    for (sg, hw, off) in WT:
        for l in range(64):
            r, q = l & 15, l >> 4
            el = [0x3f80 if abs(off + 8 * q + jj - (r - sg - 4)) <= hw else 0 for jj in range(8)]
            out += [el[2 * i] | (el[2 * i + 1] << 16) for i in range(4)]
    return out

def gen_ssm(A0, stamps=False):
    A = Auto(A0)
    S_SG, S_CH, S_SCR, S_XT = 65, 66, 75, 76
    S_K1024 = 77
    S_XR, S_ISB = 82, 83
    def st(idx):
        if stamps:
            A.one("s_waitcnt lgkmcnt(0)")
            stamp(A0, idx, stamps); A.t += 3
    A(f"""s_mul_i32 s{S_SG}, s3, 9
    s_add_u32 s{S_SG}, s{S_SG}, s4
    s_lshl_b32 s{S_CH}, s{S_SG}, 3
    s_add_u32 s{S_CH}, s{S_CH}, s{S_WAVE}
    s_lshl_b32 s{S_T0}, s{S_CH}, 8
    s_lshl_b32 s{S_T1}, s{S_CH}, 1""")
    V_TRd, V_XD, V_BX, V_ZX, V_TAPR, V_TAPW, V_K0W, V_K1W, V_KR, V_L16, V_SCRV, V_CNT, V_XG = range(1, 14)
    X0, X1, X2, X3 = 16, 17, 18, 19
    WC = 20
    ACC = 44
    TF = 76
    AF = 116
    BR = 188
    LF = 44
    HF = 76
    DA, DB, DC = 108, 112, 240
    pool = list(range(116, 196, 4)) + [228, 232, 236]
    def alloc(): return pool.pop(0)
    def free(r): pool.append(r)
    P_LA, P_AI, P_CR, P_CI, P_DT, P_DS = 244, 245, 246, 247, 248, 249
    touch(A0, 4, True)
    A(f"""v_lshl_add_u32 v{X0}, v0, 2, s{S_T0}
    v_mov_b32 v{X1}, s{S_T1}""")
    A0("s_waitcnt lgkmcnt(0)")
    A(f"""global_load_dword v{P_LA}, v{X0}, {s(S_LOGA,2)}
    global_load_ushort v{P_DT}, v{X1}, {s(S_LOGDT,2)}
    global_load_dword v{P_AI}, v{X0}, {s(S_AIM,2)}
    global_load_ushort v{P_DS}, v{X1}, {s(S_DSKIP,2)}
    global_load_dword v{P_CR}, v{X0}, {s(S_CRE,2)}
    global_load_dword v{P_CI}, v{X0}, {s(S_CIM,2)}""")
    kwait(A0, ["x", "ws"], stamps)
    if stamps:
        stamp0(A0, stamps)
    if TOUCH: A(f"buffer_load_dword v253, v251, {s(SX,4)}, s9 offen")
    Z4 = alloc()
    A(f"""v_mov_b32 v{Z4}, 0
    v_mov_b32 v{Z4+1}, 0
    v_mov_b32 v{Z4+2}, 0
    v_mov_b32 v{Z4+3}, 0
    v_mov_b32 v{V_CNT}, {CNT}
    ds_write_b128 v{V_CNT}, {v(Z4,4)}
    ds_write_b128 v{V_CNT}, {v(Z4,4)} offset:16
    s_lshl_b32 s{S_T0}, s{S_SG}, 4
    v_mul_u32_u24 v{X2}, {8*1152}, v0
    v_add_u32 v{V_XG}, s{S_T0}, v{X2}
    s_add_u32 s{S_XR}, s4, s{S_WAVE}
    s_and_b32 s{S_XR}, s{S_XR}, 3
    s_lshr_b32 s{S_ISB}, s{S_WAVE}, 2
    s_waitcnt lgkmcnt(0)
    s_barrier""")
    def aonly(fn):
        lab = A0.newlabel("L_na")
        A(f"s_cmp_eq_u32 s{S_ISB}, 0")
        A0(f"s_cbranch_scc0 {lab}")
        fn()
        A0.label(lab)
    XL = 196
    S_XB0, S_XB1 = 86, 87
    def xload(ks, first=False):
        if not ks: return
        def f():
            if first:
                A0(f"s_mul_i32 s{S_XB0}, s{S_XR}, {512*1152}")
                A0(f"s_add_u32 s{S_XB1}, s{S_XB0}, {4*1152}")
            for k in ks:
                A0(f"buffer_load_dwordx4 {v(XL+4*k,4)}, v{V_XG}, {s(SX,4)}, s{S_XB0 if k < 4 else S_XB1} offen offset:{1152*(k%4)}")
        aonly(f)
    def pwait(n):
        l1 = A0.newlabel("L_pw"); l2 = A0.newlabel("L_pw")
        A0(f"""s_cmp_eq_u32 s{S_ISB}, 0
        s_cbranch_scc0 {l1}
        s_waitcnt vmcnt({n + TOUCH})
        s_branch {l2}""")
        A0.label(l1)
        A0(f"s_waitcnt vmcnt({TOUCH})")
        A0.label(l2)
        A.vm = []
    def xpose():
        PL, PH = 84, 85
        def f():
            A0(f"""s_mov_b32 s{PL}, 0x05040100
            s_mov_b32 s{PH}, 0x07060302
            s_lshl_b32 s{S_T3}, s{S_XR}, 10
            s_add_u32 s{S_T3}, s{S_T3}, {XTA + 2*PADL}
            v_add_u32 v{V_XD}, s{S_T3}, v{V_L16}
            v_add_u32 v14, {XTB - XTA}, v{V_XD}
            v_mov_b32 v{X2}, 1
            s_waitcnt vmcnt(0)""")
            for j in range(4):
                for hi in range(2):
                    o = 20 + 4 * ((2 * j + hi) % 4)
                    for k in range(4):
                        A0(f"v_perm_b32 v{o+k}, v{XL+8*k+4+j}, v{XL+8*k+j}, s{PH if hi else PL}")
                    c_ = 2 * j + hi
                    if c_ < 4: A0(f"ds_write_b128 v{V_XD}, {v(o,4)} offset:{c_*PJ_S}")
                    else: A0(f"ds_write_b128 v14, {v(o,4)} offset:{(c_-4)*XTP}")
            A0(f"""s_mov_b64 exec, 1
            ds_add_u32 v{V_CNT}, v{X2} offset:8
            s_mov_b64 exec, -1
            s_waitcnt lgkmcnt(0)""")
        A("s_waitcnt lgkmcnt(0)")
        aonly(f)
        A0("s_getpc_b64 s[78:79]")
        A0.label("L_ssm_pc")
        A(f"""s_add_u32 s78, s78, L_wtab-L_ssm_pc
        s_addc_u32 s79, s79, 0""")
        for i in range(6):
            if i == 4: A("s_add_u32 s78, s78, 4096\ns_addc_u32 s79, s79, 0")
            A(f"global_load_dwordx4 {v(WC+4*i,4)}, v{V_L16}, s[78:79] offset:{1024*(i%4)}")
    A(f"s_cmp_eq_u32 s{S_ISB}, 0")
    lab = A0.newlabel("L_np")
    A0(f"s_setprio {PRIOB}\ns_cbranch_scc0 {lab}\ns_setprio {PRIO}")
    A0.label(lab)
    xload(XS[0], True)
    I16, Q = X0, X1
    A(f"""v_lshlrev_b32 v{V_L16}, 4, v0
    s_and_b32 s{S_T0}, s{S_WAVE}, 3
    s_cmp_eq_u32 s{S_ISB}, 0
    s_cselect_b32 s{S_T1}, {PJ_S - SCPB}, 0
    s_cselect_b32 s{S_SCR}, {SCA}, 0
    s_cselect_b32 s{S_T2}, {PJ_S - XTP}, 0
    s_cselect_b32 s{S_XT}, {XTA - XTB}, 0
    s_add_u32 s{S_T1}, s{S_T1}, {SCPB}
    s_add_u32 s{S_T2}, s{S_T2}, {XTP}
    s_add_u32 s{S_XT}, s{S_XT}, {XTB}
    s_mul_i32 s{S_T1}, s{S_T1}, s{S_T0}
    s_mul_i32 s{S_T2}, s{S_T2}, s{S_T0}
    s_add_u32 s{S_SCR}, s{S_SCR}, s{S_T1}
    s_add_u32 s{S_XT}, s{S_XT}, s{S_T2}
    s_mov_b32 m0, s{S_SCR}
    s_mov_b32 s{S_EK}, 0
    s_mov_b32 s{S_B9}, 0
    s_mov_b32 s{S_CINC}, 0x101
    s_mov_b32 s{S_N1}, 8
    s_mov_b32 s{S_CA}, 0
    s_lshl_b32 s{S_FA}, s{S_SG}, 8
    s_add_u32 s{S_FA}, s{S_FA}, {FL_S}
    v_and_b32 v{I16}, 15, v0
    v_lshrrev_b32 v{Q}, 4, v0
    v_mul_u32_u24 v{V_TRd}, {TP}, v{I16}
    v_lshl_add_u32 v{V_TRd}, v{Q}, 4, v{V_TRd}
    v_add_u32 v{V_TRd}, s{S_SCR}, v{V_TRd}
    v_add_u32 v{V_SCRV}, s{S_SCR}, v{V_L16}""")
    A(f"""v_lshlrev_b32 v{V_BX}, 5, v{I16}
    v_lshl_add_u32 v{V_BX}, v{Q}, 4, v{V_BX}
    s_add_u32 s{S_T0}, s{S_XT}, {2*(PADL-256-16)}
    v_add_u32 v{V_BX}, s{S_T0}, v{V_BX}""")
    A(f"""v_and_b32 v{X2}, 3, v0
    v_bfe_u32 v{X3}, v0, 2, 2
    v_lshl_add_u32 v{V_ZX}, v{X2}, 2, v{X3}
    v_lshlrev_b32 v{V_ZX}, 5, v{V_ZX}
    v_lshl_add_u32 v{V_ZX}, v{Q}, 4, v{V_ZX}
    s_add_u32 s{S_T0}, s{S_XT}, {2*(PADL-24)}
    v_add_u32 v{V_ZX}, s{S_T0}, v{V_ZX}""")
    A(f"""v_sub_u32 v{V_TAPR}, v{X2}, v{X3}
    v_lshlrev_b32 v{V_TAPR}, 3, v{V_TAPR}
    v_sub_u32 v{X2}, 4, v{Q}
    v_and_b32 v{X2}, 3, v{X2}
    v_mul_u32_u24 v{X2}, {KP}, v{X2}
    v_min_u32 v{X3}, 1, v{Q}
    v_lshlrev_b32 v{X3}, 3, v{X3}
    v_sub_u32 v{X2}, v{X2}, v{X3}
    s_add_u32 s{S_T0}, s{S_SCR}, 1024
    v_add3_u32 v{V_TAPR}, v{V_TAPR}, v{X2}, s{S_T0}""")
    A(f"""v_lshrrev_b32 v{X2}, 1, v{Q}
    v_lshrrev_b32 v{X3}, 2, v{I16}
    v_lshl_add_u32 v{X3}, v{X3}, 1, v{X2}
    v_mul_u32_u24 v{X3}, 96, v{X3}
    v_and_b32 v{V_TAPW}, 3, v{I16}
    v_lshl_add_u32 v{X3}, v{V_TAPW}, 4, v{X3}
    v_mul_u32_u24 v{V_TAPW}, 160, v{X2}
    v_lshl_add_u32 v{V_TAPW}, v{I16}, 4, v{V_TAPW}
    v_add_u32 v{V_TAPW}, {2*TAPD[('3',4)] - 2*TAPD[('2',0)] - 128}, v{V_TAPW}
    v_cmp_gt_u32 vcc, 8, v{I16}
    v_cndmask_b32 v{V_TAPW}, v{V_TAPW}, v{X3}, vcc
    v_and_b32 v{X3}, 1, v{Q}
    v_lshl_add_u32 v{V_TAPW}, v{X3}, 3, v{V_TAPW}
    s_add_u32 s{S_T0}, s{S_SCR}, {2*TAPD[('2',0)]}
    v_add_u32 v{V_TAPW}, s{S_T0}, v{V_TAPW}""")
    A(f"""v_and_b32 v{V_K1W}, 7, v{I16}
    v_lshlrev_b32 v{V_K1W}, 1, v{V_K1W}
    v_lshrrev_b32 v{V_K0W}, 3, v{I16}
    v_add_u32 v{V_K1W}, v{V_K1W}, v{V_K0W}
    v_lshlrev_b32 v{V_K1W}, 4, v{V_K1W}
    v_lshl_add_u32 v{V_K0W}, v{X2}, 8, v{V_K1W}
    v_lshl_add_u32 v{V_K0W}, v{X3}, 3, v{V_K0W}
    s_add_u32 s{S_T0}, s{S_SCR}, 1080
    v_sub_u32 v{V_K0W}, s{S_T0}, v{V_K0W}
    v_lshl_add_u32 v{V_K1W}, v{Q}, 8, v{V_K1W}
    s_add_u32 s{S_T0}, s{S_SCR}, {2*278}
    v_sub_u32 v{V_K1W}, s{S_T0}, v{V_K1W}""")
    A(f"""v_sub_u32 v{X2}, 15, v{I16}
    v_and_b32 v{X3}, 3, v{X2}
    v_mul_u32_u24 v{V_KR}, {KP}, v{X3}
    v_lshrrev_b32 v{X2}, 2, v{X2}
    v_lshl_add_u32 v{V_KR}, v{X2}, 3, v{V_KR}
    v_lshl_add_u32 v{V_KR}, v{Q}, 4, v{V_KR}
    v_add_u32 v{V_KR}, s{S_SCR}, v{V_KR}""")
    A(f"""v_add_u32 v{X2}, s{S_XT}, v{V_L16}
    s_mov_b32 exec_hi, 0xf
    ds_write_b128 v{X2}, {v(Z4,4)}
    s_mov_b64 exec, -1""")
    st(1)
    pwait(len(XS[0]))
    st(10)
    INV2PI = "0.15915494"
    zr, zi = alloc(), alloc()
    DT = zr + 2
    A(f"""v_lshlrev_b32 v{zr}, 16, v{P_LA}
    v_and_b32 v{zr+1}, 0xffff0000, v{P_LA}
    v_lshlrev_b32 v{DT}, 16, v{P_DT}
    v_mul_f32 v{zr}, s{S_L2E}, v{zr}
    v_mul_f32 v{zr+1}, s{S_L2E}, v{zr+1}
    v_mul_f32 v{DT}, s{S_L2E}, v{DT}
    v_exp_f32 v{zr}, v{zr}
    v_exp_f32 v{zr+1}, v{zr+1}
    v_exp_f32 v{DT}, v{DT}
    v_lshlrev_b32 v{zi}, 16, v{P_AI}
    v_and_b32 v{zi+1}, 0xffff0000, v{P_AI}
    v_cvt_pk_bf16_f32 v{zr+1}, v{zr}, v{zr+1}
    v_cvt_pk_bf16_f32 v{DT}, v{DT}, v{DT}
    v_lshlrev_b32 v{zr}, 16, v{zr+1}
    v_and_b32 v{zr+1}, 0xffff0000, v{zr+1}
    v_and_b32 v{DT}, 0xffff0000, v{DT}
    v_mul_f32 v{zr}, v{zr}, v{DT}
    v_mul_f32 v{zr+1}, v{zr+1}, v{DT}
    v_mul_f32 v{zi}, v{zi}, v{DT}
    v_mul_f32 v{zi+1}, v{zi+1}, v{DT}
    v_mul_f32 v{zr}, s{S_L2E}, v{zr}
    v_mul_f32 v{zr+1}, s{S_L2E}, v{zr+1}
    v_mul_f32 v{zi}, {INV2PI}, v{zi}
    v_mul_f32 v{zi+1}, {INV2PI}, v{zi+1}
    v_add_f32 v{DT}, v{DT}, v{DT}""")
    def direct(p):
        e = alloc(); t = alloc()
        pf = struct.unpack("<I", struct.pack("<f", float(p)))[0]
        for x in range(2):
            A(f"v_mul_f32 v{t+x}, {pf:#x}, v{zr+x}")
            A(f"v_mul_f32 v{t+2+x}, {pf:#x}, v{zi+x}")
        for x in range(2):
            A(f"v_exp_f32 v{t+x}, -v{t+x}")
            A(f"v_fract_f32 v{t+2+x}, v{t+2+x}")
        for x in range(2):
            A(f"v_cos_f32 v{e+2*x}, v{t+2+x}")
            A(f"v_sin_f32 v{e+2*x+1}, v{t+2+x}")
        for x in range(2):
            A(f"v_mul_f32 v{e+2*x}, v{t+x}, v{e+2*x}")
            A(f"v_mul_f32 v{e+2*x+1}, v{t+x}, v{e+2*x+1}")
        free(t)
        return e
    pend = []
    def drain(stage):
        if not pend: return
        if stage == 0:
            for x in pend[0][0]: A(x)
            pend[0] = ([], pend[0][1])
        else:
            c, w_ = pend.pop(0)
            for x in c: A(x)
            for x in w_: A(x)
    def flush_puts():
        while pend: drain(1)
    ncm = [0]
    def cmul(a_, b_):
        d = alloc()
        ncm[0] += 1
        if ncm[0] <= PKN:
            for x in (0, 2): A(f"v_pk_mul_f32 {v(d+x,2)}, {v(a_+x,2)}, {v(b_+x,2)} op_sel:[1,1] op_sel_hi:[1,0]")
            drain(0)
            for x in (0, 2): A(f"v_pk_fma_f32 {v(d+x,2)}, {v(a_+x,2)}, {v(b_+x,2)}, {v(d+x,2)} op_sel:[0,0,0] op_sel_hi:[0,1,1] neg_lo:[0,0,1]")
            drain(1)
        else:
            for x in (0, 2): A(f"v_mul_f32 v{d+x}, v{a_+x}, v{b_+x}")
            for x in (0, 2): A(f"v_mul_f32 v{d+x+1}, v{a_+x+1}, v{b_+x}")
            drain(0)
            for x in (0, 2): A(f"v_fma_f32 v{d+x}, -v{a_+x+1}, v{b_+x+1}, v{d+x}")
            for x in (0, 2): A(f"v_fmac_f32 v{d+x+1}, v{a_+x}, v{b_+x+1}")
            drain(1)
        return d
    wtmp = [alloc(), alloc()]
    wk = [0]
    def wr(w, row):
        return [f"ds_write_addtid_b32 v{w} offset:{row*TP}", f"ds_write_addtid_b32 v{w+1} offset:{row*TP+256}"]
    def put(e, row, neg=False):
        w = wtmp[(wk[0] >> 1) & 1] + 2 * (wk[0] & 1); wk[0] += 1
        n = "-" if neg else ""
        while len(pend) >= 2: drain(1)
        pend.append(([f"v_cvt_pk_bf16_f32 v{w}, v{e}, {n}v{e+1}", f"v_cvt_pk_bf16_f32 v{w+1}, v{e+2}, {n}v{e+3}"], wr(w, row)))
    def rdfr(base):
        flush_puts()
        for ks in range(8):
            A(f"ds_read_b128 {v(base+4*ks,4)}, v{V_TRd} offset:{64*ks}")
    def mm(D, swap):
        for ks in range(8):
            a_, b_ = (LF, HF) if swap else (HF, LF)
            A(f"v_mfma_f32_16x16x32_bf16 {v(D,4)}, {v(a_+4*ks,4)}, {v(b_+4*ks,4)}, {'0' if ks == 0 else v(D,4)}")
    R8 = direct(8)
    L = alloc()
    A(f"""v_lshlrev_b32 v{L}, 16, v{P_CR}
    v_lshlrev_b32 v{L+1}, 16, v{P_CI}
    v_and_b32 v{L+2}, 0xffff0000, v{P_CR}
    v_and_b32 v{L+3}, 0xffff0000, v{P_CI}""")
    for x in range(4): A(f"v_mul_f32 v{L+x}, v{DT}, v{L+x}")
    for j in range(16):
        if j == 2: xload(XS[1])
        if j == 10: xload(XS[2])
        put(L, (j >> 1) + 8 * (j & 1), neg=True)
        if j < 15:
            n_ = cmul(L, R8); free(L); L = n_
    free(L)
    rdfr(LF)
    st(2)
    def wopf():
        lab = A0.newlabel("L_nb")
        A(f"s_cmp_eq_u32 s{S_ISB}, 0")
        A0(f"s_cbranch_scc1 {lab}")
        srd(A0, SW, S_WO, S_WO + 1, 576 * 1152)
        A0(f"""s_lshl_b32 s{S_T0}, s4, 2
        s_add_u32 s{S_T0}, s{S_T0}, s{S_WAVE}
        s_sub_u32 s{S_T0}, s{S_T0}, 4
        s_lshl_b32 s{S_T0}, s{S_T0}, 14
        v_lshlrev_b32 v14, 6, v0""")
        for k in range(4):
            A0(f"buffer_load_dword v15, v14, {s(SW,4)}, s{S_T0} offen")
            if k < 3: A0(f"s_add_u32 s{S_T0}, s{S_T0}, 4096")
        A0.label(lab)
    if WOPF == 1: wopf()
    xload(XS[3])
    E1 = direct(1)
    G1 = direct(128)
    A(f"v_mov_b32 v{X2}, 0x3f80")
    A(f"ds_write_addtid_b32 v{X2}\nds_write_addtid_b32 v{X2} offset:256")
    put(G1, 8)
    H = {1: E1, 8: R8}
    for i in range(1, 8):
        if i == 2: xload(XS[4])
        if i > 1: H[i] = cmul(H[i-1], E1)
        put(H[i], i)
        t = cmul(H[i], G1); put(t, 8 + i); free(t)
        if i - 1 in (3, 5): free(H[i-1])
    free(H[7])
    rdfr(HF)
    if XPOS == 2: xpose()
    if WOPF == 2: wopf()
    G2 = cmul(G1, G1); G3 = cmul(G2, G1); G4 = cmul(G3, G1)
    put(G2, 8)
    for gi, G in enumerate((G2, G3)):
        for k, i in enumerate((2, 4, 6, 8)):
            t = cmul(H[i], G); put(t, 4 * gi + k); free(t)
        if gi == 0: mm(DA, False)
    rdfr(HF)
    free(G2); free(G3); free(H[2]); free(H[6]); free(E1)
    if XPOS == 0: xpose()
    P = cmul(G4, H[4]); Qv = cmul(G4, R8)
    free(G4); free(H[4]); free(R8)
    for h in range(12):
        if h < 4:
            put(P, h)
            if h < 3: n_ = cmul(P, G1); free(P); P = n_
        put(Qv, 4 + h)
        if h < 11: n_ = cmul(Qv, G1); free(Qv); Qv = n_
        if h == 2: mm(DB, False)
    rdfr(HF)
    st(3)
    A(f"ds_write_b128 v{V_SCRV}, {v(Z4,4)}")
    A(f"ds_write_b128 v{V_SCRV}, {v(Z4,4)} offset:1024")
    PA, PB, PC = 228, 232, 236
    A(f"""v_lshlrev_b32 v{X2}, 16, v{P_DS}
    s_mov_b64 exec, 1
    v_add_f32 v{DA}, v{DA}, v{X2}
    s_mov_b64 exec, -1
    v_cvt_pk_bf16_f32 v{PA}, v{DA+3}, v{DA+2}
    v_cvt_pk_bf16_f32 v{PA+1}, v{DA+1}, v{DA}
    v_cvt_pk_bf16_f32 v{PB}, v{DB+3}, v{DB+3}
    v_cvt_pk_bf16_f32 v{PB+1}, v{DB+3}, v{DB+2}
    v_cvt_pk_bf16_f32 v{PB+2}, v{DB+1}, v{DB+1}
    v_cvt_pk_bf16_f32 v{PB+3}, v{DB+1}, v{DB}
    v_cvt_pk_bf16_f32 v{PA+2}, v{DB}, v{DB}
    v_mov_b32 v{X3}, s{S_SCR}""")
    mm(DC, True)
    A(f"""ds_write_b64 v{V_K0W}, {v(PA,2)}
    s_mov_b32 exec_hi, 0
    ds_write2_b32 v{V_K1W}, v{PB}, v{PB+1} offset0:0 offset1:1
    ds_write2_b32 v{V_K1W}, v{PB+2}, v{PB+3} offset0:2 offset1:3
    s_mov_b32 exec_lo, 0x80000000
    ds_write_b16 v{X3}, v{PB} offset:58
    s_mov_b32 exec_lo, 0
    s_mov_b32 exec_hi, 1
    ds_write_b32 v{X3}, v{PA+2} offset:572
    s_mov_b64 exec, -1""")
    if XPOS == 1: xpose()
    st(8)
    A(f"""v_readlane_b32 s{S_K1024}, v{DC+3}, 55
    s_mov_b32 exec_lo, 0
    s_mov_b32 exec_hi, {1 << (55-32):#x}
    v_mov_b32 v{DC+3}, 0
    s_mov_b64 exec, -1
    v_cvt_pk_bf16_f32 v{PC}, v{DC}, v{DC+1}
    v_cvt_pk_bf16_f32 v{PC+1}, v{DC+2}, v{DC+3}
    v_mov_b32 v{X3}, s{S_K1024}
    v_cvt_pk_bf16_f32 v{X3}, v{X3}, v{X3}
    v_lshl_add_u32 v{X2}, v0, 1, s{S_SCR}
    ds_write_b64 v{V_TAPW}, {v(PC,2)}
    s_mov_b64 exec, 0x7f
    ds_write_b16 v{X2}, v{X3} offset:{16*FIXP+38}
    s_mov_b64 exec, -1""")
    for rd in range(2):
        E = 188 + 8 * rd
        A(f"ds_read_b128 {v(E,4)}, v{V_SCRV} offset:{1024*rd}")
        A(f"ds_read_b64 {v(E+4,2)}, v{V_SCRV} offset:{1024*rd+16}")
    for rd in range(2):
        E = 188 + 8 * rd
        O = 204 + 12 * rd
        for i in range(4): A(f"v_alignbit_b32 v{O+i}, v{E+i+1}, v{E+i}, 16")
        A(f"ds_write_b128 v{V_SCRV}, {v(O,4)} offset:{KP + 1024*rd}")
        for i in range(4): A(f"v_mov_b32 v{O+4+i}, v{E+i+1}")
        A(f"ds_write_b128 v{V_SCRV}, {v(O+4,4)} offset:{2*KP + 1024*rd}")
        for i in range(4): A(f"v_alignbit_b32 v{O+8+i}, v{E+i+2}, v{E+i+1}, 16")
        A(f"ds_write_b128 v{V_SCRV}, {v(O+8,4)} offset:{3*KP + 1024*rd}")
    st(9)
    def afrag(w):
        off = 16 * (64 - 4 * w) if w < 17 else 16 * FIXP
        A(f"ds_read_b64 {v(AF+4*w,2)}, v{V_KR} offset:{off}")
        A(f"ds_read_b64 {v(AF+4*w+2,2)}, v{V_KR} offset:{off+8}")
    for w in (8, 16, 7, 15, 6, 14, 5, 13, 4, 12, 3, 11, 2, 10, 1, 9, 0, 17): afrag(w)
    tf = {}
    k = 0
    for pr in range(2):
        for D_ in (2, 3, 4):
            tf[("2", pr, D_)] = TF + 4 * k; k += 1
            for u in range(2):
                sg = (0, 8)[u] if pr == 0 else (4, 12)[u]
                A(f"ds_read_b64_tr_b16 {v(tf[('2',pr,D_)]+2*u,2)}, v{V_TAPR} offset:{2*TAPD[('2',sg)] - 1024 + 32*(D_-2)}")
    for D_ in (4, 5, 6, 7):
        tf[("3", 0, D_)] = TF + 4 * k; k += 1
        for u in range(2):
            A(f"ds_read_b64_tr_b16 {v(tf[('3',0,D_)]+2*u,2)}, v{V_TAPR} offset:{2*TAPD[('3',(4,12)[u])] - 1024 + 32*(D_-4)}")
    st(13)
    lp = A0.newlabel("L_xw"); le = A0.newlabel("L_xe")
    A0(f"s_mov_b32 s{S_T1}, 0")
    l0 = A0.newlabel("L_x0")
    A0(f"s_branch {l0}")
    A0.label(lp)
    A0("s_sleep 2")
    A0.label(l0)
    A0(f"""ds_read_b32 v{X2}, v{V_CNT} offset:8
    s_add_u32 s{S_T1}, s{S_T1}, 1
    s_cmp_gt_u32 s{S_T1}, {SPIN}
    s_cbranch_scc1 {le}
    s_waitcnt lgkmcnt(0)
    v_readfirstlane_b32 s{S_T0}, v{X2}
    s_cmp_lt_u32 s{S_T0}, 4
    s_cbranch_scc1 {lp}""")
    A0.label(le)
    A.ds = []
    if PRIOB: A0("s_setprio 0")
    st(4)
    first = set()
    def accm(i, a_, b_):
        c = v(ACC + 4 * i, 4) if i in first else "0"
        first.add(i)
        return f"v_mfma_f32_16x16x32_bf16 {v(ACC+4*i,4)}, {v(a_,4)}, {v(b_,4)}, {c}"
    items = []
    for s_ in range(-8, 57):
        ms = [(i, AF + 4 * (8 * i - s_)) for i in range(8) if 0 <= 8 * i - s_ <= 16]
        items.append((64 * (s_ + 8), ms))
    for i in range(3, 8):
        items.append((2 * (256 * i - 760), [(i, AF + 68)]))
    NR, LA = 6, 5
    ZX = [212, 216]
    ZD = 220
    ZA = 244
    zsteps = []
    for cb in range(6):
        nz = 6 if cb < 4 else 4
        rd = [f"ds_read_b128 {v(ZX[0],4)}, v{V_ZX} offset:{512*cb+16}", f"ds_read_b128 {v(ZX[1],4)}, v{V_ZX} offset:{512*cb}"]
        zm = [f"v_mfma_f32_16x16x32_bf16 {v(ZD+4*k,4)}, {v(ZX[0] if WT[k][2] == -16 else ZX[1],4)}, {v(WC+4*k,4)}, 0" for k in range(nz)]
        za = [ZA, ZA + 4, X0]
        cv = []
        for k in range(nz):
            cv.append(f"v_cvt_pk_bf16_f32 v{za[k>>1]+2*(k&1)}, v{ZD+4*k}, v{ZD+4*k+1}")
            cv.append(f"v_cvt_pk_bf16_f32 v{za[k>>1]+2*(k&1)+1}, v{ZD+4*k+2}, v{ZD+4*k+3}")
        pm = []
        for pr in range(2):
            for D_ in (2, 3, 4):
                if cb + D_ <= 7: pm.append((cb + D_, za[pr], tf[("2", pr, D_)]))
        if cb < 4:
            for D_ in (4, 5, 6, 7):
                if cb + D_ <= 7: pm.append((cb + D_, za[2], tf[("3", 0, D_)]))
        zsteps.append((rd, zm, cv, pm))
    PER = 11
    for j in range(min(LA, len(items))):
        A(f"ds_read_b128 {v(BR+4*(j%NR),4)}, v{V_BX} offset:{items[j][0]}")
    pend_cv = []
    for j, (off, ms) in enumerate(items):
        cb, ph = divmod(j, PER)
        if cb < 6:
            rd, zm, cv, pm = zsteps[cb]
            if ph == 0:
                for x in rd: A(x)
            if ph == 3:
                for x in zm: A(x)
            if ph == 5: pend_cv = list(cv)
            if ph == 10:
                for x in pend_cv: A(x)
                pend_cv = []
                for (i, a_, b_) in pm: A(accm(i, a_, b_))
        for n_, (i, a_) in enumerate(ms):
            A(accm(i, a_, BR + 4 * (j % NR)))
            if n_ == 0 and j + LA < len(items):
                A(f"ds_read_b128 {v(BR+4*((j+LA)%NR),4)}, v{V_BX} offset:{items[j+LA][0]}")
            for _ in range(2 if n_ else 1):
                if pend_cv: A(pend_cv.pop(0))
    st(5)
    TBP = 4608
    A(f"""s_and_b32 s{S_T0}, s{S_WAVE}, 3
    s_cmp_eq_u32 s{S_ISB}, 0
    s_cselect_b32 s{S_T1}, {EM_S - (XTB + 576)}, 0
    s_add_u32 s{S_T1}, s{S_T1}, {XTB + 576}
    s_mul_i32 s{S_T2}, s{S_T0}, {TBP}
    s_add_u32 s{S_T2}, s{S_T2}, s{S_T1}
    v_lshrrev_b32 v1, 4, v0
    v_lshlrev_b32 v1, 6, v1
    v_xor_b32 v1, v1, v{V_L16}
    v_add_u32 v1, s{S_T2}, v1
    v_mov_b32 v2, 1
    s_lshl_b32 s{S_T3}, s{S_ISB}, 2
    v_add_u32 v3, s{S_T3}, v{V_CNT}""")
    for i2 in range(4):
        o = BR + 4 * i2
        for x in range(4):
            A(f"v_cvt_pk_bf16_f32 v{o+x}, v{ACC+8*i2+2*x}, v{ACC+8*i2+2*x+1}")
        A(f"ds_write_b128 v1, {v(o,4)} offset:{1024*i2}")
    A(f"""s_mov_b64 exec, 1
    ds_add_u32 v3, v2 offset:16
    s_mov_b64 exec, -1
    v_and_b32 v4, 1, v0
    v_mul_u32_u24 v4, {2*TBP}, v4
    v_bfe_u32 v5, v0, 1, 2
    v_lshl_add_u32 v4, v5, 8, v4
    v_lshlrev_b32 v5, 2, v5
    v_lshrrev_b32 v6, 3, v0
    v_xor_b32 v5, v5, v6
    v_xor_b32 v6, 8, v5
    s_lshl_b32 s{S_T2}, s{S_T0}, 10
    s_add_u32 s{S_T2}, s{S_T2}, s{S_T1}
    v_add_u32 v4, s{S_T2}, v4
    v_lshl_add_u32 v5, v5, 4, v4
    v_lshl_add_u32 v6, v6, 4, v4
    s_lshl_b32 s{S_T0}, s{S_CH}, 12
    s_add_u32 s{S_T0}, s{S_T0}, {WS_BT}
    s_mov_b32 s{S_T1}, 0""")
    lp = A0.newlabel("L_tw"); le = A0.newlabel("L_te")
    A0.label(lp)
    A0(f"""ds_read_b32 v2, v3 offset:16
    s_add_u32 s{S_T1}, s{S_T1}, 1
    s_cmp_gt_u32 s{S_T1}, {SPIN}
    s_cbranch_scc1 {le}
    s_waitcnt lgkmcnt(0)
    v_readfirstlane_b32 s{S_T2}, v2
    s_cmp_ge_u32 s{S_T2}, 4
    s_cbranch_scc1 {le}
    s_sleep 1
    s_branch {lp}""")
    A0.label(le)
    A.ds = []
    for s_ in range(4):
        for x in range(2):
            A(f"ds_read_b64 {v(44+4*s_+2*x,2)}, v{5+(s_&1)} offset:{x*TBP + 8*(s_>>1)}")
    for s_ in range(4):
        A(f"buffer_store_dwordx4 {v(44+4*s_,4)}, v{V_L16}, {s(SWS,4)}, s{S_T0} offen offset:{1024*s_} sc0 sc1")
    st(6)
    A("s_nop 4")
    A("s_branch L_p2")

def gen_wtab(A):
    A.raw(".p2align 8")
    A.label("L_wtab")
    t = wtable()
    for i in range(0, len(t), 8):
        A.raw("  .long " + ", ".join(f"{x:#010x}" for x in t[i:i+8]))
```

```python
import sys
from asm import *
from l1gemm import *
from p2 import gen_p2
from ssm import gen_ssm, gen_wtab

stamps = "--stamps" in sys.argv
out = [a for a in sys.argv[1:] if not a.startswith("--")][0]

A = Asm()
HDR = """; generated by gen.py
; @launch grid=(256,1,1) block=(512,1,1) lds=163840
.amdgcn_target "amdgcn-amd-amdhsa--gfx950"
.text
"""
KN = "gated_mix__linear_attn_block__ssm_conv_s4d__prompt_kernel"
A.raw(f".globl {KN}\n.p2align 8\n.type {KN},@function\n{KN}:")
if stamps:
    A("s_memtime s[92:93]\ns_memrealtime s[94:95]")
A(f"""s_load_dwordx16 s[16:31], s[0:1], 0
s_load_dwordx8 s[32:39], s[0:1], 64
s_load_dwordx4 s[40:43], s[0:1], 96
s_getpc_b64 s[4:5]""")
A.label("L_pc0")
A(f"""v_lshlrev_b32 v2, 6, v0
v_lshrrev_b32 v1, 6, v0
global_load_dword v253, v2, s[4:5]
s_cmp_ge_u32 s2, 256
s_cbranch_scc1 L1_exit
v_readfirstlane_b32 s{S_WAVE}, v1
v_and_b32 v0, 63, v0
s_and_b32 s3, s2, 7
s_lshr_b32 s4, s2, 3
s_mov_b32 s{S_L2E}, {LOG2E:#x}
s_cmp_lt_u32 s4, 9
s_cbranch_scc1 L1_ssm
{"s_endpgm" if "--nogemm" in sys.argv else ""}
s_and_b32 s5, s3, 3
s_lshl_b32 s5, s5, 2
s_lshr_b32 s6, s3, 2
s_mov_b32 s10, s4
s_cmp_lt_u32 s4, 15
s_cbranch_scc1 L1_q
s_cmp_eq_u32 s4, 31
s_cbranch_scc1 L1_aux""")
A(f"""s_sub_u32 s4, s4, 15
s_and_b32 s7, s4, 3
s_add_u32 s{S_RB}, s5, s7
s_lshr_b32 s8, s4, 2
s_lshl_b32 s6, s6, 2
s_add_u32 s{S_CG}, s6, s8
s_add_u32 s7, s7, s8
s_and_b32 s7, s7, 3
s_lshl_b32 s{S_ROT}, s7, 1
s_cmp_lt_u32 s{S_WAVE}, 4
s_cbranch_scc1 L1_kv_c
s_setprio 3
s_cmp_eq_u32 s{S_WAVE}, 7
s_cbranch_scc1 L1_kv_chore""")
gen_loader(A, "kv", stamps)
A.label("L1_q")
A(f"""s_sub_u32 s4, s4, 9
s_mul_i32 s6, s6, 6
s_add_u32 s4, s4, s6
s_and_b32 s7, s4, 3
s_add_u32 s{S_RB}, s5, s7
s_lshr_b32 s{S_CG}, s4, 2
s_add_u32 s7, s7, s{S_CG}
s_and_b32 s7, s7, 3
s_lshl_b32 s7, s7, 1
s_add_u32 s{S_ROT}, s7, 1
s_cmp_lt_u32 s{S_WAVE}, 4
s_cbranch_scc1 L1_q_c
s_setprio 3""")
gen_loader(A, "q", stamps)
A.label("L1_kv_chore")
gen_chore(A, stamps)
A.label("L1_aux")
gen_aux(A, stamps)
A.raw(".p2align 3")
A.label("L1_ssm")
gen_ssm(A, stamps)
A.raw(".p2align 3")
A.label("L1_kv_c")
gen_compute(A, "kv", stamps)
A.raw(".p2align 3")
A.label("L1_q_c")
gen_compute(A, "q", stamps)
A.label("L1_exit")
A("s_endpgm")
gen_p2(A, stamps)
gen_wtab(A)
A.label("L_code_end")
body = A.text()
NT = [a_ for a_ in sys.argv if a_.startswith("--nt=")]
if NT:
    for c, reg in (("x", s(SX,4)), ("w", s(SW,4))):
        if c in NT[0][5:]:
            body = "\n".join((l[:-4] + " nt lds" if (l.endswith(" lds") and reg in l) else l) for l in body.split("\n"))
if NODMA:
    body = "\n".join(l for l in body.split("\n") if not l.strip().endswith(" lds")) + "\n"
desc = '.section .rodata,"a"\n' + kdesc(KN, 256)
open(out, "w").write(HDR + body + desc)
```

```python
from asm import *
from auto import Auto
import sys
NOMFMA = '--nomfma' in sys.argv
NODMA = '--nodma' in sys.argv
LOOK = int([a for a in sys.argv if a.startswith('--look=')][0][7:]) if any(a.startswith('--look=') for a in sys.argv) else 3
LBAR = int([a for a in sys.argv if a.startswith('--lbar=')][0][7:]) if any(a.startswith('--lbar=') for a in sys.argv) else None

AUXSLEEP = int([a for a in sys.argv if a.startswith('--auxs=')][0][7:]) if any(a.startswith('--auxs=') for a in sys.argv) else 16
WS_PQ = 0
WS_KVQ = 0x240000
WS_G = 0x250000
WS_BT = 0x260000
WS_END = 0x4A0000
WS_STAMP = 0x500000
WS_WP = 0x600000
WPU = 21504
WS_SIZE = 0x700000

S_X, S_W, S_WO, S_LOGA, S_AIM, S_CRE, S_CIM = 16, 18, 20, 24, 26, 28, 30
S_LOGDT, S_DSKIP, S_GATE, S_OUT, S_DBG, S_WS = 32, 34, 36, 38, 40, 42
SX, SW, SWS, SDBG, SG = 44, 48, 52, 56, 60
S_WAVE, S_RB, S_CG = 64, 65, 66
S_T0, S_T1, S_T2, S_T3 = 67, 68, 69, 70
S_ROT = 71
S_L2E = 73
S_EPS = 74
S_ST, S_SLOT, S_CNT, S_SX, S_SW, S_GB = 75, 76, 77, 78, 79, 82
S_MASK = 84

KV_X, KV_RD, KV_LZ = 4096, 4864, 5376
FL = 0x4A0000
NREP = 16
FL_KV, FL_Q, FL_S = FL, FL + 8 * NREP * 256, FL + (8 * NREP + 192) * 256
NFLAG = 8 * NREP + 192 + 72
S_PB, S_EK, S_N1, S_CA, S_FA, S_B9, S_CINC = 96, 97, 98, 99, 100, 101, 91
EMP, LMP = 6656, 8672
PJ = 20736
PB_G = 41024
CL_G = PB_G - 64
PB_S = 4 * LMP + 64
CL_S = PB_S - 64
EM_S = PB_S + 4 * PJ
STGA, STGD = 151552, 6144
assert PB_G + 4 * PJ + 4 * EMP <= STGA
SPIN = 0x2000
LOG2E = 0x3FB8AA3B
EPS = 0x358637BD
XB = 16384

def stamp(A, idx, stamps, last=None, srd_=None):
    if not stamps: return
    if last is None: last = idx == 6
    A(f"""s_memtime s[80:81]
    s_waitcnt lgkmcnt(0)
    v_writelane_b32 v255, s80, {idx}""")
    if last:
        A(f"""s_memrealtime s[80:81]
        s_waitcnt lgkmcnt(0)
        v_writelane_b32 v255, s80, 15
        s_mov_b64 exec, 0xffff
        buffer_store_dword v255, v254, {s(srd_ if srd_ else SWS,4)}, 0 offen
        s_mov_b64 exec, -1""")

def kwait(A, which, stamps):
    A("s_waitcnt lgkmcnt(0)")
    tab = {"x": (SX, S_X, 2048*1152), "w": (SW, S_W, 576*3456), "ws": (SWS, S_WS, WS_SIZE), "dbg": (SDBG, S_DBG, 256), "g": (SG, S_GATE, 1152)}
    for w in which: srd(A, tab[w][0], tab[w][1], tab[w][1] + 1, tab[w][2])

def stamp0(A, stamps):
    if not stamps: return
    srd(A, SWS, S_WS, S_WS + 1, WS_SIZE)
    A(f"""s_lshl_b32 s7, s2, 3
    s_add_u32 s7, s7, s{S_WAVE}
    s_lshl_b32 s7, s7, 6
    s_add_u32 s7, s7, {WS_STAMP}
    v_lshl_add_u32 v254, v0, 2, s7
    v_mov_b32 v255, 0
    v_writelane_b32 v255, s92, 0
    v_writelane_b32 v255, s94, 14""")

def touch(A, s_idx, ssm=False):
    if ssm:
        A(f"""s_mul_i32 s9, s{S_WAVE}, 9
        s_add_u32 s9, s9, s{s_idx}
        s_add_u32 s9, s9, 88""")
    else:
        A(f"""s_lshl_b32 s9, s{s_idx}, 2
        s_add_u32 s9, s9, s{S_WAVE}
        s_sub_u32 s9, s9, 40""")
    A(f"""s_mul_i32 s9, s9, {16*1152}
    s_mul_i32 s8, s3, 144
    s_add_u32 s9, s9, s8
    v_lshrrev_b32 v251, 2, v0
    v_mul_u32_u24 v251, 1152, v251
    v_and_b32 v252, 3, v0
    v_lshlrev_b32 v252, 6, v252
    v_min_u32 v252, 140, v252
    v_add_u32 v251, v251, v252""")

def phi(A, regs, tmp):
    n = len(regs)
    for i in range(0, n, 2):
        assert regs[i+1] == regs[i] + 1 and regs[i] % 2 == 0 and tmp[i] % 2 == 0
        A(f"v_pk_fma_f32 {v(tmp[i],2)}, {v(regs[i],2)}, s[72:73], s[72:73] op_sel:[0,1,1] op_sel_hi:[1,1,1] neg_lo:[0,0,1] neg_hi:[0,0,1]")
    for i in range(n):
        A(f"v_exp_f32 v{tmp[i]}, v{tmp[i]} clamp")
    for i in range(n):
        A(f"v_max_f32 v{regs[i]}, v{regs[i]}, v{tmp[i]}")
    for i in range(0, n, 2):
        A(f"v_pk_add_f32 {v(regs[i],2)}, {v(regs[i],2)}, s[74:75] op_sel:[0,0] op_sel_hi:[1,0]")

def params(typ):
    kv = typ == "kv"
    PITCH = 288 if kv else 384
    STG = XB + 64 * PITCH
    return kv, PITCH, STG

GATE_LDS = 4 * (XB + 64 * 288)

def gen_compute(A, typ, stamps=False):
    kv, PITCH, STG = params(typ)
    NT = 5 if kv else 6
    L = LOOK
    RING = 5 if kv else 6
    V_ACC = 0
    V_A = V_ACC + 4 * NT * 4
    V_B = V_A + 32
    V_AD = V_B + RING * 4
    V_AA = V_AD
    V_TR = V_AD + 2
    V_AAc = V_AD + 6
    V_TRc = V_AD + 8
    V_LANE = V_AD + 12
    V_T = V_AD + 13
    V_AO = V_T + 4
    V_FL = V_T + (4 if kv else 6)
    V_FREE = V_FL + 2
    acc = lambda rt, t: V_ACC + (rt * NT + t) * 4
    areg = lambda ks, rt: V_A + (ks * 4 + rt) * 4
    A(f"""s_getpc_b64 s[12:13]""")
    lab = A.newlabel("L_pcc")
    A.label(lab)
    A(f"""s_sub_u32 s12, s12, {lab}-L_pc0
    s_subb_u32 s13, s13, 0
    v_add_u32 v2, 32768, v2
    v_min_u32 v2, L_code_end-L_pc0-8, v2
    global_load_dword v253, v2, s[12:13]""")
    kwait(A, ["ws", "dbg"], stamps)
    stamp0(A, stamps)
    A(f"s_mov_b32 s{S_EPS}, {EPS:#x}")
    A(f"v_mov_b32 v{V_LANE}, v0")
    A(f"""s_lshr_b32 s{S_T0}, s{S_WAVE}, 1
    s_and_b32 s{S_T1}, s{S_WAVE}, 1""")
    i_, q, rp, cc = V_T, V_T + 1, V_T + 2, V_T + 3
    A(f"""v_and_b32 v{i_}, 15, v{V_LANE}
    v_lshrrev_b32 v{q}, 4, v{V_LANE}
    v_bfe_u32 v{rp}, v{V_LANE}, 2, 2
    v_and_b32 v{cc}, 3, v{V_LANE}
    s_lshl_b32 s{S_T2}, s{S_T0}, 13
    v_lshrrev_b32 v{V_AAc}, 1, v{i_}
    v_xor_b32 v{V_AAc}, v{V_AAc}, v{q}
    v_lshlrev_b32 v{V_AAc}, 4, v{V_AAc}
    v_lshl_add_u32 v{V_AAc}, v{i_}, 7, v{V_AAc}
    v_add_u32 v{V_AAc}, s{S_T2}, v{V_AAc}""")
    if not kv:
        A(f"""s_lshl_b32 s{S_T2}, s{S_CG}, 1
        s_add_u32 s{S_T2}, s{S_T2}, s{S_T1}
        s_cmp_ge_u32 s{S_T2}, 3
        s_cselect_b32 s{S_T2}, 2048, 0
        v_add_u32 v{V_AAc}, s{S_T2}, v{V_AAc}""")
    A(f"v_mov_b32 v{V_FL}, 0\nv_mov_b32 v{V_FL+1}, 0")
    A(f"v_xor_b32 v{V_AAc+1}, 64, v{V_AAc}")
    if kv:
        A(f"""s_mul_i32 s{S_T2}, s{S_T1}, 72
        s_add_u32 s{S_T2}, s{S_T2}, {XB}
        v_lshl_add_u32 v{i_}, v{q}, 3, v{rp}
        v_and_b32 v{V_TRc+1}, 1, v{q}
        v_lshlrev_b32 v{V_TRc+1}, 2, v{V_TRc+1}
        v_xor_b32 v{V_TRc}, v{i_}, v{V_TRc+1}
        v_xor_b32 v{V_TRc+1}, 4, v{V_TRc}
        v_mul_u32_u24 v{V_TRc}, 288, v{V_TRc}
        v_mul_u32_u24 v{V_TRc+1}, 288, v{V_TRc+1}
        v_add_u32 v{V_TRc}, s{S_T2}, v{V_TRc}
        v_add_u32 v{V_TRc+1}, s{S_T2}, v{V_TRc+1}
        v_mul_u32_u24 v{rp}, 144, v{cc}
        v_add_u32 v{rp}, 32, v{rp}
        v_add_u32 v{V_TRc+2}, v{V_TRc}, v{rp}
        v_add_u32 v{V_TRc+3}, v{V_TRc+1}, v{rp}
        v_lshl_add_u32 v{V_TRc}, v{cc}, 3, v{V_TRc}
        v_lshl_add_u32 v{V_TRc+1}, v{cc}, 3, v{V_TRc+1}
        v_cmp_lt_u32 {s(S_MASK,2)}, 1, v{cc}
        v_lshlrev_b32 v{i_}, 3, v{i_}
        v_add_u32 v{rp}, 32, v{i_}
        v_cndmask_b32 v{V_TRc+2}, v{V_TRc+2}, v{i_}, {s(S_MASK,2)}
        v_cndmask_b32 v{V_TRc+3}, v{V_TRc+3}, v{rp}, {s(S_MASK,2)}""")
        coloff = [0, 40, 144, 184]
    else:
        A(f"""v_lshl_add_u32 v{i_}, v{q}, 3, v{rp}
        v_mul_u32_u24 v{i_}, 384, v{i_}
        v_lshl_add_u32 v{i_}, v{cc}, 3, v{i_}
        v_add_u32 v{i_}, {XB}, v{i_}
        v_lshrrev_b32 v{rp}, 1, v{rp}
        v_and_b32 v{q}, 1, v{q}
        v_lshl_add_u32 v{q}, v{q}, 1, v{rp}
        s_mul_i32 s{S_T2}, s{S_T1}, 6""")
        for j in range(4):
            A(f"""s_add_u32 s{S_T3}, s{S_T2}, {j}
            s_and_b32 s{S_CNT}, s{S_T3}, 3
            s_lshr_b32 s{S_T3}, s{S_T3}, 2
            s_lshl_b32 s{S_T3}, s{S_T3}, 7
            v_xor_b32 v{rp}, s{S_CNT}, v{q}
            v_lshl_add_u32 v{V_TRc+j}, v{rp}, 5, v{i_}
            v_add_u32 v{V_TRc+j}, s{S_T3}, v{V_TRc+j}""")
    V_QO = V_FREE
    if not kv:
        V_FREE += 6
        c_, P_, m_, t_ = V_T, V_T + 1, V_T + 2, V_T + 3
        for t in range(NT):
            o0 = V_QO + t
            A(f"""s_mul_i32 s{S_T2}, s{S_CG}, 48
            s_mul_i32 s{S_T3}, s{S_T1}, 24
            s_add_u32 s{S_T2}, s{S_T2}, s{S_T3}
            s_add_u32 s{S_T2}, s{S_T2}, {4*t}
            v_lshrrev_b32 v{c_}, 4, v{V_LANE}
            v_add_u32 v{c_}, s{S_T2}, v{c_}
            v_mul_u32_u24 v{P_}, 7282, v{c_}
            v_lshrrev_b32 v{P_}, 16, v{P_}
            v_mul_u32_u24 v{m_}, 9, v{P_}
            v_sub_u32 v{m_}, v{c_}, v{m_}
            v_lshrrev_b32 v{c_}, 1, v{P_}
            v_mul_u32_u24 v{c_}, 4608, v{c_}
            v_and_b32 v{P_}, 1, v{P_}
            v_cmp_lt_u32 vcc, 4, v{m_}
            v_lshl_add_u32 v{o0}, v{P_}, 3, v{m_}
            v_add_u32 v{t_}, 16, v{P_}
            v_subbrev_co_u32 v{o0}, vcc, 0, v{o0}, vcc
            v_cmp_eq_u32 vcc, 4, v{m_}
            v_and_b32 v{m_}, 15, v{V_LANE}
            v_lshl_add_u32 v{c_}, v{m_}, 4, v{c_}
            v_cndmask_b32 v{o0}, v{o0}, v{t_}, vcc
            v_lshl_add_u32 v{o0}, v{o0}, 8, v{c_}""")
    A(f"""s_mov_b32 s{S_EK}, 1
    s_mov_b32 s{S_PB}, {PB_G}
    s_mov_b32 s{S_B9}, 0
    s_mov_b32 s{S_CINC}, 0""")
    if kv:
        A(f"""s_mov_b32 s{S_N1}, 4
        s_mul_i32 s{S_FA}, s{S_CG}, {NREP*256}
        s_mov_b32 s{S_CA}, 1
        s_add_u32 s{S_FA}, s{S_FA}, {FL_KV}""")
        a_mm, a_mr, a_rm, a_rr, a_ta, a_tb, a_g, a_c = range(245, 253)
        col, qq, x0, x1 = V_T, V_T + 1, V_T + 2, V_T + 3
        A(f"""v_and_b32 v{col}, 15, v{V_LANE}
        v_lshrrev_b32 v{qq}, 4, v{V_LANE}
        v_cmp_gt_u32 vcc, 4, v{col}
        s_mul_i32 s{S_T2}, s{S_T0}, {STGD}
        s_add_u32 s{S_T2}, s{S_T2}, {STGA}
        s_lshl_b32 s{S_T3}, s{S_T1}, 11
        s_add_u32 s{S_T3}, s{S_T3}, s{S_T2}
        v_lshl_add_u32 v{a_mm}, v{V_LANE}, 4, s{S_T3}
        s_lshl_b32 s{S_T3}, s{S_T1}, 8
        s_add_u32 s{S_T3}, s{S_T3}, s{S_T2}
        v_lshl_add_u32 v{a_rm}, v{V_LANE}, 4, s{S_T3}
        v_and_b32 v{x0}, 1, v{col}
        v_add_u32 v{a_rr}, 8, v{x0}
        v_bfe_u32 v{x1}, v{col}, 1, 1
        v_lshl_add_u32 v{x0}, v{x0}, 2, v{x1}
        v_cndmask_b32 v{x0}, v{x0}, v{a_rr}, vcc
        v_lshl_add_u32 v{x0}, s{S_T1}, 1, v{x0}
        v_lshl_add_u32 v{a_rr}, v{x0}, 3, s{S_T2}
        v_mul_u32_u24 v{a_mr}, 192, v{qq}
        v_lshl_add_u32 v{a_mr}, v{x0}, 4, v{a_mr}
        v_add_u32 v{a_mr}, s{S_T2}, v{a_mr}
        v_mov_b32 v{a_c}, {CL_G}
        s_lshl_b32 s{S_T2}, s{S_WAVE}, 8
        v_lshl_add_u32 v{a_ta}, v{V_LANE}, 2, s{S_T2}
        v_add_u32 v{a_tb}, {STGA}, v{a_ta}
        s_lshl_b32 s{S_T2}, s{S_CG}, 13
        s_lshl_b32 s{S_T3}, s{S_RB}, 9
        s_add_u32 s{S_T2}, s{S_T2}, s{S_T3}
        s_lshl_b32 s{S_T3}, s{S_T0}, 8
        s_add_u32 s{S_T2}, s{S_T2}, s{S_T3}
        s_add_u32 s{S_T2}, s{S_T2}, {WS_G}
        v_lshl_add_u32 v{a_g}, v{qq}, 4, s{S_T2}
        s_mul_i32 s{S_SX}, s{S_CG}, 6144
        s_add_u32 s{S_SX}, s{S_SX}, {WS_KVQ}
        s_add_u32 s{S_SW}, s{S_SX}, 4096""")
    else:
        A(f"""s_mov_b32 s{S_N1}, 1
        s_mov_b32 s{S_CA}, 0
        s_lshl_b32 s{S_FA}, s{S_RB}, 1
        s_add_u32 s{S_FA}, s{S_FA}, s{S_T0}
        s_mul_i32 s{S_FA}, s{S_FA}, 6
        s_lshl_b32 s{S_T2}, s{S_CG}, 1
        s_add_u32 s{S_FA}, s{S_FA}, s{S_T2}
        s_add_u32 s{S_FA}, s{S_FA}, s{S_T1}
        s_lshl_b32 s{S_FA}, s{S_FA}, 8
        s_add_u32 s{S_FA}, s{S_FA}, {FL_Q}""")
    for rt in range(4):
        for t in range(NT):
            one = (t < 2) if kv else True
            for r in range(4):
                if kv and t == 4: A(f"v_cndmask_b32 v{acc(rt,t)+r}, 0, 1.0, vcc")
                else: A(f"v_mov_b32 v{acc(rt,t)+r}, {'1.0' if one else '0'}")
    A(f"""s_mov_b32 s{S_SLOT}, 0
    s_mov_b32 s{S_ST}, s{S_ROT}
    s_mov_b32 s{S_CNT}, 0""")
    stamp(A, 1, stamps)
    items = [(ks, t) for ks in range(2) for t in range(NT)]
    N = len(items)
    LB = NT - 1 if LBAR is None else LBAR
    assert N % RING == 0 and RING >= L + 1 and LB >= L and LB <= NT
    def rdB(ri):
        ks, t = items[ri % N]
        b = V_B + (ri % RING) * 4
        ko = ks * 32 * PITCH
        if kv:
            if t < 4:
                return [f"ds_read_b64_tr_b16 {v(b,2)}, v{V_TR} offset:{ko+coloff[t]}",
                        f"ds_read_b64_tr_b16 {v(b+2,2)}, v{V_TR+1} offset:{ko+coloff[t]}"]
            return [f"ds_read_b64_tr_b16 {v(b,2)}, v{V_TR+2} offset:{ko}",
                    f"ds_read_b64_tr_b16 {v(b+2,2)}, v{V_TR+3} offset:{ko}"]
        return [f"ds_read_b64_tr_b16 {v(b,2)}, v{V_TR+(t&3)} offset:{ko+(t>>2)*128}",
                f"ds_read_b64_tr_b16 {v(b+2,2)}, v{V_TR+(t&3)} offset:{ko+(t>>2)*128+4*384}"]
    rdA = lambda ks: [f"ds_read_b128 {v(areg(ks,rt),4)}, v{V_AA+ks} offset:{2048*rt}" for rt in range(4)]
    updA = [f"v_add_u32 v{V_AA}, s{S_SLOT}, v{V_AAc}", f"v_add_u32 v{V_AA+1}, s{S_SLOT}, v{V_AAc+1}"]
    if not kv:
        rdA = lambda ks: [f"ds_read_b128 {v(areg(ks,rt),4)}, v{(V_AO if rt & 1 else V_AA)+ks} offset:{4096*(rt>>1)}" for rt in range(4)]
        updA += [f"v_xor_b32 v{V_AO}, 2048, v{V_AA}", f"v_xor_b32 v{V_AO+1}, 2048, v{V_AA+1}"]
    if kv:
        updB = [f"v_add_u32 v{V_TR}, s{S_SLOT}, v{V_TRc}", f"v_add_u32 v{V_TR+1}, s{S_SLOT}, v{V_TRc+1}"]
        updB2 = [f"v_add_u32 v{V_TR+2}, v{V_T}, v{V_TRc+2}", f"v_add_u32 v{V_TR+3}, v{V_T}, v{V_TRc+3}"]
        pre = [f"s_lshl_b32 s{S_GB}, s{S_ST}, 8", f"s_add_u32 s{S_GB}, s{S_GB}, {GATE_LDS}",
               f"v_mov_b32 v{V_T}, s{S_SLOT}", f"v_mov_b32 v{V_T+1}, s{S_GB}",
               f"v_cndmask_b32 v{V_T}, v{V_T}, v{V_T+1}, {s(S_MASK,2)}",
               f"s_add_u32 s{S_ST}, s{S_ST}, 1", f"s_cmp_eq_u32 s{S_ST}, 9", f"s_cselect_b32 s{S_ST}, 0, s{S_ST}"]
    else:
        updB = [f"v_add_u32 v{V_TR}, s{S_SLOT}, v{V_TRc}", f"v_add_u32 v{V_TR+1}, s{S_SLOT}, v{V_TRc+1}"]
        updB2 = [f"v_add_u32 v{V_TR+2}, s{S_SLOT}, v{V_TRc+2}", f"v_add_u32 v{V_TR+3}, s{S_SLOT}, v{V_TRc+3}"]
        pre = []
    advs = [f"s_add_u32 s{S_SLOT}, s{S_SLOT}, {STG}", f"s_cmp_eq_u32 s{S_SLOT}, {4*STG}", f"s_cselect_b32 s{S_SLOT}, 0, s{S_SLOT}"]
    fill = {i: [] for i in range(N)}
    for idx in range(N):
        f = []
        if idx == N - LB:
            f += [("x", "s_barrier")] + [("x", u) for u in updA] + [("A0", r) for r in rdA(0)]
        if idx == N - L:
            f += [("x", u) for u in updB]
        f += [(f"B{(idx+L)%N}", r) for r in rdB(idx + L)]
        if idx == N - L:
            f += [("x", u) for u in updB2]
        if idx == N - L + 1 or (L == 1 and idx == N - 1):
            f += [("x", u) for u in advs]
        if idx == 0:
            f += [("A1", r) for r in rdA(1)]
        if idx == 1:
            f += [("x", u) for u in pre]
        if idx == 2:
            f += [("x", f"s_cmp_lg_u32 s{S_CNT}, 8\ns_cbranch_scc1 2\nbuffer_load_dword v{V_FL+1}, v{V_FL}, {s(SDBG,4)}, 0 offen sc0 sc1")]
        fill[idx] = f
    ops = []
    for idx in range(N):
        ks, t = items[idx]
        ops.append(("W", idx))
        f = list(fill[idx])
        per = -(-len(f) // 4)
        for rt in range(4):
            ops.append(("M", idx, rt))
            for _ in range(per):
                if f: ops.append(("F",) + f.pop(0))
    def wait_for(pos, tags):
        best = None
        for tag in tags:
            c = 0; p = pos - 1
            while True:
                o = ops[p % len(ops)]
                if o[0] == "F" and o[2].startswith("ds_"):
                    if o[1] == tag: break
                    c += 1
                p -= 1
            best = c if best is None else min(best, c)
        return best
    A("\n".join(pre)) if pre else None
    first = True
    for idx in range(N - LB, N):
        for tag, ins in fill[idx]:
            if tag.startswith("B") and int(tag[1:]) >= L: continue
            A(ins)
            if ins == "s_barrier": stamp(A, 2, stamps)
    lp = A.newlabel("L_gl")
    A.raw(".p2align 3")
    A.label(lp)
    for pos, o in enumerate(ops):
        if o[0] == "W":
            idx = o[1]; ks, t = items[idx]
            tags = [f"B{idx}"] + ([f"A{ks}"] if t == 0 else [])
            A(f"s_waitcnt lgkmcnt({min(wait_for(pos, tags), 15)})")
        elif o[0] == "M":
            idx, rt = o[1], o[2]; ks, t = items[idx]
            b = V_B + (idx % RING) * 4
            d = v(acc(rt, t), 4)
            if NOMFMA: continue
            if kv: A(f"v_mfma_f32_16x16x32_bf16 {d}, {v(areg(ks,rt),4)}, {v(b,4)}, {d}")
            else: A(f"v_mfma_f32_16x16x32_bf16 {d}, {v(b,4)}, {v(areg(ks,rt),4)}, {d}")
        else:
            A(o[2])
    A(f"""s_add_u32 s{S_CNT}, s{S_CNT}, 1
    s_cmp_lt_u32 s{S_CNT}, 9
    s_cbranch_scc1 {lp}""")
    stamp(A, 5, stamps)
    TMP = V_FREE + (V_FREE & 1)
    A("s_waitcnt lgkmcnt(0)")
    rdy_wait(A, V_FL, V_FL + 1, S_CNT, S_T3)
    if not kv:
        A(f"""s_lshl_b32 s{S_T2}, s{S_RB}, 2
        s_lshl_b32 s{S_T3}, s{S_T0}, 1
        s_add_u32 s{S_T2}, s{S_T2}, s{S_T3}
        s_mul_i32 s{S_T2}, s{S_T2}, 36864""")
        A(f"""v_mov_b32 v{V_T}, {CL_G}
        v_mov_b32 v{V_T+1}, 1
        s_mov_b64 exec, 1
        ds_add_u32 v{V_T}, v{V_T+1}
        s_mov_b64 exec, -1""")
        k = 0
        for rp_ in range(2):
            for t in range(NT):
                regs = [acc(2 * rp_ + x, t) + i for x in range(2) for i in range(4)]
                tm = TMP + (k % 4) * 12; k += 1
                phi(A, regs, [tm + i for i in range(8)])
                for i in range(4):
                    A(f"v_cvt_pk_bf16_f32 v{tm+8+i}, v{regs[2*i]}, v{regs[2*i+1]}")
                A(f"buffer_store_dwordx4 {v(tm+8,4)}, v{V_QO+t}, {s(SWS,4)}, s{S_T2} offen sc0 sc1")
            if rp_ == 0: A(f"s_add_u32 s{S_T2}, s{S_T2}, 36864")
        stamp(A, 6, stamps)
        A("s_branch L_p2")
        return
    F = lambda t, m: TMP + (t * 2 + m) * 4
    T2 = TMP + 48
    D = T2 + 16
    assert D + 28 <= 245
    A(f"""v_mov_b32 v{V_T+2}, 0x3f803f80
    v_mov_b32 v{V_T+3}, 1""")
    E = Auto(A)
    def pack(t, dst, rts=range(4)):
        o_ = []
        for rt in rts:
            r0 = acc(rt, t)
            o = F(dst, rt >> 1) + 2 * (rt & 1)
            o_.append(f"v_cvt_pk_bf16_f32 v{o}, v{r0}, v{r0+1}")
            o_.append(f"v_cvt_pk_bf16_f32 v{o+1}, v{r0+2}, v{r0+3}")
        return o_
    def phil(t, m, tb):
        L_ = Asm()
        phi(L_, [acc(rt, t) + i for rt in (2 * m, 2 * m + 1) for i in range(4)], [tb + i for i in range(8)])
        return [x.strip() for x in L_.lines] + pack(t, t, (2 * m, 2 * m + 1))
    MM = lambda p: D + 4 * p
    MR = lambda p: D + 8 + 4 * p
    RM = lambda p: D + 16 + 4 * p
    RR = D + 24
    mf = lambda d_, a_, b_, m: f"v_mfma_f32_16x16x32_bf16 {v(d_,4)}, {v(F(a_,m),4)}, {v(F(b_,m),4)}, {'0' if m == 0 else v(d_,4)}"
    def under(vs, ms):
        ms = list(ms)
        for x in vs:
            if ms and x.startswith("v_exp"): E(ms.pop(0))
            E(x)
        for x in ms: E(x)
    mk = lambda p: ((1 << p) | (3 << (4 + 2 * p)))
    wr_mm = lambda p: f"""ds_write_b128 v{a_mm}, {v(MM(p),4)} offset:{1024*p}
        s_mov_b32 exec_lo, {mk(p) | (mk(p) << 16):#x}
        s_mov_b32 exec_hi, {mk(p) | (mk(p) << 16):#x}
        ds_write_b128 v{a_mr}, {v(MR(p),4)} offset:{KV_X}
        s_mov_b64 exec, -1"""
    under(phil(0, 0, T2), [])
    lab = A.newlabel("L_nog")
    A(f"""s_cmp_lg_u32 s{S_T1}, 0
    s_cbranch_scc1 {lab}
    s_mov_b32 exec_lo, 0x01000100
    s_mov_b32 exec_hi, 0x01000100""")
    for rt in range(4):
        A(f"buffer_store_dwordx4 {v(acc(rt,4),4)}, v{a_g}, {s(SWS,4)}, 0 offen offset:{64*rt} sc0 sc1")
    A("s_mov_b64 exec, -1")
    A.label(lab)
    for x in pack(2, 2) + pack(4, 5): E(x)
    for i in range(8):
        E(f"v_cndmask_b32 v{F(5,0)+i}, v{F(5,0)+i}, v{V_T+2}, vcc")
    under(phil(0, 1, T2 + 8), [mf(MM(0), 0, 2, 0), mf(MR(0), 0, 5, 0)])
    under(phil(1, 0, T2), [mf(MM(0), 0, 2, 1), mf(MR(0), 0, 5, 1)])
    for x in pack(3, 3): E(x)
    E(wr_mm(0))
    under(phil(1, 1, T2 + 8), [mf(MM(1), 1, 3, 0), mf(MR(1), 1, 5, 0)])
    under(phil(4, 0, T2), [mf(MM(1), 1, 3, 1), mf(MR(1), 1, 5, 1)])
    E(wr_mm(1))
    under(phil(4, 1, T2 + 8), [mf(RR, 4, 5, 0), mf(RM(0), 4, 2, 0), mf(RM(1), 4, 3, 0)])
    for x in [mf(RR, 4, 5, 1), mf(RM(0), 4, 2, 1), mf(RM(1), 4, 3, 1)]: E(x)
    E("s_mov_b32 exec_hi, 0")
    for p in range(2):
        E(f"""s_mov_b32 exec_lo, {mk(p):#x}
        ds_write_b64 v{a_rr}, {v(RR+2*p,2)} offset:{KV_LZ}""")
    E("s_mov_b32 exec_lo, 0xffff")
    for p in range(2):
        E(f"ds_write_b64 v{a_rm}, {v(RM(p)+2*p,2)} offset:{KV_RD + 8*p}")
    E(f"""s_mov_b32 exec_lo, 1
    ds_add_u32 v{a_c}, v{V_T+3}
    s_mov_b64 exec, -1""")
    lpp = A.newlabel("L_e2"); le = A.newlabel("L_e2e")
    A(f"s_mov_b32 s{S_CNT}, 0")
    A.label(lpp)
    A(f"""ds_read_b32 v{V_T+3}, v{a_c}
    s_add_u32 s{S_CNT}, s{S_CNT}, 1
    s_cmp_gt_u32 s{S_CNT}, {SPIN}
    s_cbranch_scc1 {le}
    s_waitcnt lgkmcnt(0)
    v_readfirstlane_b32 s{S_T3}, v{V_T+3}
    s_and_b32 s{S_T3}, s{S_T3}, 0xff
    s_cmp_lg_u32 s{S_T3}, 4
    s_cbranch_scc1 {lpp}""")
    A.label(le)
    R = V_A
    for i in range(6):
        for c in range(2):
            A(f"ds_read_b32 v{R+2*i+c}, v{a_tb} offset:{c*STGD + i*1024}")
    for k in range(6):
        A(f"s_waitcnt lgkmcnt({10-2*k})")
        A(f"""v_add_f32 v{R+2*k}, v{R+2*k}, v{R+2*k+1}
        buffer_atomic_add_f32 v{R+2*k}, v{a_ta}, {s(SWS,4)}, s{S_SX if k < 4 else S_SW} offen offset:{1024*(k%4)} sc1""")
    stamp(A, 6, stamps)
    A("s_branch L_p2")

def loader_params(A):
    A.label("L_ldx")
    A(f"""s_mov_b32 s{S_EK}, 1
    s_mov_b32 s{S_PB}, {PB_G}
    s_mov_b32 s{S_B9}, 1
    s_mov_b32 s{S_CINC}, 0x100
    s_mov_b32 s{S_N1}, 0
    s_mov_b32 s{S_CA}, 0
    s_mov_b32 s{S_FA}, 0
    v_readfirstlane_b32 s{S_T0}, v9
    v_mov_b32 v4, {CL_G}
    v_mov_b32 v6, 0
    v_mov_b32 v7, 0
    ds_write_b64 v4, v[6:7]
    s_cmp_ge_u32 s{S_T0}, 8
    s_waitcnt lgkmcnt(0)
    s_cbranch_scc1 L_p2
    s_waitcnt vmcnt(0)
    s_barrier
    s_mov_b32 s{S_B9}, 0
    buffer_load_dword v9, v8, {s(SDBG,4)}, 0 offen sc0 sc1
    s_barrier""")
    rdy_wait(A, 8, 9, S_CNT, S_T0)
    A("s_branch L_p2")

def wp_dma(A, s_lds, s_src, s_t, v16, thr=0):
    for n in range(21):
        if n % 4 == 0:
            A(f"""s_add_u32 m0, s{s_lds}, {1024*n}
            s_add_u32 s{s_t}, s{s_src}, {1024*n}""")
        if n == 20: A("s_mov_b64 exec, 0xffff")
        if thr: A(f"s_waitcnt vmcnt({thr})")
        A(f"buffer_load_dwordx4 v{v16}, {s(SWS,4)}, s{s_t} offen offset:{1024*(n%4)} sc1 lds")
    A("s_mov_b64 exec, -1")

def x_voffsets(A, regs, s_first, tmp):
    t0, t1 = tmp
    A(f"""v_lshrrev_b32 v{t0}, 4, v0
    v_and_b32 v{t1}, 7, v0
    v_xor_b32 v{t1}, v{t1}, v{t0}
    s_and_b32 s{S_T3}, s{s_first}, 1
    s_lshl_b32 s{S_T3}, s{S_T3}, 2
    v_xor_b32 v{t1}, s{S_T3}, v{t1}
    v_lshrrev_b32 v{t0}, 3, v0
    v_mul_u32_u24 v{t0}, 1152, v{t0}
    v_lshl_add_u32 v{t1}, v{t1}, 4, v{t0}
    s_mul_i32 s{S_T3}, s{s_first}, 9216
    s_add_u32 s{S_T3}, s{S_T3}, s{S_T2}
    v_add_u32 v{t1}, s{S_T3}, v{t1}
    v_xor_b32 v{t0}, 64, v{t1}""")
    for k, r in enumerate(regs):
        A(f"v_add_u32 v{r}, {9216*k - 1024*(k%4)}, v{t0 if k % 2 else t1}")

def loader_loop(A, typ, issue, NI, nbar_extra, hooks=None):
    kv, PITCH, STG = params(typ)
    hooks = hooks or {}
    issue(); issue()
    for n in range(9):
        if n in hooks: hooks[n][0]()
        allowed = NI if n + 1 <= 8 else 0
        A(f"s_waitcnt vmcnt({allowed})")
        A("s_barrier")
        if n in hooks and hooks[n][1]: hooks[n][1]()
        if n + 2 < 9: issue()
    for _ in range(nbar_extra): A("s_barrier")

def adv(A, STG):
    A(f"""s_add_u32 s{S_ST}, s{S_ST}, 1
    s_cmp_eq_u32 s{S_ST}, 9
    s_cselect_b32 s{S_ST}, 0, s{S_ST}
    s_add_u32 s{S_SLOT}, s{S_SLOT}, {STG}
    s_cmp_eq_u32 s{S_SLOT}, {4*STG}
    s_cselect_b32 s{S_SLOT}, 0, s{S_SLOT}""")

def gen_loader(A, typ, stamps=False):
    kv, PITCH, STG = params(typ)
    PPR = PITCH // 16
    NX = 3 if kv else 4
    S_J, S_XL, S_WL = 86, 87, 88
    A(f"s_sub_u32 s{S_J}, s{S_WAVE}, 4")
    A(f"s_mul_i32 s{S_T2}, s{S_RB}, {128*1152}")
    A(f"s_mul_i32 s{S_T0}, s{S_J}, {NX}")
    xr = [10 + k for k in range(NX)]
    x_voffsets(A, xr, S_T0, (4, 5))
    A(f"s_lshl_b32 s{S_XL}, s{S_T0}, 10")
    A(f"s_mul_i32 s{S_T1}, s{S_J}, 384")
    A(f"s_mul_i32 s{S_WL}, s{S_J}, 6144")
    A(f"s_add_u32 s{S_WL}, s{S_WL}, {XB}")
    if kv:
        A(f"s_mul_i32 s{S_T3}, s{S_CG}, 144")
        A(f"s_add_u32 s{S_T3}, s{S_T3}, 1152")
    else:
        A(f"s_mul_i32 s{S_T3}, s{S_CG}, 384")
    wr = [20 + i for i in range(6)]
    for i in range(6):
        p, sl, pc, o = 4, 5, 6, wr[i]
        A(f"v_add_u32 v{p}, s{S_T1}, v0")
        if i: A(f"v_add_u32 v{p}, {64*i}, v{p}")
        A(f"v_mul_u32_u24 v{sl}, {3641 if kv else 2731}, v{p}")
        A(f"v_lshrrev_b32 v{sl}, 16, v{sl}")
        A(f"v_mul_u32_u24 v{pc}, {PPR}, v{sl}")
        A(f"v_sub_u32 v{pc}, v{p}, v{pc}")
        if kv:
            A(f"""v_lshrrev_b32 v7, 1, v{sl}
            v_and_b32 v7, 4, v7
            v_xor_b32 v{sl}, v{sl}, v7
            v_mul_u32_u24 v{o}, 3456, v{sl}
            v_lshl_add_u32 v{o}, v{pc}, 4, v{o}
            v_cmp_lt_u32 vcc, 8, v{pc}
            v_add_u32 v7, {1152-144}, v{o}
            s_nop 0
            v_cndmask_b32 v{o}, v{o}, v7, vcc""")
        else:
            A(f"""v_bfe_u32 v7, v{sl}, 1, 1
            v_bfe_u32 v8, v{sl}, 3, 1
            v_lshl_add_u32 v7, v8, 1, v7
            v_lshlrev_b32 v7, 1, v7
            v_xor_b32 v{pc}, v{pc}, v7
            v_mul_u32_u24 v{o}, 3456, v{sl}
            v_lshl_add_u32 v{o}, v{pc}, 4, v{o}""")
        A(f"v_add_u32 v{o}, s{S_T3}, v{o}")
        if i % 4: A(f"v_subrev_u32 v{o}, {1024*(i%4)}, v{o}")
    A(f"s_mov_b32 s{S_SLOT}, 0\ns_mov_b32 s{S_ST}, s{S_ROT}")
    touch(A, 10)
    kwait(A, ["x"], stamps)
    if "--touch=0" not in sys.argv: A(f"buffer_load_dword v253, v251, {s(SX,4)}, s9 offen")
    kwait(A, ["w"], stamps)
    smp = f"buffer_load_dword v9, v8, {s(SDBG,4)}, 0 offen sc0 sc1"
    def issue():
        A(f"""s_lshl_b32 s{S_SX}, s{S_ST}, 7
        s_mul_i32 s{S_SW}, s{S_ST}, 221184
        s_add_u32 m0, s{S_SLOT}, s{S_XL}
        s_add_u32 s{S_T0}, s{S_SLOT}, s{S_WL}""")
        for k in range(NX):
            A(f"buffer_load_dwordx4 v{xr[k]}, {s(SX,4)}, s{S_SX} offen offset:{1024*k} lds")
        A(f"s_mov_b32 m0, s{S_T0}\ns_add_u32 s{S_T0}, s{S_T0}, 4096")
        for i in range(4):
            A(f"buffer_load_dwordx4 v{wr[i]}, {s(SW,4)}, s{S_SW} offen offset:{1024*i} lds")
        A(f"s_mov_b32 m0, s{S_T0}\ns_nop 0")
        for i in range(4, 6):
            A(f"buffer_load_dwordx4 v{wr[i]}, {s(SW,4)}, s{S_SW} offen offset:{1024*(i-4)} lds")
        adv(A, STG)
    NI = NX + 6
    stamp0(A, stamps)
    stamp(A, 1, stamps)
    issue()
    kwait(A, ["dbg"], stamps)
    A("v_mov_b32 v8, 0\nv_mov_b32 v9, 0")
    if stamps:
        stamp(A, 2, stamps)
        for n in range(8):
            if n == 7: A(smp)
            issue()
            A(f"s_waitcnt vmcnt({NI})\ns_barrier")
            stamp(A, 3 + n, stamps, last=False)
        stamp(A, 11, stamps, last=True)
        A("s_branch L_ldx")
        return
    A(f"s_mov_b32 s{S_CNT}, 0")
    lp = A.newlabel("L_ld")
    A.label(lp)
    A(f"s_cmp_lg_u32 s{S_CNT}, 7\ns_cbranch_scc1 2")
    A(smp)
    issue()
    A(f"""s_waitcnt vmcnt({NI})
    s_barrier
    s_add_u32 s{S_CNT}, s{S_CNT}, 1
    s_cmp_lt_u32 s{S_CNT}, 8
    s_cbranch_scc1 {lp}""")
    A("s_branch L_ldx")

def gen_chore(A, stamps=False):
    kv, PITCH, STG = params("kv")
    NX = 7
    A(f"s_mul_i32 s{S_T2}, s{S_RB}, {128*1152}")
    A(f"s_mov_b32 s{S_T0}, 9")
    xr = [10 + k for k in range(NX)]
    x_voffsets(A, xr, S_T0, (4, 5))
    A(f"s_mov_b32 s{S_SLOT}, 0\ns_mov_b32 s{S_ST}, s{S_ROT}")
    def issue():
        A(f"""s_lshl_b32 s{S_SX}, s{S_ST}, 7
        s_add_u32 m0, s{S_SLOT}, 9216
        s_add_u32 s{S_T0}, s{S_SLOT}, {9216+4096}""")
        for k in range(4):
            A(f"buffer_load_dwordx4 v{xr[k]}, {s(SX,4)}, s{S_SX} offen offset:{1024*k} lds")
        A(f"s_mov_b32 m0, s{S_T0}\ns_nop 0")
        for k in range(4, 7):
            A(f"buffer_load_dwordx4 v{xr[k]}, {s(SX,4)}, s{S_SX} offen offset:{1024*(k-4)} lds")
        adv(A, STG)
    A(f"v_lshlrev_b32 v1, 1, v0")
    touch(A, 10)
    kwait(A, ["x"], stamps)
    if "--touch=0" not in sys.argv: A(f"buffer_load_dword v253, v251, {s(SX,4)}, s9 offen")
    kwait(A, ["g"], stamps)
    stamp0(A, stamps)
    for i in range(9):
        A(f"buffer_load_ushort v{30+i}, v1, {s(SG,4)}, 0 offen offset:{128*i}")
    issue()
    A(f"""v_lshrrev_b32 v4, 5, v0
    v_mul_u32_u24 v4, 9216, v4
    v_and_b32 v5, 31, v0
    v_lshl_add_u32 v4, v5, 3, v4
    v_add_u32 v4, {GATE_LDS}, v4
    s_waitcnt vmcnt({NX})""")
    for i in range(9):
        A(f"ds_write_b16 v4, v{30+i} offset:{256*i}")
    A(f"s_mov_b32 s{S_CNT}, 0")
    A("s_waitcnt lgkmcnt(0)")
    kwait(A, ["dbg"], stamps)
    A("v_mov_b32 v8, 0\nv_mov_b32 v9, 0")
    lp = A.newlabel("L_ch")
    A.label(lp)
    A(f"s_cmp_lg_u32 s{S_CNT}, 7\ns_cbranch_scc1 2")
    A(f"buffer_load_dword v9, v8, {s(SDBG,4)}, 0 offen sc0 sc1")
    issue()
    A(f"""s_waitcnt vmcnt({NX})
    s_barrier""")
    A(f"""s_add_u32 s{S_CNT}, s{S_CNT}, 1
    s_cmp_lt_u32 s{S_CNT}, 8
    s_cbranch_scc1 {lp}""")
    stamp(A, 6, stamps)
    loader_params(A)

def rdy_wait(A, fla, flv, sc, st_, first="s_waitcnt vmcnt(0)", off=0):
    lp = A.newlabel("L_zp"); le = A.newlabel("L_ze")
    A(f"s_mov_b32 s{sc}, 0")
    A(first)
    A.label(lp)
    A(f"""v_readfirstlane_b32 s{st_}, v{flv}
    s_cmp_ge_u32 s{st_}, 8
    s_cbranch_scc1 {le}
    s_add_u32 s{sc}, s{sc}, 1
    s_cmp_gt_u32 s{sc}, {SPIN}
    s_cbranch_scc1 {le}
    buffer_load_dword v{flv}, v{fla}, {s(SDBG,4)}, 0 offen offset:{off} sc0 sc1
    s_waitcnt vmcnt(0)
    s_branch {lp}""")
    A.label(le)

def gen_aux(A, stamps=False):
    IMG = 71680
    S_KH_, S_B_, S_J_, S_L_, S_W8_ = 5, 6, 8, 11, 12
    VW0, VWL, VW8, VW8L = 20, 21, 22, 23
    A(f"""s_lshr_b32 s{S_KH_}, s{S_WAVE}, 2
    s_xor_b32 s{S_KH_}, s{S_KH_}, 1
    s_and_b32 s{S_B_}, s3, 1
    s_and_b32 s{S_J_}, s{S_WAVE}, 1
    s_and_b32 s{S_T0}, s3, 2
    s_add_u32 s{S_J_}, s{S_J_}, s{S_T0}
    s_lshr_b32 s{S_T0}, s3, 2
    s_lshl_b32 s{S_T0}, s{S_T0}, 1
    s_add_u32 s{S_CG}, s{S_T0}, s{S_B_}
    s_mul_i32 s{S_T0}, s{S_CG}, 288
    s_mul_i32 s{S_T1}, s{S_KH_}, {288*1152}
    s_add_u32 s{S_T0}, s{S_T0}, s{S_T1}
    s_lshl_b32 s{S_T1}, s{S_J_}, 6
    s_lshl_b32 s{S_T2}, s{S_B_}, 5
    s_add_u32 s{S_SW}, s{S_T0}, s{S_T1}
    s_add_u32 s{S_SW}, s{S_SW}, s{S_T2}
    s_mul_i32 s{S_W8_}, s{S_J_}, {72*1152}
    s_add_u32 s{S_W8_}, s{S_W8_}, s{S_T0}
    s_lshl_b32 s{S_T2}, s{S_B_}, 8
    s_sub_u32 s{S_W8_}, s{S_W8_}, s{S_T2}
    s_add_u32 s{S_W8_}, s{S_W8_}, 256
    s_mul_i32 s{S_L_}, s{S_WAVE}, 11264
    s_add_u32 s{S_L_}, s{S_L_}, {IMG}
    v_lshrrev_b32 v2, 2, v0
    v_and_b32 v3, 3, v0
    v_lshlrev_b32 v3, 4, v3
    v_mul_u32_u24 v2, 1152, v2
    v_add_u32 v{VW0}, v2, v3
    v_bfe_u32 v4, v0, 3, 1
    v_mul_u32_u24 v4, 36, v4
    v_lshrrev_b32 v2, 4, v0
    v_mul_u32_u24 v2, 72, v2
    v_bfe_u32 v5, v0, 2, 1
    v_lshl_add_u32 v4, v5, 1, v4
    v_add3_u32 v4, v4, v2, 16
    v_mul_u32_u24 v4, 1152, v4
    v_add_u32 v{VWL}, v4, v3
    v_lshrrev_b32 v2, 1, v0
    v_lshrrev_b32 v4, 5, v0
    v_lshl_add_u32 v2, v4, 2, v2
    v_and_b32 v3, 1, v0
    v_lshlrev_b32 v3, 4, v3
    v_mul_u32_u24 v2, 1152, v2
    v_add_u32 v{VW8}, v2, v3
    v_mul_u32_u24 v5, 36, v5
    v_and_b32 v2, 2, v0
    v_bfe_u32 v4, v0, 3, 1
    v_add3_u32 v2, v2, v4, v5
    v_add_u32 v2, 16, v2
    v_mul_u32_u24 v2, 1152, v2
    v_add_u32 v{VW8L}, v2, v3
    v_lshlrev_b32 v1, 4, v0
    v_lshlrev_b32 v7, 3, v0
    v_add_u32 v12, s{S_L_}, v1
    v_add_u32 v13, s{S_L_}, v7
    v_mov_b32 v4, {CL_G}
    v_mov_b32 v8, 0
    v_mov_b32 v9, 0
    v_mov_b32 v10, 0
    v_mov_b32 v11, 0
    ds_write_b128 v4, v[8:11]
    s_mov_b32 s{S_EK}, 1
    s_mov_b32 s{S_PB}, {PB_G}
    s_mov_b32 s{S_B9}, 0
    s_mov_b32 s{S_CINC}, 0x101
    s_mov_b32 s{S_N1}, 0
    s_mov_b32 s{S_CA}, 0
    s_mov_b32 s{S_FA}, 0
    s_lshl_b32 s{S_T0}, s{S_CG}, 3
    s_lshl_b32 s{S_T1}, s{S_KH_}, 2
    s_add_u32 s{S_T0}, s{S_T0}, s{S_T1}
    s_add_u32 s{S_T0}, s{S_T0}, s{S_J_}
    s_mul_i32 s{S_SX}, s{S_T0}, {WPU}
    s_add_u32 s{S_SX}, s{S_SX}, {WS_WP}
    s_waitcnt lgkmcnt(0)""")
    srd(A, SW, S_WO, S_WO + 1, 576 * 1152)
    l3 = A.newlabel("L_ph"); l4 = A.newlabel("L_pd"); l0 = A.newlabel("L_p0")
    A(f"""s_barrier
    s_cmp_lt_u32 s{S_WAVE}, 4
    s_cbranch_scc1 {l0}
    s_sleep {AUXSLEEP}""")
    A.label(l0)
    A(f"""s_bitcmp1_b32 s{S_WAVE}, 1
    s_cbranch_scc1 {l3}""")
    assert NFLAG % 8 == 0 and NFLAG // 8 <= 64
    for hh in range(2):
        E = Auto(A)
        bl = list(range(10)) if hh == 0 else list(range(10, 21))
        for b in bl:
            if b < 16: vo, sb, row = VW0, S_SW, 36 * (b >> 1) + 20 * (b & 1)
            elif b < 18: vo, sb, row = VWL, S_SW, b - 16
            elif b < 20: vo, sb, row = VW8, S_W8_, 36 * (b - 18)
            else: vo, sb, row = VW8L, S_W8_, 0
            E(f"""s_add_u32 m0, s{S_L_}, {1024*(b-bl[0])}
            s_add_u32 s{S_T1}, s{sb}, {row*1152}""")
            E.one(f"buffer_load_dwordx4 v{vo}, {s(SW,4)}, s{S_T1} offen lds", tag=f"b{b}")
        kwait(A, ["ws", "dbg"], stamps)
        lz = A.newlabel("L_nz")
        A(f"""s_cmp_ge_u32 s{S_WAVE}, 4
        s_cbranch_scc1 {lz}
        s_and_b32 s{S_T2}, s{S_WAVE}, 1""")
        if hh == 0:
            A(f"""s_mul_i32 s{S_T1}, s3, 6144
            s_mul_i32 s{S_T2}, s{S_T2}, 3072
            s_add_u32 s{S_T1}, s{S_T1}, s{S_T2}
            s_add_u32 s{S_T1}, s{S_T1}, {WS_KVQ}""")
            for i in range(3): A(f"buffer_store_dwordx4 v[8:11], v1, {s(SWS,4)}, s{S_T1} offen offset:{1024*i} sc0 sc1")
        else:
            A(f"""s_mul_i32 s{S_T1}, s3, {NFLAG // 8 * 256}
            s_add_u32 s{S_T1}, s{S_T1}, {FL}
            v_lshl_add_u32 v2, s{S_T2}, 5, v0
            v_min_u32 v2, {NFLAG // 8 - 1}, v2
            v_lshlrev_b32 v2, 8, v2
            s_mov_b32 exec_hi, 0
            buffer_store_dword v8, v2, {s(SWS,4)}, s{S_T1} offen sc0 sc1
            s_mov_b64 exec, -1""")
        A.label(lz)
        pend = []
        for n0 in range(bl[0], bl[-1] + 1, 2):
            o = 1024 * (n0 - bl[0])
            E.wait_vm_tag(f"b{min(n0+1, 20)}")
            cur = []
            for n in (n0, n0 + 1):
                r = 40 + 4 * n
                if n < 18:
                    for u in range(2): E(f"ds_read_b64_tr_b16 {v(r+2*u,2)}, v12 offset:{o+1024*u+8*(n&1)}")
                elif n < 20:
                    for u in range(2): E(f"ds_read_b64_tr_b16 {v(r+2*u,2)}, v13 offset:{o+1024*(n&1)+512*u}")
                elif n == 20: E(f"ds_read_b64_tr_b16 {v(r,2)}, v13 offset:{o}")
                else: continue
                cur.append(n)
            E(f"s_add_u32 s{S_T1}, s{S_SX}, {1024*n0}")
            for n in cur:
                r = 40 + 4 * n
                if n < 20: E(f"buffer_store_dwordx4 {v(r,4)}, v1, {s(SWS,4)}, s{S_T1} offen offset:{1024*(n&1)} sc0 sc1")
                else: E(f"buffer_store_dwordx2 {v(r,2)}, v7, {s(SWS,4)}, s{S_T1} offen sc0 sc1")
        if hh == 0:
            A(f"s_branch {l4}")
            A.label(l3)
    A.label(l4)
    stamp0(A, stamps)
    stamp(A, 1, stamps)
    l5 = A.newlabel("L_nf")
    A(f"""s_lshr_b32 s{S_T1}, s{S_WAVE}, 2
    s_lshl_b32 s{S_T1}, s{S_T1}, 2
    v_mov_b32 v5, s{S_T1}
    v_add_u32 v4, {CL_G + 8}, v5
    v_mov_b32 v2, 1
    v_mov_b32 v3, 1
    s_mov_b64 exec, 1
    s_waitcnt vmcnt(0)
    ds_add_rtn_u32 v6, v4, v3
    s_waitcnt lgkmcnt(0)
    v_readfirstlane_b32 s{S_T0}, v6
    s_cmp_lg_u32 s{S_T0}, 3
    s_cbranch_scc1 {l5}
    v_lshlrev_b32 v5, 5, v5
    buffer_atomic_add v2, v5, {s(SDBG,4)}, 0 offen sc1""")
    A.label(l5)
    A("s_mov_b64 exec, -1")
    stamp(A, 2, stamps)
    A("s_barrier")
    A("s_sleep 8")
    rdy_wait(A, 8, 10, S_CNT, S_T3)
    stamp(A, 4, stamps)
    rdy_wait(A, 8, 11, S_CNT, S_T3, off=128)
    stamp(A, 3, stamps)
    A(f"s_and_b32 s{S_J_}, s{S_WAVE}, 3")
    A(f"""s_lshr_b32 s{S_T0}, s3, 2
    s_lshl_b32 s{S_T0}, s{S_T0}, 4
    s_lshr_b32 s{S_T1}, s{S_WAVE}, 2
    s_lshl_b32 s{S_T1}, s{S_T1}, 3
    s_add_u32 s{S_T0}, s{S_T0}, s{S_T1}
    s_add_u32 s{S_T0}, s{S_T0}, s{S_J_}
    s_mul_i32 s{S_T0}, s{S_T0}, {WPU}
    s_add_u32 s{S_T0}, s{S_T0}, {WS_WP}
    s_mov_b32 s{S_CNT}, 0""")
    lp = A.newlabel("L_pf")
    A.label(lp)
    A(f"""buffer_load_dwordx4 v[12:15], v1, {s(SWS,4)}, s{S_T0} offen sc1
    s_add_u32 s{S_T0}, s{S_T0}, 1024
    s_add_u32 s{S_CNT}, s{S_CNT}, 1
    s_cmp_lt_u32 s{S_CNT}, 21
    s_cbranch_scc1 {lp}
    s_waitcnt vmcnt(0)""")
    stamp(A, 6, stamps)
    A("s_branch L_p2")
```

```python
from asm import *
from auto import Auto
from l1gemm import *
import sys

def opt(name, default):
    for a_ in sys.argv:
        if a_.startswith(f"--{name}="): return a_.split("=", 1)[1]
    return default
FINE2 = "--fine2" in sys.argv
FINE = "--fine" in sys.argv
THR = int(opt("thr", "4"))
PSLEEP = int(opt("psleep", "0"))
OUTB = opt("outb", "").replace("_", " ")

def gen_p2(A0, stamps=False):
    A = Auto(A0)
    SWO, SOUT = SW, SX
    ws, wo = s(SWS, 4), s(SWO, 4)
    S_J, S_KH, S_RP, S_CM = 3, 4, 5, 6
    T0, T1, T2, T3 = 7, 8, 9, 10
    S_KV0, S_KV1, S_PQ0, S_PQ1, S_G0, S_G1 = 11, 12, 13, 14, 15, 60
    S_BT0, S_BT1, S_BT8, S_O0, S_O8 = 61, 62, 63, 65, 66
    S_P = 67
    S_C8, S_WB, S_W8, S_ER, S_BOK, S_PBV, TD = 70, 73, 74, 75, 76, 71, 77
    M8A, M8S = 78, 82
    MK = [84, 86, 88, 24, 26, 28, 30, 32, 34, 36, 22, 16, 18]
    I16, Q, V16, VX, VS, VR, VG, VFL, VSF, FLV, SFV = range(1, 12)
    VT = [12, 13, 14]
    VT8, VMB = 15, 16
    VP = [17, 18, 19, 20]
    VLF, VLW = 21, 22
    VO = [23, 24, 25, 26]
    VEW, VER, VB0, VB8, VOUT, VOUT8 = 27, 28, 29, 30, 31, 32
    X0, X1, X2, X3, VC = 35, 36, 37, 38, 39
    GV, DIAG, EPSV = 40, 42, 44
    AM = lambda h: 48 + 6 * h
    MG = lambda h: 72 + 6 * h
    PQ = lambda h: 96 + 6 * h
    XR, SR, RR_ = 122, 126, 130
    VW0, VWL, VW8, VW8L = 122, 123, 124, 125
    NUM = lambda l, h: 134 + 16 * l + 4 * h
    DD = lambda l: (126, 122)[l]
    TT = 130
    UU = lambda l: (4, 12)[l]
    PE = lambda l, p: NUM(l, 2 * p)
    NL = lambda l: 166 + 2 * l
    WOF = lambda st, c: 172 + 8 * st + 4 * c
    W8 = lambda p: 244 + 4 * p
    W8L = 252
    ACC = lambda l, c: 48 + 8 * l + 4 * c
    AC8 = lambda l: 64 + 4 * l
    BTF = [44, 46, 170]
    OFR = [[108, 112, 116, 150, 154, 158, 162, 122, 130], [72 + 4 * k for k in range(9)]]
    OF = lambda l, st: OFR[l][st]
    P8 = [72 + 4 * k for k in range(8)]
    EX = [104, 56]
    seen = set()
    def st(idx, last=False, f2=False):
        if FINE2 and idx in (1, 2, 3, 4, 5) and not f2: return
        if f2 and not FINE2: return
        if not stamps or idx in seen: return
        seen.add(idx)
        A.one("s_waitcnt lgkmcnt(0)")
        stamp(A0, idx, stamps, last=last)
        A.t += 3
    A0.raw(".p2align 6")
    A0.label("L_p2")
    A(f"""v_mbcnt_lo_u32_b32 v0, -1, 0
    v_mbcnt_hi_u32_b32 v0, -1, v0""")
    srd(A0, SWS, S_WS, S_WS + 1, WS_SIZE)
    if stamps:
        A(f"""v_add_u32 v254, 0x40000, v254
        v_mov_b32 v255, 0
        v_writelane_b32 v255, s92, 0
        v_writelane_b32 v255, s94, 14""")
        st(1)
    A(f"""s_and_b32 s{S_J}, s{S_WAVE}, 3
    s_lshr_b32 s{S_KH}, s{S_WAVE}, 2
    v_lshlrev_b32 v{V16}, 4, v0
    v_lshlrev_b32 v{VT8}, 3, v0
    v_mov_b32 v{X3}, 1
    v_mov_b64 {v(W8L,2)}, 0
    s_mul_i32 s{S_P}, s{S_J}, {PJ}
    s_add_u32 s{S_P}, s{S_P}, s{S_PB}
    s_sub_u32 s{T2}, s{S_PB}, 64
    v_mov_b32 v{VC}, s{T2}
    s_cmp_eq_u32 s{S_KH}, s{S_EK}
    s_cselect_b32 s{S_ER}, 1, 0""")
    l_nd = A0.newlabel("L_nd")
    A0(f"""s_cbranch_scc0 {l_nd}
    s_bfe_u32 s{T1}, s2, 0x10002
    s_lshl_b32 s{T1}, s{T1}, 4
    s_lshr_b32 s{T0}, s2, 7
    s_lshl_b32 s{T0}, s{T0}, 3
    s_add_u32 s{T0}, s{T0}, s{T1}
    s_add_u32 s{T0}, s{T0}, s{S_WAVE}
    s_xor_b32 s{T1}, s{T0}, 4
    s_mul_i32 s{S_WB}, s{T0}, {WPU}
    s_mul_i32 s{S_W8}, s{T1}, {WPU}
    s_add_u32 s{S_WB}, s{S_WB}, {WS_WP}
    s_add_u32 s{S_W8}, s{S_W8}, {WS_WP}""")
    def own(k):
        for n in range(7 * k, 7 * k + 7):
            if n % 4 == 0 or n % 7 == 0: A0(f"s_add_u32 s{TD}, s{S_WB}, {4096*(n>>2)}")
            if n < 20: A0(f"buffer_load_dwordx4 {v(172+4*n,4)}, v{V16}, {ws}, s{TD} offen offset:{1024*(n&3)} sc1")
            else: A0(f"s_mov_b32 exec_hi, 0\nbuffer_load_dwordx2 {v(W8L,2)}, v{VT8}, {ws}, s{TD} offen sc1\ns_mov_b64 exec, -1")
    l_n9 = A0.newlabel("L_n9"); l_n8 = A0.newlabel("L_n8")
    own(0)
    A0(f"""s_cmp_lg_u32 s{S_B9}, 1
    s_cbranch_scc1 {l_n8}
    s_waitcnt vmcnt(7)
    s_barrier""")
    A0.label(l_n8)
    own(1)
    A0(f"""s_cmp_lg_u32 s{S_B9}, 1
    s_cbranch_scc1 {l_n9}
    s_barrier""")
    A0.label(l_n9)
    A0(f"""v_mov_b32 v{X2}, 0
    buffer_load_dword v{FLV}, v{X2}, {s(SDBG,4)}, 0 offen offset:128 sc0 sc1""")
    own(2)
    A0("s_setprio 0")
    A0.label(l_nd)
    A(f"v_lshrrev_b32 v{Q}, 4, v0")
    def part_a():
        L_ = Asm(); A = Auto(L_)
        A(f"""s_and_b32 s{T0}, s2, 3
        s_lshl_b32 s{T0}, s{T0}, 4
        s_bfe_u32 s{S_RP}, s2, 0x40003
        s_add_u32 s{S_RP}, s{S_RP}, s{T0}
        v_and_b32 v{I16}, 15, v0
        v_and_b32 v{X0}, 3, v0
        v_add_u32 v{X1}, 8, v{X0}
        v_min_u32 v{X1}, v{X1}, v{I16}
        v_mul_u32_u24 v{VX}, 192, v{Q}
        v_lshl_add_u32 v{VX}, v{X1}, 4, v{VX}
        v_lshrrev_b32 v{X1}, 1, v{X1}
        v_lshlrev_b32 v{X1}, 4, v{X1}
        v_add_u32 v{X1}, {KV_LZ - KV_RD}, v{X1}
        v_cmp_gt_u32 vcc, 32, v0
        v_and_b32 v{VR}, 511, v{V16}
        v_lshlrev_b32 v{VG}, 2, v{I16}
        v_cndmask_b32 v{VS}, v{X1}, v{V16}, vcc
        s_mul_i32 s{S_KV0}, s{S_WAVE}, 6144
        s_add_u32 s{S_KV0}, s{S_KV0}, {WS_KVQ}
        s_add_u32 s{S_KV1}, s{S_KV0}, 4096
        s_mul_i32 s{T0}, s{S_RP}, 36864
        s_mul_i32 s{T1}, s{S_WAVE}, 4608
        s_add_u32 s{S_PQ0}, s{T0}, s{T1}
        s_add_u32 s{S_PQ1}, s{S_PQ0}, 4096
        s_lshl_b32 s{T0}, s{S_RP}, 1
        s_add_u32 s{T0}, s{T0}, s{S_KH}
        s_lshl_b32 s{S_G0}, s{T0}, 6
        s_lshl_b32 s{T1}, s{S_WAVE}, 13
        s_add_u32 s{S_G0}, s{S_G0}, s{T1}
        s_add_u32 s{S_G0}, s{S_G0}, {WS_G}
        s_xor_b32 s{S_G1}, s{S_G0}, 64
        s_mul_i32 s{T0}, s{S_WAVE}, {NREP}
        s_and_b32 s{T1}, s2, {NREP-1}
        s_add_u32 s{T0}, s{T0}, s{T1}
        s_lshl_b32 s{T0}, s{T0}, 8
        s_add_u32 s{T0}, s{T0}, {FL_KV}
        v_mov_b32 v{VFL}, s{T0}
        s_lshr_b32 s{T0}, s{S_RP}, 1
        s_mul_i32 s{T0}, s{T0}, 6
        s_add_u32 s{T0}, s{T0}, {FL_Q >> 8}
        s_mul_i32 s{T1}, s{S_WAVE}, 3
        s_add_u32 s{T2}, s{T1}, 2
        s_lshr_b32 s{T1}, s{T1}, 2
        s_lshr_b32 s{T2}, s{T2}, 2
        s_add_u32 s{T1}, s{T1}, s{T0}
        s_add_u32 s{T2}, s{T2}, s{T0}
        s_lshl_b32 s{T1}, s{T1}, 8
        s_lshl_b32 s{T2}, s{T2}, 8
        v_writelane_b32 v{VFL}, s{T1}, 1
        v_writelane_b32 v{VFL}, s{T2}, 2""")
        return [x.strip() for x in L_.lines]
    for x in part_a(): A0(x)
    st(2)
    def cwait():
        lp = A0.newlabel("L_cw"); le = A0.newlabel("L_ce")
        A0(f"s_mov_b32 s{T3}, 0")
        A0.label(lp)
        A0(f"""ds_read_b32 v{X0}, v{VC}
        s_add_u32 s{T3}, s{T3}, 1
        s_cmp_gt_u32 s{T3}, {SPIN}
        s_cbranch_scc1 {le}
        s_waitcnt lgkmcnt(0)
        v_readfirstlane_b32 s{T2}, v{X0}
        s_cmp_eq_u32 s{T2}, 0x404
        s_cbranch_scc1 {le}
        s_sleep 1
        s_branch {lp}""")
        A0.label(le)
    pollreq = f"""s_mov_b64 exec, 7
    v_mov_b32 v{FLV}, 0
    buffer_atomic_add v{FLV}, v{VFL}, {ws}, 0 offen sc0 sc1
    s_mov_b64 exec, -1"""
    l_w = A0.newlabel("L_w"); l_w2 = A0.newlabel("L_w2")
    A0(f"""v_mov_b32 v{X1}, 16
    v_lshlrev_b32 v{X2}, 8, v0
    s_cmp_eq_u32 s{S_ER}, 1
    s_cbranch_scc1 {l_w}
    s_cmp_eq_u32 s{S_EK}, 0
    s_cbranch_scc1 {l_w2}
    s_waitcnt vmcnt(0)
    s_branch {l_w}""")
    A0.label(l_w2)
    A0(pollreq)
    A0("s_waitcnt vmcnt(1)")
    A0.label(l_w)
    A0("s_waitcnt vmcnt(22)")
    l_ns = A0.newlabel("L_ns"); l_s2 = A0.newlabel("L_s2"); l_sx = A0.newlabel("L_sx")
    A0(f"""s_cmp_eq_u32 s{S_N1}, 0
    s_cbranch_scc1 {l_ns}
    s_mov_b64 exec, 1
    s_cmp_eq_u32 s{S_N1}, 1
    s_cbranch_scc1 {l_s2}
    ds_add_rtn_u32 v{X0}, v{VC}, v{X3} offset:4
    s_sub_u32 s{T3}, s{S_N1}, 1
    s_waitcnt lgkmcnt(0)
    v_readfirstlane_b32 s{T2}, v{X0}
    s_cmp_lg_u32 s{T2}, s{T3}
    s_cbranch_scc1 {l_sx}
    s_cmp_eq_u32 s{S_CA}, 0
    s_cbranch_scc1 {l_s2}
    s_mov_b64 exec, {(1 << NREP) - 1:#x}
    buffer_atomic_add v{X3}, v{X2}, {ws}, s{S_FA} offen sc1
    s_branch {l_sx}""")
    A0.label(l_s2)
    A0(f"buffer_store_dword v{X1}, v{X2}, {ws}, s{S_FA} offen sc0 sc1")
    A0.label(l_sx)
    A0("s_mov_b64 exec, -1")
    A0.label(l_ns)
    st(3)
    l_c1 = A0.newlabel("L_c1"); l_c2 = A0.newlabel("L_c2"); l_c3 = A0.newlabel("L_c3"); l_c4 = A0.newlabel("L_c4")
    A0(f"""s_cmp_eq_u32 s{S_ER}, 1
    s_cbranch_scc0 {l_c1}
    v_mov_b32 v{X1}, s{S_CINC}
    s_cmp_eq_u32 s{S_EK}, 0
    s_cbranch_scc1 {l_c3}""")
    A0(f"v_mov_b32 v{X2}, 0")
    rdy_wait(A0, X2, FLV, T3, T2, first="s_waitcnt vmcnt(7)", off=128)
    wp_dma(A0, S_P, S_W8, TD, V16, THR)
    A0("s_waitcnt vmcnt(0)")
    A0.label(l_c3)
    A0(f"""s_mov_b64 exec, 1
    ds_add_u32 v{VC}, v{X1}
    s_mov_b64 exec, -1""")
    cwait()
    A0(pollreq)
    A0(f"s_branch {l_c2}")
    A0.label(l_c1)
    cwait()
    A0(f"""s_cmp_eq_u32 s{S_EK}, 0
    s_cbranch_scc1 {l_c4}""")
    A0(pollreq)
    A0.label(l_c4)
    A0(f"v_add_u32 v{VT[0]}, s{S_P}, v{V16}")
    A0(f"v_add_u32 v{VT8}, s{S_P}, v{VT8}")
    for n in range(20): A0(f"ds_read_b128 {v(172+4*n,4)}, v{VT[0]} offset:{1024*n}")
    A0(f"s_mov_b32 exec_hi, 0\nds_read_b64 {v(W8L,2)}, v{VT8} offset:20480\ns_mov_b64 exec, -1")
    A0.label(l_c2)
    A0("s_setprio 0")
    st(4)
    def poll(vaddr, vdst, mask, need=None, atomic=True, pending=False):
        lp = A0.newlabel("L_fp"); le = A0.newlabel("L_fe"); l1 = A0.newlabel("L_f1")
        A0(f"s_mov_b32 s{T3}, 0\ns_mov_b64 exec, {mask:#x}")
        if pending: A0(f"s_branch {l1}")
        A0.label(lp)
        if PSLEEP: A0(f"s_sleep {PSLEEP}")
        if atomic: A0(f"v_mov_b32 v{vdst}, 0\nbuffer_atomic_add v{vdst}, v{vaddr}, {ws}, 0 offen sc0 sc1")
        else: A0(f"buffer_load_dword v{vdst}, v{vaddr}, {ws}, 0 offen sc0 sc1")
        A0.label(l1)
        A0(f"""s_add_u32 s{T3}, s{T3}, 1
        s_waitcnt vmcnt(0)
        v_cmp_gt_u32 vcc, 16, v{vdst}
        s_cmp_gt_u32 s{T3}, {SPIN}
        s_cbranch_scc1 {le}
        s_and_b32 s{T2}, vcc_lo, {need or mask:#x}
        s_cbranch_scc1 {lp}""")
        A0.label(le)
        A0("s_mov_b64 exec, -1")
    SC = "sc1"
    poll(VFL, FLV, 0x7, 0x6, pending=True)
    A.flush(); A.lastw = {}
    st(5)
    A(f"buffer_load_dwordx4 {v(RR_,4)}, v{VR}, {ws}, s{S_PQ1} offen {SC}")
    for h in range(4):
        A(f"buffer_load_dwordx4 {v(PQ(h)+2,4)}, v{V16}, {ws}, s{S_PQ0} offen offset:{1024*h} {SC}")
    l_kv = A0.newlabel("L_kv")
    A0(f"s_cbranch_vccz {l_kv}")
    poll(VFL, FLV, 0x1)
    A0.label(l_kv)
    st(12)
    A(f"""buffer_load_dwordx4 {v(XR,4)}, v{VX}, {ws}, s{S_KV1} offen offset:{KV_X-4096} {SC}
    buffer_load_dwordx4 {v(SR,4)}, v{VS}, {ws}, s{S_KV1} offen offset:{KV_RD-4096} {SC}""")
    for l in (1, 0):
        A(f"buffer_load_dword v{GV+l}, v{VG}, {ws}, s{S_G0 if l == 0 else S_G1} offen {SC}")
    for h in range(4):
        A(f"buffer_load_dwordx4 {v(AM(h)+2,4)}, v{V16}, {ws}, s{S_KV0} offen offset:{1024*h} {SC}")
    def mask64(f):
        m = 0
        for l in range(64):
            if f(l & 15, l >> 4): m |= 1 << l
        return m
    masks = {}
    def getmask(f):
        m = mask64(f)
        if m not in masks:
            r = MK[len(masks)]
            src = [(m0_, k) for m0_ in masks for k in range(1, 17) if (m0_ << k) == m]
            if m < (1 << 31): A(f"s_mov_b64 {s(r,2)}, {m:#x}")
            elif src: A(f"s_lshl_b64 {s(r,2)}, {s(masks[src[0][0]],2)}, {src[0][1]}")
            else: A(f"s_mov_b32 s{r}, {m & 0xffffffff:#x}\ns_mov_b32 s{r+1}, {m >> 32:#x}")
            masks[m] = r
        return s(masks[m], 2)
    mh = [getmask(lambda i, q: (i & 3) == h) for h in range(4)]
    mq = [getmask(lambda i, q: q == p) for p in range(2)]
    ms = [getmask(lambda i, q: q >= 2 and (i & 3) == 2 * (q & 1) + par) for par in range(2)]
    zr = [AM(h) for h in range(4)] + [MG(h) + x for h in range(4) for x in (0, 5)] + [MG(h) + x for h in (2, 3) for x in (1, 4)]
    zr += [PQ(0), PQ(4) + 1]
    for r in zr: A(f"v_mov_b32 v{r}, 0")
    for r in (NL(0), NL(1), BTF[2], EPSV, EPSV + 2): A(f"v_mov_b64 {v(r,2)}, 0")
    A("s_waitcnt lgkmcnt(0)")
    A("s_mov_b32 exec_lo, 0")
    for r in range(4): A(f"v_mov_b32 v{EPSV+r}, {EPS:#x}")
    A(f"""s_mov_b64 exec, -1
    s_bfe_u32 s{T1}, s2, 0x10002
    s_mul_i32 s{T1}, s{T1}, 288
    s_lshr_b32 s{T0}, s2, 7
    s_mul_i32 s{S_CM}, s{T0}, 160
    s_add_u32 s{S_CM}, s{S_CM}, s{T1}
    s_lshl_b32 s{S_C8}, s{T0}, 4
    s_add_u32 s{S_C8}, s{S_C8}, s{T1}
    s_add_u32 s{S_C8}, s{S_C8}, 128
    s_add_u32 s{S_BOK}, s{S_PB}, {4*PJ}
    s_cmp_eq_u32 s{S_ER}, 1
    s_cselect_b32 s{T1}, {EMP ^ LMP}, 0
    s_cselect_b32 s{T0}, s{S_BOK}, 0
    s_cselect_b32 s{T2}, 0, s{S_BOK}
    s_xor_b32 s{T3}, s{T1}, {EMP}
    s_xor_b32 s{T1}, s{T1}, {LMP}
    v_add_u32 v{VP[0]}, s{T0}, v{V16}
    v_add_u32 v{VO[0]}, s{T2}, v{V16}""")
    for k in range(1, 4):
        A(f"v_add_u32 v{VP[k]}, s{T1}, v{VP[k-1]}\nv_add_u32 v{VO[k]}, s{T3}, v{VO[k-1]}")
    A(f"""v_mul_u32_u24 v{VLF}, s{T1}, v{Q}
    v_lshl_add_u32 v{VLF}, v{I16}, 4, v{VLF}
    v_add_u32 v{VLF}, s{T0}, v{VLF}
    s_mul_i32 s{T2}, s{S_J}, s{T1}
    s_add_u32 s{T2}, s{T2}, s{T0}
    v_add_u32 v{VMB}, s{T2}, v{V16}
    v_lshlrev_b32 v{VLW}, 3, v{Q}
    v_lshl_add_u32 v{VLW}, v{I16}, 4, v{VLW}
    v_add_u32 v{VLW}, s{T2}, v{VLW}
    s_lshr_b32 s{T0}, s{S_CM}, 3
    s_lshl_b32 s{T1}, s{S_J}, 2
    s_add_u32 s{T0}, s{T0}, s{T1}
    s_add_u32 s{T0}, s{T0}, {FL_S >> 8}
    v_add_lshl_u32 v{VSF}, v0, s{T0}, 8
    s_lshl_b32 s{M8A}, 0x000f000f, s{T1}
    s_mov_b32 s{M8A+1}, s{M8A}
    s_lshr_b32 s{T0}, s{S_C8}, 3
    s_lshr_b32 s{T1}, s{S_J}, 1
    s_add_u32 s{T0}, s{T0}, s{T1}
    s_add_u32 s{T0}, s{T0}, {FL_S >> 8}
    s_lshl_b32 s{T0}, s{T0}, 8
    v_writelane_b32 v{VSF}, s{T0}, 4
    s_mov_b32 s{S_BOK}, 0""")
    late = Asm(); LA = Auto(late)
    srd(late, SOUT, S_OUT, S_OUT + 1, 2048 * 1152)
    LA(f"""s_lshl_b32 s{T0}, s{S_WAVE}, 11
    s_xor_b32 s{T1}, s{T0}, 8192
    s_add_u32 s{T0}, s{T0}, s{S_PB}
    s_add_u32 s{T1}, s{T1}, s{S_PB}
    v_add_u32 v{VEW}, s{T0}, v{V16}
    v_add_u32 v{VER}, s{T1}, v{V16}
    v_and_b32 v{X0}, 3, v0
    v_lshlrev_b32 v{X0}, 3, v{X0}
    v_lshl_add_u32 v{X0}, v{Q}, 5, v{X0}
    v_lshrrev_b32 v{X1}, 2, v{I16}
    v_lshl_add_u32 v{VB0}, v{X1}, 15, v{X0}
    v_lshl_add_u32 v{VB8}, v{X1}, 14, v{X0}
    v_mul_u32_u24 v{X1}, 1152, v{I16}
    v_lshl_add_u32 v{VOUT}, v{Q}, 4, v{X1}
    v_lshl_add_u32 v{VOUT8}, v{Q}, 3, v{X1}
    s_lshl_b32 s{T0}, s{S_RP}, 1
    s_add_u32 s{T0}, s{T0}, s{S_KH}
    s_lshl_b32 s{T2}, s{S_J}, 5
    s_add_u32 s{T2}, s{T2}, s{S_CM}
    s_mul_i32 s{T1}, s{T0}, {8*1152}
    s_add_u32 s{S_O0}, s{T1}, s{T2}
    s_add_u32 s{S_O8}, s{T1}, s{S_C8}
    s_lshl_b32 s{S_O0}, s{S_O0}, 1
    s_lshl_b32 s{S_O8}, s{S_O8}, 1
    s_lshl_b32 s{T3}, s{T0}, 7
    s_add_u32 s{T3}, s{T3}, {WS_BT}
    s_lshl_b32 s{T2}, s{T2}, 12
    s_add_u32 s{S_BT0}, s{T3}, s{T2}
    s_add_u32 s{S_BT1}, s{S_BT0}, {4*4096}
    s_lshl_b32 s{T2}, s{S_C8}, 12
    s_add_u32 s{S_BT8}, s{T3}, s{T2}
    s_lshl_b32 s{T0}, s{S_J}, 4
    s_lshl_b64 {s(M8S,2)}, 0xffff, s{T0}""")
    for x in late.lines: A(x.strip())
    md0 = getmask(lambda i, q: q == (i >> 2) and (i & 2) == 0)
    md1 = getmask(lambda i, q: q == (i >> 2) and (i & 2) != 0)
    modd = getmask(lambda i, q: (i & 1) == 1)
    st(13)
    for h in range(4):
        A(f"v_mov_b32 v{PQ(h)+1}, v{RR_+(h&1)}")
        A(f"v_mov_b32 v{PQ(h+1)}, v{RR_+2+(h&1)}")
    A(f"""v_cvt_pk_bf16_f32 v{XR}, v{XR}, v{XR+1}
    v_cvt_pk_bf16_f32 v{XR+1}, v{XR+2}, v{XR+3}""")
    for h in range(4):
        for x in range(2): A(f"v_cndmask_b32 v{MG(h)+2+x}, 0, v{XR+x}, {mh[h]}")
    A(f"""v_cvt_pk_bf16_f32 v{SR}, v{SR}, v{SR+1}
    v_cvt_pk_bf16_f32 v{SR+1}, v{SR+2}, v{SR+3}""")
    for h in range(2):
        for x in (4, 1): A(f"v_cndmask_b32 v{MG(h)+x}, 0, v{SR+h}, {ms[h]}")
    st(6)
    MF = "v_mfma_f32_16x16x32_bf16"
    mg = lambda l, h: f"{MF} {v(DD(l),4)}, {v(MG(h)+2*l,4)}, {v(PQ(h)+4*l,4)}, {v(EPSV,4) if h == 0 else v(DD(l),4)}"
    nm = lambda l, h: f"{MF} {v(NUM(l,h),4)}, {v(AM(h)+2*l,4)}, {v(PQ(h)+4*l,4)}, 0"
    sig = [f"v_mul_f32 v{GV+l}, {LOG2E:#x}, v{GV+l}" for l in (1, 0)] + [f"v_exp_f32 v{GV+l}, -v{GV+l}" for l in (1, 0)] + \
          [f"v_add_f32 v{GV+l}, 1.0, v{GV+l}" for l in (1, 0)]
    amr = [f"v_cndmask_b32 v{AM(h)+1}, 0, v{SR+(h&1)}, {mq[h>>1]}" for h in range(4)]
    def amb(h):
        r = AM(h)
        return [f"v_cvt_pk_bf16_f32 v{r+2}, v{r+2}, v{r+3}", f"v_cvt_pk_bf16_f32 v{r+3}, v{r+4}, v{r+5}",
                f"v_mov_b32 v{r+4}, v{r+1}", f"v_mov_b32 v{r+5}, 0"]
    def den(l):
        o = []
        D, T, U = DD(l), TT, UU(l)
        for r in range(4): o.append(f"v_mul_f32 v{U+r}, v{GV+l}, v{D+r}")
        for r in range(4): o.append(f"v_mul_f32 v{T+r}, v{GV+l}, v{D+r}")
        for r in range(4): o.append(f"v_permlane32_swap_b32 v{T+r}, v{U+r}")
        for r in range(4): o.append(f"v_rcp_f32 v{U+r}, v{U+r}")
        return o
    def num(l, pk):
        o = []
        D, U = DD(l), UU(l)
        if pk:
            for x in (0, 2): o.append(f"v_pk_mul_f32 {v(D+x,2)}, {v(D+x,2)}, {v(U+x,2)}")
        else:
            for x in range(4): o.append(f"v_mul_f32 v{D+x}, v{D+x}, v{U+x}")
        o.append("s_mov_b32 exec_hi, 0\n" + f"v_cvt_pk_bf16_f32 v{NL(l)}, v{D}, v{D+1}\nv_cvt_pk_bf16_f32 v{NL(l)+1}, v{D+2}, v{D+3}\n"
                 + f"ds_write_b64 v{VLW}, {v(NL(l),2)} offset:{4096+256*l}\ns_mov_b64 exec, -1")
        for h in range(4):
            n = NUM(l, h); e = h & 1
            if pk:
                for x in (0, 2):
                    o.append(f"v_pk_mul_f32 {v(n+x,2)}, {v(n+x,2)}, {v(U+(h&2),2)} op_sel:[0,{e}] op_sel_hi:[1,{e}]")
            else:
                for x in range(4): o.append(f"v_mul_f32 v{n+x}, v{n+x}, v{U+h}")
            o.append(f"v_cvt_pk_bf16_f32 v{PE(l,h>>1)+2*e}, v{n}, v{n+1}")
            o.append(f"v_cvt_pk_bf16_f32 v{PE(l,h>>1)+2*e+1}, v{n+2}, v{n+3}" +
                     (f"\nds_write_b128 v{VMB}, {v(PE(l,h>>1),4)} offset:{2048*l+1024*(h>>1)}" if e else ""))
        return o
    def ct8(l):
        return [f"v_mfma_f32_16x16x16_bf16 {v(AC8(l),4)}, {v(W8L,2)}, {v(NL(l),2)}, 0"] + \
               [f"{MF} {v(AC8(l),4)}, {v(W8(p),4)}, {v(PE(l,p),4)}, {v(AC8(l),4)}" for p in range(2)]
    def interleave(ms_, fs, per=None):
        per = per or -(-len(fs) // max(1, len(ms_)))
        fs = list(fs)
        for m_ in ms_:
            A(m_)
            for _ in range(per):
                if fs: A(fs.pop(0))
        for f_ in fs: A(f_)
    dg = [f"v_rcp_f32 v{X2}, v{GV}", f"v_sub_f32 v{X2}, 1.0, v{X2}", f"v_cvt_pk_bf16_f32 v{X2}, v{X2}, 0", f"v_lshlrev_b32 v{X3}, 16, v{X2}",
          f"v_cndmask_b32 v{X2}, v{X2}, v{X3}, {modd}", f"v_cndmask_b32 v{DIAG}, 0, v{X2}, {md0}", f"v_cndmask_b32 v{DIAG+1}, 0, v{X2}, {md1}"]
    sfreq = f"""s_mov_b64 exec, 0x1f
    buffer_load_dword v{SFV}, v{VSF}, {ws}, 0 offen sc0 sc1
    s_mov_b64 exec, -1"""
    interleave([mg(1, h) for h in range(4)], amr + sig, 3)
    interleave([mg(0, h) for h in range(4)], amb(0) + amb(1), 2)
    d1 = den(1)
    A(nm(1, 0))
    for x in amb(2): A(x)
    A(nm(1, 1))
    for x in amb(3): A(x)
    A(sfreq)
    interleave([nm(1, 2), nm(1, 3)] + [nm(0, h) for h in range(4)], d1[:12], 2)
    for x in d1[12:] + num(1, True): A(x)
    A("s_waitcnt lgkmcnt(0)")
    st(7)
    A("s_barrier")
    st(8)
    def rdo(l, st_):
        if st_ == 8: return f"ds_read_b128 {v(OF(l,st_),4)}, v{VLF} offset:{4096+256*l}"
        return f"ds_read_b128 {v(OF(l,st_),4)}, v{VP[st_>>1]} offset:{2048*l+1024*(st_&1)}"
    mm = lambda l: [f"{MF} {v(ACC(l,c),4)}, {v(WOF(st_,c),4)}, {v(OF(l,st_),4)}, {v(ACC(l,c),4) if st_ else '0'}" for st_ in range(9) for c in range(2)]
    def btload(E):
        E(f"""buffer_load_dwordx2 {v(BTF[0],2)}, v{VB0}, {ws}, s{S_BT0} offen {SC}
        buffer_load_dwordx2 {v(BTF[1],2)}, v{VB0}, {ws}, s{S_BT1} offen {SC}
        s_mov_b64 exec, {s(M8A,2)}
        buffer_load_dwordx2 {v(BTF[2],2)}, v{VB8}, {ws}, s{S_BT8} offen {SC}
        s_mov_b64 exec, -1""")
    c1 = ct8(1)
    A(c1[0])
    for st_ in range(9): A(rdo(1, st_))
    d0 = den(0)
    interleave(c1[1:], d0[:8], 4)
    m1 = mm(1)
    n0 = num(0, False)
    st(1, f2=True)
    interleave(m1[:4], d0[8:], 2)
    interleave(m1[4:14], n0, 3)
    st(2, f2=True)
    A(f"s_mov_b64 exec, 0x1f\nv_cmp_ne_u32 vcc, 16, v{SFV}\ns_mov_b64 exec, -1")
    A(f"ds_write_b128 v{VMB}, {v(AC8(1),4)} offset:5632")
    A("s_waitcnt lgkmcnt(0)")
    st(3, f2=True)
    A("s_barrier")
    st(4, f2=True)
    c0 = ct8(0)
    A(c0[0])
    for st_ in range(9): A(rdo(0, st_))
    l_nbt = A0.newlabel("L_nbt")
    A0(f"s_cbranch_vccnz {l_nbt}\ns_mov_b32 s{S_BOK}, 1")
    btload(A0)
    A0.label(l_nbt)
    interleave(c0[1:] + m1[14:], dg, 2)
    st(5, f2=True)
    m0_ = mm(0)
    A(m0_[0]); A(m0_[1])
    A(f"ds_write_b128 v{VMB}, {v(AC8(0),4)} offset:4608")
    A(m0_[2]); A(m0_[3])
    for c in range(2): A(f"ds_write_b128 v{VEW}, {v(ACC(1,c),4)} offset:{1024*c}")
    A(m0_[4]); A(m0_[5])
    A("s_waitcnt lgkmcnt(0)")
    A("s_barrier")
    st(9)
    r8 = [f"ds_read_b128 {v(P8[k],4)}, v{VP[k]} offset:4608" for k in range(4)] + \
         [f"ds_read_b128 {v(P8[4+k],4)}, v{VO[k]} offset:5632" for k in range(4)] + \
         [f"ds_read_b128 {v(EX[c],4)}, v{VER} offset:{1024*c}" for c in range(2)]
    a8 = []
    for (d_, s_) in [(0, 1), (2, 3), (4, 5), (6, 7), (0, 2), (4, 6), (0, 4)]:
        a8 += [f"v_add_f32 v{P8[d_]+r}, v{P8[d_]+r}, v{P8[s_]+r}" for r in range(4)]
    interleave(m0_[6:8], r8, 5)
    interleave(m0_[8:], a8, 3)
    l_bt = A0.newlabel("L_bt")
    A0(f"s_cmp_eq_u32 s{S_BOK}, 1\ns_cbranch_scc1 {l_bt}")
    poll(VSF, SFV, 0x1f, atomic=False)
    btload(A0)
    A0.label(l_bt)
    A("s_waitcnt vmcnt(0)")
    st(10)
    for c in range(2):
        A(f"v_mfma_f32_16x16x16_bf16 {v(EX[c],4)}, {v(BTF[c],2)}, {v(DIAG,2)}, {v(EX[c],4)}")
    A(f"v_mfma_f32_16x16x16_bf16 {v(P8[0],4)}, {v(BTF[2],2)}, {v(DIAG,2)}, {v(P8[0],4)}")
    OUTR = 134
    for c in range(2):
        for x in (0, 2): A(f"v_pk_add_f32 {v(ACC(0,c)+x,2)}, {v(ACC(0,c)+x,2)}, {v(EX[c]+x,2)}")
        A(f"v_cvt_pk_bf16_f32 v{OUTR+2*c}, v{ACC(0,c)}, v{ACC(0,c)+1}")
        A(f"v_cvt_pk_bf16_f32 v{OUTR+2*c+1}, v{ACC(0,c)+2}, v{ACC(0,c)+3}")
    A(f"""buffer_store_dwordx4 {v(OUTR,4)}, v{VOUT}, {s(SOUT,4)}, s{S_O0} offen {OUTB}
    v_cvt_pk_bf16_f32 v{OUTR+4}, v{P8[0]}, v{P8[0]+1}
    v_cvt_pk_bf16_f32 v{OUTR+5}, v{P8[0]+2}, v{P8[0]+3}
    s_mov_b64 exec, {s(M8S,2)}
    buffer_store_dwordx2 {v(OUTR+4,2)}, v{VOUT8}, {s(SOUT,4)}, s{S_O8} offen {OUTB}
    s_mov_b64 exec, -1""")
    st(11, last=True)
    A0("s_endpgm")
```

```python
from asm import *
from auto import Auto
from l1gemm import *
import struct, sys

def opt(name, default):
    for a_ in sys.argv:
        if a_.startswith(f"--{name}="): return a_.split("=", 1)[1]
    return default
TOUCH = int(opt("touch", "1"))
XPOS = int(opt("xpos", "1"))
PKN = int(opt("pkn", "39"))
PRIO = int(opt("prio", "3"))
XS = eval(opt("xs", "[[0,1],[2,3],[4,5],[6],[7]]"))

WOPF = int(opt("wopf", "0"))
PRIOB = int(opt("priob", "2"))
PRIOC = int(opt("prioc", "1"))
PADL = 288
XTP = (PADL + 2048) * 2
TP = 544
SCPB = LMP
PJ_S, PK_S = PJ, 7168
SCA = PB_S + PK_S
XTA = SCA + SCPB
XTB = EM_S + 4 * EMP
assert XTB + 4 * XTP <= 163840 and PK_S + SCPB + XTP <= PJ_S
CNT = CL_S
KP = 2112
FIXP = 68
TAPD = {("2", 0): 8 * 74, ("2", 8): 8 * 80, ("2", 4): 8 * 86, ("2", 12): 8 * 92, ("3", 4): 8 * 98, ("3", 12): 8 * 108}
WT = [(0, 1, -16), (8, 1, -16), (4, 2, -16), (12, 2, -24), (4, 3, -16), (12, 4, -24)]

def wtable():
    out = []
    for (sg, hw, off) in WT:
        for l in range(64):
            r, q = l & 15, l >> 4
            el = [0x3f80 if abs(off + 8 * q + jj - (r - sg - 4)) <= hw else 0 for jj in range(8)]
            out += [el[2 * i] | (el[2 * i + 1] << 16) for i in range(4)]
    return out

def gen_ssm(A0, stamps=False):
    A = Auto(A0)
    S_SG, S_CH, S_SCR, S_XT = 65, 66, 75, 76
    S_K1024 = 77
    S_XR, S_ISB = 82, 83
    def st(idx):
        if stamps:
            A.one("s_waitcnt lgkmcnt(0)")
            stamp(A0, idx, stamps); A.t += 3
    A(f"""s_mul_i32 s{S_SG}, s3, 9
    s_add_u32 s{S_SG}, s{S_SG}, s4
    s_lshl_b32 s{S_CH}, s{S_SG}, 3
    s_add_u32 s{S_CH}, s{S_CH}, s{S_WAVE}
    s_lshl_b32 s{S_T0}, s{S_CH}, 8
    s_lshl_b32 s{S_T1}, s{S_CH}, 1""")
    V_TRd, V_XD, V_BX, V_ZX, V_TAPR, V_TAPW, V_K0W, V_K1W, V_KR, V_L16, V_SCRV, V_CNT, V_XG = range(1, 14)
    X0, X1, X2, X3 = 16, 17, 18, 19
    WC = 20
    ACC = 44
    TF = 76
    AF = 116
    BR = 188
    LF = 44
    HF = 76
    DA, DB, DC = 108, 112, 240
    pool = list(range(116, 196, 4)) + [228, 232, 236]
    def alloc(): return pool.pop(0)
    def free(r): pool.append(r)
    P_LA, P_AI, P_CR, P_CI, P_DT, P_DS = 244, 245, 246, 247, 248, 249
    touch(A0, 4, True)
    A(f"""v_lshl_add_u32 v{X0}, v0, 2, s{S_T0}
    v_mov_b32 v{X1}, s{S_T1}""")
    A0("s_waitcnt lgkmcnt(0)")
    A(f"""global_load_dword v{P_LA}, v{X0}, {s(S_LOGA,2)}
    global_load_ushort v{P_DT}, v{X1}, {s(S_LOGDT,2)}
    global_load_dword v{P_AI}, v{X0}, {s(S_AIM,2)}
    global_load_ushort v{P_DS}, v{X1}, {s(S_DSKIP,2)}
    global_load_dword v{P_CR}, v{X0}, {s(S_CRE,2)}
    global_load_dword v{P_CI}, v{X0}, {s(S_CIM,2)}""")
    kwait(A0, ["x", "ws", "dbg"], stamps)
    if stamps:
        stamp0(A0, stamps)
    if TOUCH: A(f"buffer_load_dword v253, v251, {s(SX,4)}, s9 offen")
    Z4 = alloc()
    A(f"""v_mov_b32 v{Z4}, 0
    v_mov_b32 v{Z4+1}, 0
    v_mov_b32 v{Z4+2}, 0
    v_mov_b32 v{Z4+3}, 0
    v_mov_b32 v{V_CNT}, {CNT}
    ds_write_b128 v{V_CNT}, {v(Z4,4)}
    ds_write_b128 v{V_CNT}, {v(Z4,4)} offset:16
    s_lshl_b32 s{S_T0}, s{S_SG}, 4
    v_mul_u32_u24 v{X2}, {8*1152}, v0
    v_add_u32 v{V_XG}, s{S_T0}, v{X2}
    s_add_u32 s{S_XR}, s4, s{S_WAVE}
    s_and_b32 s{S_XR}, s{S_XR}, 3
    s_lshr_b32 s{S_ISB}, s{S_WAVE}, 2
    s_waitcnt lgkmcnt(0)
    s_barrier""")
    def aonly(fn):
        lab = A0.newlabel("L_na")
        A(f"s_cmp_eq_u32 s{S_ISB}, 0")
        A0(f"s_cbranch_scc0 {lab}")
        fn()
        A0.label(lab)
    XL = 196
    S_XB0, S_XB1 = 86, 87
    def xload(ks, first=False):
        if not ks: return
        def f():
            if first:
                A0(f"s_mul_i32 s{S_XB0}, s{S_XR}, {512*1152}")
                A0(f"s_add_u32 s{S_XB1}, s{S_XB0}, {4*1152}")
            for k in ks:
                A0(f"buffer_load_dwordx4 {v(XL+4*k,4)}, v{V_XG}, {s(SX,4)}, s{S_XB0 if k < 4 else S_XB1} offen offset:{1152*(k%4)}")
        aonly(f)
    def pwait(n):
        l1 = A0.newlabel("L_pw"); l2 = A0.newlabel("L_pw")
        A0(f"""s_cmp_eq_u32 s{S_ISB}, 0
        s_cbranch_scc0 {l1}
        s_waitcnt vmcnt({n + TOUCH})
        s_branch {l2}""")
        A0.label(l1)
        A0(f"s_waitcnt vmcnt({TOUCH})")
        A0.label(l2)
        A.vm = []
    def xpose():
        PL, PH = 84, 85
        def f():
            A0(f"""s_mov_b32 s{PL}, 0x05040100
            s_mov_b32 s{PH}, 0x07060302
            s_lshl_b32 s{S_T3}, s{S_XR}, 10
            s_add_u32 s{S_T3}, s{S_T3}, {XTA + 2*PADL}
            v_add_u32 v{V_XD}, s{S_T3}, v{V_L16}
            v_add_u32 v14, {XTB - XTA}, v{V_XD}
            v_mov_b32 v{X2}, 1
            s_waitcnt vmcnt(0)""")
            for j in range(4):
                for hi in range(2):
                    o = 20 + 4 * ((2 * j + hi) % 4)
                    for k in range(4):
                        A0(f"v_perm_b32 v{o+k}, v{XL+8*k+4+j}, v{XL+8*k+j}, s{PH if hi else PL}")
                    c_ = 2 * j + hi
                    if c_ < 4: A0(f"ds_write_b128 v{V_XD}, {v(o,4)} offset:{c_*PJ_S}")
                    else: A0(f"ds_write_b128 v14, {v(o,4)} offset:{(c_-4)*XTP}")
            A0(f"""s_mov_b64 exec, 1
            ds_add_u32 v{V_CNT}, v{X2} offset:8
            s_mov_b64 exec, -1
            s_waitcnt lgkmcnt(0)""")
        A("s_waitcnt lgkmcnt(0)")
        aonly(f)
        A0("s_getpc_b64 s[78:79]")
        A0.label("L_ssm_pc")
        A(f"""s_add_u32 s78, s78, L_wtab-L_ssm_pc
        s_addc_u32 s79, s79, 0""")
        for i in range(6):
            if i == 4: A("s_add_u32 s78, s78, 4096\ns_addc_u32 s79, s79, 0")
            A(f"global_load_dwordx4 {v(WC+4*i,4)}, v{V_L16}, s[78:79] offset:{1024*(i%4)}")
    A(f"s_cmp_eq_u32 s{S_ISB}, 0")
    lab = A0.newlabel("L_np")
    A0(f"s_setprio {PRIOB}\ns_cbranch_scc0 {lab}\ns_setprio {PRIO}")
    A0.label(lab)
    xload(XS[0], True)
    I16, Q = X0, X1
    A(f"""v_lshlrev_b32 v{V_L16}, 4, v0
    s_and_b32 s{S_T0}, s{S_WAVE}, 3
    s_cmp_eq_u32 s{S_ISB}, 0
    s_cselect_b32 s{S_T1}, {PJ_S - SCPB}, 0
    s_cselect_b32 s{S_SCR}, {SCA}, 0
    s_cselect_b32 s{S_T2}, {PJ_S - XTP}, 0
    s_cselect_b32 s{S_XT}, {XTA - XTB}, 0
    s_add_u32 s{S_T1}, s{S_T1}, {SCPB}
    s_add_u32 s{S_T2}, s{S_T2}, {XTP}
    s_add_u32 s{S_XT}, s{S_XT}, {XTB}
    s_mul_i32 s{S_T1}, s{S_T1}, s{S_T0}
    s_mul_i32 s{S_T2}, s{S_T2}, s{S_T0}
    s_add_u32 s{S_SCR}, s{S_SCR}, s{S_T1}
    s_add_u32 s{S_XT}, s{S_XT}, s{S_T2}
    s_mov_b32 m0, s{S_SCR}
    s_mov_b32 s{S_EK}, 0
    s_mov_b32 s{S_PB}, {PB_S}
    s_mov_b32 s{S_B9}, 0
    s_mov_b32 s{S_CINC}, 0x101
    s_mov_b32 s{S_N1}, 8
    s_mov_b32 s{S_CA}, 0
    s_lshl_b32 s{S_FA}, s{S_SG}, 8
    s_add_u32 s{S_FA}, s{S_FA}, {FL_S}
    v_and_b32 v{I16}, 15, v0
    v_lshrrev_b32 v{Q}, 4, v0
    v_mul_u32_u24 v{V_TRd}, {TP}, v{I16}
    v_lshl_add_u32 v{V_TRd}, v{Q}, 4, v{V_TRd}
    v_add_u32 v{V_TRd}, s{S_SCR}, v{V_TRd}
    v_add_u32 v{V_SCRV}, s{S_SCR}, v{V_L16}""")
    A(f"""v_lshlrev_b32 v{V_BX}, 5, v{I16}
    v_lshl_add_u32 v{V_BX}, v{Q}, 4, v{V_BX}
    s_add_u32 s{S_T0}, s{S_XT}, {2*(PADL-256-16)}
    v_add_u32 v{V_BX}, s{S_T0}, v{V_BX}""")
    A(f"""v_and_b32 v{X2}, 3, v0
    v_bfe_u32 v{X3}, v0, 2, 2
    v_lshl_add_u32 v{V_ZX}, v{X2}, 2, v{X3}
    v_lshlrev_b32 v{V_ZX}, 5, v{V_ZX}
    v_lshl_add_u32 v{V_ZX}, v{Q}, 4, v{V_ZX}
    s_add_u32 s{S_T0}, s{S_XT}, {2*(PADL-24)}
    v_add_u32 v{V_ZX}, s{S_T0}, v{V_ZX}""")
    A(f"""v_sub_u32 v{V_TAPR}, v{X2}, v{X3}
    v_lshlrev_b32 v{V_TAPR}, 3, v{V_TAPR}
    v_sub_u32 v{X2}, 4, v{Q}
    v_and_b32 v{X2}, 3, v{X2}
    v_mul_u32_u24 v{X2}, {KP}, v{X2}
    v_min_u32 v{X3}, 1, v{Q}
    v_lshlrev_b32 v{X3}, 3, v{X3}
    v_sub_u32 v{X2}, v{X2}, v{X3}
    s_add_u32 s{S_T0}, s{S_SCR}, 1024
    v_add3_u32 v{V_TAPR}, v{V_TAPR}, v{X2}, s{S_T0}""")
    A(f"""v_lshrrev_b32 v{X2}, 1, v{Q}
    v_lshrrev_b32 v{X3}, 2, v{I16}
    v_lshl_add_u32 v{X3}, v{X3}, 1, v{X2}
    v_mul_u32_u24 v{X3}, 96, v{X3}
    v_and_b32 v{V_TAPW}, 3, v{I16}
    v_lshl_add_u32 v{X3}, v{V_TAPW}, 4, v{X3}
    v_mul_u32_u24 v{V_TAPW}, 160, v{X2}
    v_lshl_add_u32 v{V_TAPW}, v{I16}, 4, v{V_TAPW}
    v_add_u32 v{V_TAPW}, {2*TAPD[('3',4)] - 2*TAPD[('2',0)] - 128}, v{V_TAPW}
    v_cmp_gt_u32 vcc, 8, v{I16}
    v_cndmask_b32 v{V_TAPW}, v{V_TAPW}, v{X3}, vcc
    v_and_b32 v{X3}, 1, v{Q}
    v_lshl_add_u32 v{V_TAPW}, v{X3}, 3, v{V_TAPW}
    s_add_u32 s{S_T0}, s{S_SCR}, {2*TAPD[('2',0)]}
    v_add_u32 v{V_TAPW}, s{S_T0}, v{V_TAPW}""")
    A(f"""v_and_b32 v{V_K1W}, 7, v{I16}
    v_lshlrev_b32 v{V_K1W}, 1, v{V_K1W}
    v_lshrrev_b32 v{V_K0W}, 3, v{I16}
    v_add_u32 v{V_K1W}, v{V_K1W}, v{V_K0W}
    v_lshlrev_b32 v{V_K1W}, 4, v{V_K1W}
    v_lshl_add_u32 v{V_K0W}, v{X2}, 8, v{V_K1W}
    v_lshl_add_u32 v{V_K0W}, v{X3}, 3, v{V_K0W}
    s_add_u32 s{S_T0}, s{S_SCR}, 1080
    v_sub_u32 v{V_K0W}, s{S_T0}, v{V_K0W}
    v_lshl_add_u32 v{V_K1W}, v{Q}, 8, v{V_K1W}
    s_add_u32 s{S_T0}, s{S_SCR}, {2*278}
    v_sub_u32 v{V_K1W}, s{S_T0}, v{V_K1W}""")
    A(f"""v_sub_u32 v{X2}, 15, v{I16}
    v_and_b32 v{X3}, 3, v{X2}
    v_mul_u32_u24 v{V_KR}, {KP}, v{X3}
    v_lshrrev_b32 v{X2}, 2, v{X2}
    v_lshl_add_u32 v{V_KR}, v{X2}, 3, v{V_KR}
    v_lshl_add_u32 v{V_KR}, v{Q}, 4, v{V_KR}
    v_add_u32 v{V_KR}, s{S_SCR}, v{V_KR}""")
    A(f"""v_add_u32 v{X2}, s{S_XT}, v{V_L16}
    s_mov_b32 exec_hi, 0xf
    ds_write_b128 v{X2}, {v(Z4,4)}
    s_mov_b64 exec, -1""")
    st(1)
    pwait(len(XS[0]))
    st(10)
    INV2PI = "0.15915494"
    zr, zi = alloc(), alloc()
    DT = zr + 2
    A(f"""v_lshlrev_b32 v{zr}, 16, v{P_LA}
    v_and_b32 v{zr+1}, 0xffff0000, v{P_LA}
    v_lshlrev_b32 v{DT}, 16, v{P_DT}
    v_mul_f32 v{zr}, s{S_L2E}, v{zr}
    v_mul_f32 v{zr+1}, s{S_L2E}, v{zr+1}
    v_mul_f32 v{DT}, s{S_L2E}, v{DT}
    v_exp_f32 v{zr}, v{zr}
    v_exp_f32 v{zr+1}, v{zr+1}
    v_exp_f32 v{DT}, v{DT}
    v_lshlrev_b32 v{zi}, 16, v{P_AI}
    v_and_b32 v{zi+1}, 0xffff0000, v{P_AI}
    v_cvt_pk_bf16_f32 v{zr+1}, v{zr}, v{zr+1}
    v_cvt_pk_bf16_f32 v{DT}, v{DT}, v{DT}
    v_lshlrev_b32 v{zr}, 16, v{zr+1}
    v_and_b32 v{zr+1}, 0xffff0000, v{zr+1}
    v_and_b32 v{DT}, 0xffff0000, v{DT}
    v_mul_f32 v{zr}, v{zr}, v{DT}
    v_mul_f32 v{zr+1}, v{zr+1}, v{DT}
    v_mul_f32 v{zi}, v{zi}, v{DT}
    v_mul_f32 v{zi+1}, v{zi+1}, v{DT}
    v_mul_f32 v{zr}, s{S_L2E}, v{zr}
    v_mul_f32 v{zr+1}, s{S_L2E}, v{zr+1}
    v_mul_f32 v{zi}, {INV2PI}, v{zi}
    v_mul_f32 v{zi+1}, {INV2PI}, v{zi+1}
    v_add_f32 v{DT}, v{DT}, v{DT}""")
    def direct(p):
        e = alloc(); t = alloc()
        pf = struct.unpack("<I", struct.pack("<f", float(p)))[0]
        for x in range(2):
            A(f"v_mul_f32 v{t+x}, {pf:#x}, v{zr+x}")
            A(f"v_mul_f32 v{t+2+x}, {pf:#x}, v{zi+x}")
        for x in range(2):
            A(f"v_exp_f32 v{t+x}, -v{t+x}")
            A(f"v_fract_f32 v{t+2+x}, v{t+2+x}")
        for x in range(2):
            A(f"v_cos_f32 v{e+2*x}, v{t+2+x}")
            A(f"v_sin_f32 v{e+2*x+1}, v{t+2+x}")
        for x in range(2):
            A(f"v_mul_f32 v{e+2*x}, v{t+x}, v{e+2*x}")
            A(f"v_mul_f32 v{e+2*x+1}, v{t+x}, v{e+2*x+1}")
        free(t)
        return e
    pend = []
    def drain(stage):
        if not pend: return
        if stage == 0:
            for x in pend[0][0]: A(x)
            pend[0] = ([], pend[0][1])
        else:
            c, w_ = pend.pop(0)
            for x in c: A(x)
            for x in w_: A(x)
    def flush_puts():
        while pend: drain(1)
    ncm = [0]
    def cmul(a_, b_):
        d = alloc()
        ncm[0] += 1
        if ncm[0] <= PKN:
            for x in (0, 2): A(f"v_pk_mul_f32 {v(d+x,2)}, {v(a_+x,2)}, {v(b_+x,2)} op_sel:[1,1] op_sel_hi:[1,0]")
            drain(0)
            for x in (0, 2): A(f"v_pk_fma_f32 {v(d+x,2)}, {v(a_+x,2)}, {v(b_+x,2)}, {v(d+x,2)} op_sel:[0,0,0] op_sel_hi:[0,1,1] neg_lo:[0,0,1]")
            drain(1)
        else:
            for x in (0, 2): A(f"v_mul_f32 v{d+x}, v{a_+x}, v{b_+x}")
            for x in (0, 2): A(f"v_mul_f32 v{d+x+1}, v{a_+x+1}, v{b_+x}")
            drain(0)
            for x in (0, 2): A(f"v_fma_f32 v{d+x}, -v{a_+x+1}, v{b_+x+1}, v{d+x}")
            for x in (0, 2): A(f"v_fmac_f32 v{d+x+1}, v{a_+x}, v{b_+x+1}")
            drain(1)
        return d
    wtmp = [alloc(), alloc()]
    wk = [0]
    def wr(w, row):
        return [f"ds_write_addtid_b32 v{w} offset:{row*TP}", f"ds_write_addtid_b32 v{w+1} offset:{row*TP+256}"]
    def put(e, row, neg=False):
        w = wtmp[(wk[0] >> 1) & 1] + 2 * (wk[0] & 1); wk[0] += 1
        n = "-" if neg else ""
        while len(pend) >= 2: drain(1)
        pend.append(([f"v_cvt_pk_bf16_f32 v{w}, v{e}, {n}v{e+1}", f"v_cvt_pk_bf16_f32 v{w+1}, v{e+2}, {n}v{e+3}"], wr(w, row)))
    def rdfr(base):
        flush_puts()
        for ks in range(8):
            A(f"ds_read_b128 {v(base+4*ks,4)}, v{V_TRd} offset:{64*ks}")
    def mm(D, swap):
        for ks in range(8):
            a_, b_ = (LF, HF) if swap else (HF, LF)
            A(f"v_mfma_f32_16x16x32_bf16 {v(D,4)}, {v(a_+4*ks,4)}, {v(b_+4*ks,4)}, {'0' if ks == 0 else v(D,4)}")
    R8 = direct(8)
    L = alloc()
    A(f"""v_lshlrev_b32 v{L}, 16, v{P_CR}
    v_lshlrev_b32 v{L+1}, 16, v{P_CI}
    v_and_b32 v{L+2}, 0xffff0000, v{P_CR}
    v_and_b32 v{L+3}, 0xffff0000, v{P_CI}""")
    for x in range(4): A(f"v_mul_f32 v{L+x}, v{DT}, v{L+x}")
    for j in range(16):
        if j == 2: xload(XS[1])
        if j == 10: xload(XS[2])
        put(L, (j >> 1) + 8 * (j & 1), neg=True)
        if j < 15:
            n_ = cmul(L, R8); free(L); L = n_
    free(L)
    rdfr(LF)
    st(2)
    def wopf():
        lab = A0.newlabel("L_nb")
        A(f"s_cmp_eq_u32 s{S_ISB}, 0")
        A0(f"s_cbranch_scc1 {lab}")
        srd(A0, SW, S_WO, S_WO + 1, 576 * 1152)
        A0(f"""s_lshl_b32 s{S_T0}, s4, 2
        s_add_u32 s{S_T0}, s{S_T0}, s{S_WAVE}
        s_sub_u32 s{S_T0}, s{S_T0}, 4
        s_lshl_b32 s{S_T0}, s{S_T0}, 14
        v_lshlrev_b32 v14, 6, v0""")
        for k in range(4):
            A0(f"buffer_load_dword v15, v14, {s(SW,4)}, s{S_T0} offen")
            if k < 3: A0(f"s_add_u32 s{S_T0}, s{S_T0}, 4096")
        A0.label(lab)
    if WOPF == 1: wopf()
    xload(XS[3])
    E1 = direct(1)
    G1 = direct(128)
    A(f"v_mov_b32 v{X2}, 0x3f80")
    A(f"ds_write_addtid_b32 v{X2}\nds_write_addtid_b32 v{X2} offset:256")
    put(G1, 8)
    H = {1: E1, 8: R8}
    for i in range(1, 8):
        if i == 2: xload(XS[4])
        if i > 1: H[i] = cmul(H[i-1], E1)
        put(H[i], i)
        t = cmul(H[i], G1); put(t, 8 + i); free(t)
        if i - 1 in (3, 5): free(H[i-1])
    free(H[7])
    rdfr(HF)
    if XPOS == 2: xpose()
    if WOPF == 2: wopf()
    G2 = cmul(G1, G1); G3 = cmul(G2, G1); G4 = cmul(G3, G1)
    put(G2, 8)
    for gi, G in enumerate((G2, G3)):
        for k, i in enumerate((2, 4, 6, 8)):
            t = cmul(H[i], G); put(t, 4 * gi + k); free(t)
        if gi == 0: mm(DA, False)
    rdfr(HF)
    free(G2); free(G3); free(H[2]); free(H[6]); free(E1)
    if XPOS == 0: xpose()
    P = cmul(G4, H[4]); Qv = cmul(G4, R8)
    free(G4); free(H[4]); free(R8)
    for h in range(12):
        if h < 4:
            put(P, h)
            if h < 3: n_ = cmul(P, G1); free(P); P = n_
        put(Qv, 4 + h)
        if h < 11: n_ = cmul(Qv, G1); free(Qv); Qv = n_
        if h == 2: mm(DB, False)
    rdfr(HF)
    st(3)
    A(f"ds_write_b128 v{V_SCRV}, {v(Z4,4)}")
    A(f"ds_write_b128 v{V_SCRV}, {v(Z4,4)} offset:1024")
    PA, PB, PC = 228, 232, 236
    A(f"""v_lshlrev_b32 v{X2}, 16, v{P_DS}
    s_mov_b64 exec, 1
    v_add_f32 v{DA}, v{DA}, v{X2}
    s_mov_b64 exec, -1
    v_cvt_pk_bf16_f32 v{PA}, v{DA+3}, v{DA+2}
    v_cvt_pk_bf16_f32 v{PA+1}, v{DA+1}, v{DA}
    v_cvt_pk_bf16_f32 v{PB}, v{DB+3}, v{DB+3}
    v_cvt_pk_bf16_f32 v{PB+1}, v{DB+3}, v{DB+2}
    v_cvt_pk_bf16_f32 v{PB+2}, v{DB+1}, v{DB+1}
    v_cvt_pk_bf16_f32 v{PB+3}, v{DB+1}, v{DB}
    v_cvt_pk_bf16_f32 v{PA+2}, v{DB}, v{DB}
    v_mov_b32 v{X3}, s{S_SCR}""")
    mm(DC, True)
    A(f"""ds_write_b64 v{V_K0W}, {v(PA,2)}
    s_mov_b32 exec_hi, 0
    ds_write2_b32 v{V_K1W}, v{PB}, v{PB+1} offset0:0 offset1:1
    ds_write2_b32 v{V_K1W}, v{PB+2}, v{PB+3} offset0:2 offset1:3
    s_mov_b32 exec_lo, 0x80000000
    ds_write_b16 v{X3}, v{PB} offset:58
    s_mov_b32 exec_lo, 0
    s_mov_b32 exec_hi, 1
    ds_write_b32 v{X3}, v{PA+2} offset:572
    s_mov_b64 exec, -1""")
    if XPOS == 1: xpose()
    st(8)
    A(f"""v_readlane_b32 s{S_K1024}, v{DC+3}, 55
    s_mov_b32 exec_lo, 0
    s_mov_b32 exec_hi, {1 << (55-32):#x}
    v_mov_b32 v{DC+3}, 0
    s_mov_b64 exec, -1
    v_cvt_pk_bf16_f32 v{PC}, v{DC}, v{DC+1}
    v_cvt_pk_bf16_f32 v{PC+1}, v{DC+2}, v{DC+3}
    v_mov_b32 v{X3}, s{S_K1024}
    v_cvt_pk_bf16_f32 v{X3}, v{X3}, v{X3}
    v_lshl_add_u32 v{X2}, v0, 1, s{S_SCR}
    ds_write_b64 v{V_TAPW}, {v(PC,2)}
    s_mov_b64 exec, 0x7f
    ds_write_b16 v{X2}, v{X3} offset:{16*FIXP+38}
    s_mov_b64 exec, -1""")
    for rd in range(2):
        E = 188 + 8 * rd
        A(f"ds_read_b128 {v(E,4)}, v{V_SCRV} offset:{1024*rd}")
        A(f"ds_read_b64 {v(E+4,2)}, v{V_SCRV} offset:{1024*rd+16}")
    for rd in range(2):
        E = 188 + 8 * rd
        O = 204 + 12 * rd
        for i in range(4): A(f"v_alignbit_b32 v{O+i}, v{E+i+1}, v{E+i}, 16")
        A(f"ds_write_b128 v{V_SCRV}, {v(O,4)} offset:{KP + 1024*rd}")
        for i in range(4): A(f"v_mov_b32 v{O+4+i}, v{E+i+1}")
        A(f"ds_write_b128 v{V_SCRV}, {v(O+4,4)} offset:{2*KP + 1024*rd}")
        for i in range(4): A(f"v_alignbit_b32 v{O+8+i}, v{E+i+2}, v{E+i+1}, 16")
        A(f"ds_write_b128 v{V_SCRV}, {v(O+8,4)} offset:{3*KP + 1024*rd}")
    st(9)
    def afrag(w):
        off = 16 * (64 - 4 * w) if w < 17 else 16 * FIXP
        A(f"ds_read_b64 {v(AF+4*w,2)}, v{V_KR} offset:{off}")
        A(f"ds_read_b64 {v(AF+4*w+2,2)}, v{V_KR} offset:{off+8}")
    for w in (8, 16, 7, 15, 6, 14, 5, 13, 4, 12, 3, 11, 2, 10, 1, 9, 0, 17): afrag(w)
    tf = {}
    k = 0
    for pr in range(2):
        for D_ in (2, 3, 4):
            tf[("2", pr, D_)] = TF + 4 * k; k += 1
            for u in range(2):
                sg = (0, 8)[u] if pr == 0 else (4, 12)[u]
                A(f"ds_read_b64_tr_b16 {v(tf[('2',pr,D_)]+2*u,2)}, v{V_TAPR} offset:{2*TAPD[('2',sg)] - 1024 + 32*(D_-2)}")
    for D_ in (4, 5, 6, 7):
        tf[("3", 0, D_)] = TF + 4 * k; k += 1
        for u in range(2):
            A(f"ds_read_b64_tr_b16 {v(tf[('3',0,D_)]+2*u,2)}, v{V_TAPR} offset:{2*TAPD[('3',(4,12)[u])] - 1024 + 32*(D_-4)}")
    st(13)
    lp = A0.newlabel("L_xw"); le = A0.newlabel("L_xe")
    A0(f"s_mov_b32 s{S_T1}, 0")
    l0 = A0.newlabel("L_x0")
    A0(f"s_branch {l0}")
    A0.label(lp)
    A0("s_sleep 2")
    A0.label(l0)
    A0(f"""ds_read_b32 v{X2}, v{V_CNT} offset:8
    s_add_u32 s{S_T1}, s{S_T1}, 1
    s_cmp_gt_u32 s{S_T1}, {SPIN}
    s_cbranch_scc1 {le}
    s_waitcnt lgkmcnt(0)
    v_readfirstlane_b32 s{S_T0}, v{X2}
    s_cmp_lt_u32 s{S_T0}, 4
    s_cbranch_scc1 {lp}""")
    A0.label(le)
    A.ds = []
    A0(f"s_setprio {PRIOC}")
    st(4)
    first = set()
    def accm(i, a_, b_):
        c = v(ACC + 4 * i, 4) if i in first else "0"
        first.add(i)
        return f"v_mfma_f32_16x16x32_bf16 {v(ACC+4*i,4)}, {v(a_,4)}, {v(b_,4)}, {c}"
    items = []
    for s_ in range(-8, 57):
        ms = [(i, AF + 4 * (8 * i - s_)) for i in range(8) if 0 <= 8 * i - s_ <= 16]
        items.append((64 * (s_ + 8), ms))
    for i in range(3, 8):
        items.append((2 * (256 * i - 760), [(i, AF + 68)]))
    NR, LA = 6, 5
    ZX = [212, 216]
    ZD = 220
    ZA = 244
    zsteps = []
    for cb in range(6):
        nz = 6 if cb < 4 else 4
        rd = [f"ds_read_b128 {v(ZX[0],4)}, v{V_ZX} offset:{512*cb+16}", f"ds_read_b128 {v(ZX[1],4)}, v{V_ZX} offset:{512*cb}"]
        zm = [f"v_mfma_f32_16x16x32_bf16 {v(ZD+4*k,4)}, {v(ZX[0] if WT[k][2] == -16 else ZX[1],4)}, {v(WC+4*k,4)}, 0" for k in range(nz)]
        za = [ZA, ZA + 4, X0]
        cv = []
        for k in range(nz):
            cv.append(f"v_cvt_pk_bf16_f32 v{za[k>>1]+2*(k&1)}, v{ZD+4*k}, v{ZD+4*k+1}")
            cv.append(f"v_cvt_pk_bf16_f32 v{za[k>>1]+2*(k&1)+1}, v{ZD+4*k+2}, v{ZD+4*k+3}")
        pm = []
        for pr in range(2):
            for D_ in (2, 3, 4):
                if cb + D_ <= 7: pm.append((cb + D_, za[pr], tf[("2", pr, D_)]))
        if cb < 4:
            for D_ in (4, 5, 6, 7):
                if cb + D_ <= 7: pm.append((cb + D_, za[2], tf[("3", 0, D_)]))
        zsteps.append((rd, zm, cv, pm))
    PER = 11
    for j in range(min(LA, len(items))):
        A(f"ds_read_b128 {v(BR+4*(j%NR),4)}, v{V_BX} offset:{items[j][0]}")
    pend_cv = []
    for j, (off, ms) in enumerate(items):
        if j == len(items) - 12:
            A(f"v_mov_b32 v13, 0\nbuffer_load_dword v14, v13, {s(SDBG,4)}, 0 offen sc0 sc1\nbuffer_load_dword v15, v13, {s(SDBG,4)}, 0 offen offset:128 sc0 sc1")
        cb, ph = divmod(j, PER)
        if cb < 6:
            rd, zm, cv, pm = zsteps[cb]
            if ph == 0:
                for x in rd: A(x)
            if ph == 3:
                for x in zm: A(x)
            if ph == 5: pend_cv = list(cv)
            if ph == 10:
                for x in pend_cv: A(x)
                pend_cv = []
                for (i, a_, b_) in pm: A(accm(i, a_, b_))
        for n_, (i, a_) in enumerate(ms):
            A(accm(i, a_, BR + 4 * (j % NR)))
            if n_ == 0 and j + LA < len(items):
                A(f"ds_read_b128 {v(BR+4*((j+LA)%NR),4)}, v{V_BX} offset:{items[j+LA][0]}")
            for _ in range(2 if n_ else 1):
                if pend_cv: A(pend_cv.pop(0))
    st(5)
    TBP = 4608
    A(f"""s_and_b32 s{S_T0}, s{S_WAVE}, 3
    s_cmp_eq_u32 s{S_ISB}, 0
    s_cselect_b32 s{S_T1}, {EM_S - (XTB + 576)}, 0
    s_add_u32 s{S_T1}, s{S_T1}, {XTB + 576}
    s_mul_i32 s{S_T2}, s{S_T0}, {TBP}
    s_add_u32 s{S_T2}, s{S_T2}, s{S_T1}
    v_lshrrev_b32 v1, 4, v0
    v_lshlrev_b32 v1, 6, v1
    v_xor_b32 v1, v1, v{V_L16}
    v_add_u32 v1, s{S_T2}, v1
    v_mov_b32 v2, 1
    s_lshl_b32 s{S_T3}, s{S_ISB}, 2
    v_add_u32 v3, s{S_T3}, v{V_CNT}""")
    for i2 in range(4):
        o = BR + 4 * i2
        for x in range(4):
            A(f"v_cvt_pk_bf16_f32 v{o+x}, v{ACC+8*i2+2*x}, v{ACC+8*i2+2*x+1}")
        A(f"ds_write_b128 v1, {v(o,4)} offset:{1024*i2}")
    A(f"""s_mov_b64 exec, 1
    ds_add_u32 v3, v2 offset:16
    s_mov_b64 exec, -1
    v_and_b32 v4, 1, v0
    v_mul_u32_u24 v4, {2*TBP}, v4
    v_bfe_u32 v5, v0, 1, 2
    v_lshl_add_u32 v4, v5, 8, v4
    v_lshlrev_b32 v5, 2, v5
    v_lshrrev_b32 v6, 3, v0
    v_xor_b32 v5, v5, v6
    v_xor_b32 v6, 8, v5
    s_lshl_b32 s{S_T2}, s{S_T0}, 10
    s_add_u32 s{S_T2}, s{S_T2}, s{S_T1}
    v_add_u32 v4, s{S_T2}, v4
    v_lshl_add_u32 v5, v5, 4, v4
    v_lshl_add_u32 v6, v6, 4, v4
    s_lshl_b32 s{S_T0}, s{S_CH}, 12
    s_add_u32 s{S_T0}, s{S_T0}, {WS_BT}
    s_mov_b32 s{S_T1}, 0""")
    A0("s_setprio 0")
    rdy_wait(A0, 13, 14, S_T1, S_T2)
    rdy_wait(A0, 13, 15, S_T1, S_T2, off=128)
    A.vm = []
    def f():
        A0(f"""s_bfe_u32 s{S_T1}, s2, 0x10002
        s_lshl_b32 s{S_T1}, s{S_T1}, 4
        s_lshr_b32 s{S_T2}, s2, 7
        s_lshl_b32 s{S_T2}, s{S_T2}, 3
        s_add_u32 s{S_T1}, s{S_T1}, s{S_T2}
        s_add_u32 s{S_T1}, s{S_T1}, s{S_WAVE}
        s_mul_i32 s{S_T1}, s{S_T1}, {WPU}
        s_add_u32 s{S_T1}, s{S_T1}, {WS_WP + 4*WPU}
        s_sub_u32 s{S_T2}, s{S_SCR}, {PK_S}""")
        wp_dma(A0, S_T2, S_T1, S_T3, V_L16)
    aonly(f)
    A0(f"s_mov_b32 s{S_T1}, 0")
    lp = A0.newlabel("L_tw"); le = A0.newlabel("L_te")
    A0.label(lp)
    A0(f"""ds_read_b32 v2, v3 offset:16
    s_add_u32 s{S_T1}, s{S_T1}, 1
    s_cmp_gt_u32 s{S_T1}, {SPIN}
    s_cbranch_scc1 {le}
    s_waitcnt lgkmcnt(0)
    v_readfirstlane_b32 s{S_T2}, v2
    s_cmp_ge_u32 s{S_T2}, 4
    s_cbranch_scc1 {le}
    s_sleep 1
    s_branch {lp}""")
    A0.label(le)
    A.ds = []
    for s_ in range(4):
        for x in range(2):
            A(f"ds_read_b64 {v(44+4*s_+2*x,2)}, v{5+(s_&1)} offset:{x*TBP + 8*(s_>>1)}")
    for s_ in range(4):
        A(f"buffer_store_dwordx4 {v(44+4*s_,4)}, v{V_L16}, {s(SWS,4)}, s{S_T0} offen offset:{1024*s_} sc0 sc1")
    st(6)
    A("s_nop 4")
    A("s_branch L_p2")

def gen_wtab(A):
    A.raw(".p2align 8")
    A.label("L_wtab")
    t = wtable()
    for i in range(0, len(t), 8):
        A.raw("  .long " + ", ".join(f"{x:#010x}" for x in t[i:i+8]))
```

```python
from asm import *
from auto import Auto
import sys
NOMFMA = '--nomfma' in sys.argv
NODMA = '--nodma' in sys.argv
LOOK = int([a for a in sys.argv if a.startswith('--look=')][0][7:]) if any(a.startswith('--look=') for a in sys.argv) else 3
LBAR = int([a for a in sys.argv if a.startswith('--lbar=')][0][7:]) if any(a.startswith('--lbar=') for a in sys.argv) else None

AUXSLEEP = int([a for a in sys.argv if a.startswith('--auxs=')][0][7:]) if any(a.startswith('--auxs=') for a in sys.argv) else 16
LATEW = '--earlyw' not in sys.argv
UNR = int([a for a in sys.argv if a.startswith('--unr=')][0][6:]) if any(a.startswith('--unr=') for a in sys.argv) else 9
WS_PQ = 0
WS_KVQ = 0x240000
WS_G = 0x250000
WS_BT = 0x260000
WS_END = 0x4A0000
WS_STAMP = 0x500000
WS_WP = 0x600000
WPU = 20736
WS_SIZE = 0x700000

S_X, S_W, S_WO, S_LOGA, S_AIM, S_CRE, S_CIM = 16, 18, 20, 24, 26, 28, 30
S_LOGDT, S_DSKIP, S_GATE, S_OUT, S_DBG, S_WS = 32, 34, 36, 38, 40, 42
SX, SW, SWS, SDBG, SG = 44, 48, 52, 56, 60
S_WAVE, S_RB, S_CG = 64, 65, 66
S_T0, S_T1, S_T2, S_T3 = 67, 68, 69, 70
S_ROT = 71
S_L2E = 73
S_EPS = 74
S_ST, S_SLOT, S_CNT, S_SX, S_SW, S_GB = 75, 76, 77, 78, 79, 82
S_MASK = 84

KV_X, KV_RD, KV_LZ = 4096, 4864, 5376
FL = 0x4A0000
NREP = 16
LGF = 8
QR = 0
FL_KV, FL_Q, FL_S = FL, FL + (8 * NREP << LGF), FL + ((8 * NREP + (192 << QR)) << LGF)
NFLAG = 8 * NREP + (192 << QR) + 72
S_PB, S_EK, S_N1, S_CA, S_FA, S_B9, S_CINC = 96, 97, 98, 99, 100, 101, 91
EMP, LMP = 6656, 8672
PJ = 20736
PB_G = 41024
CL_G = PB_G - 64
PB_S = 4 * LMP + 64
CL_S = PB_S - 64
EM_S = PB_S + 4 * PJ
STGA, STGD = 151552, 6144
assert PB_G + 4 * PJ + 4 * EMP <= STGA
SPIN = 0x2000
LOG2E = 0x3FB8AA3B
EPS = 0x358637BD
XB = 16384

def stamp(A, idx, stamps, last=None, srd_=None):
    if not stamps: return
    if last is None: last = idx == 6
    A(f"""s_memtime s[80:81]
    s_waitcnt lgkmcnt(0)
    v_writelane_b32 v255, s80, {idx}""")
    if last:
        A(f"""s_memrealtime s[80:81]
        s_waitcnt lgkmcnt(0)
        v_writelane_b32 v255, s80, 15
        s_mov_b64 exec, 0xffff
        buffer_store_dword v255, v254, {s(srd_ if srd_ else SWS,4)}, 0 offen
        s_mov_b64 exec, -1""")

def kwait(A, which, stamps):
    A("s_waitcnt lgkmcnt(0)")
    tab = {"x": (SX, S_X, 2048*1152), "w": (SW, S_W, 576*3456), "ws": (SWS, S_WS, WS_SIZE), "dbg": (SDBG, S_DBG, 256), "g": (SG, S_GATE, 1152)}
    for w in which: srd(A, tab[w][0], tab[w][1], tab[w][1] + 1, tab[w][2])

def stamp0(A, stamps):
    if not stamps: return
    srd(A, SWS, S_WS, S_WS + 1, WS_SIZE)
    A(f"""s_lshl_b32 s7, s2, 3
    s_add_u32 s7, s7, s{S_WAVE}
    s_lshl_b32 s7, s7, 6
    s_add_u32 s7, s7, {WS_STAMP}
    v_lshl_add_u32 v254, v0, 2, s7
    v_mov_b32 v255, 0
    v_writelane_b32 v255, s92, 0
    v_writelane_b32 v255, s94, 14""")

def touch(A, s_idx, ssm=False):
    if ssm:
        A(f"""s_mul_i32 s9, s{S_WAVE}, 9
        s_add_u32 s9, s9, s{s_idx}
        s_add_u32 s9, s9, 88""")
    else:
        A(f"""s_lshl_b32 s9, s{s_idx}, 2
        s_add_u32 s9, s9, s{S_WAVE}
        s_sub_u32 s9, s9, 40""")
    A(f"""s_mul_i32 s9, s9, {16*1152}
    s_mul_i32 s8, s3, 144
    s_add_u32 s9, s9, s8
    v_lshrrev_b32 v251, 2, v0
    v_mul_u32_u24 v251, 1152, v251
    v_and_b32 v252, 3, v0
    v_lshlrev_b32 v252, 6, v252
    v_min_u32 v252, 140, v252
    v_add_u32 v251, v251, v252""")

def phi(A, regs, tmp, oop=False):
    n = len(regs)
    for i in range(0, n, 2):
        assert regs[i+1] == regs[i] + 1 and regs[i] % 2 == 0 and tmp[i] % 2 == 0
        A(f"v_pk_fma_f32 {v(tmp[i],2)}, {v(regs[i],2)}, s[72:73], s[72:73] op_sel:[0,1,1] op_sel_hi:[1,1,1] neg_lo:[0,0,1] neg_hi:[0,0,1]")
    for i in range(n):
        A(f"v_exp_f32 v{tmp[i]}, v{tmp[i]} clamp")
    for i in range(n):
        A(f"v_max_f32 v{(tmp if oop else regs)[i]}, v{regs[i]}, v{tmp[i]}")
    if oop: regs = tmp
    for i in range(0, n, 2):
        A(f"v_pk_add_f32 {v(regs[i],2)}, {v(regs[i],2)}, s[74:75] op_sel:[0,0] op_sel_hi:[1,0]")

def params(typ):
    kv = typ == "kv"
    PITCH = 288 if kv else 384
    STG = XB + 64 * PITCH
    return kv, PITCH, STG

GATE_LDS = 4 * (XB + 64 * 288)

def gen_compute(A, typ, stamps=False):
    kv, PITCH, STG = params(typ)
    NT = 5 if kv else 6
    L = LOOK
    RING = 5 if kv else 6
    V_ACC = 0
    V_A = V_ACC + 4 * NT * 4
    V_B = V_A + 32
    V_AD = V_B + RING * 4
    V_AA = V_AD
    V_TR = V_AD + 2
    V_AAc = V_AD + 6
    V_TRc = V_AD + 8
    V_LANE = V_AD + 12
    V_T = V_AD + 13
    V_AO = V_T + 4
    V_FL = V_T + (4 if kv else 6)
    V_FREE = V_FL + 2
    acc = lambda rt, t: V_ACC + (rt * NT + t) * 4
    areg = lambda ks, rt: V_A + (ks * 4 + rt) * 4
    A(f"""s_getpc_b64 s[12:13]""")
    lab = A.newlabel("L_pcc")
    A.label(lab)
    A(f"""s_sub_u32 s12, s12, {lab}-L_pc0
    s_subb_u32 s13, s13, 0
    v_add_u32 v2, 32768, v2
    v_min_u32 v2, L_code_end-L_pc0-8, v2
    global_load_dword v253, v2, s[12:13]""")
    kwait(A, ["ws", "dbg"], stamps)
    stamp0(A, stamps)
    A(f"s_mov_b32 s{S_EPS}, {EPS:#x}")
    A(f"v_mov_b32 v{V_LANE}, v0")
    A(f"""s_lshr_b32 s{S_T0}, s{S_WAVE}, 1
    s_and_b32 s{S_T1}, s{S_WAVE}, 1""")
    i_, q, rp, cc = V_T, V_T + 1, V_T + 2, V_T + 3
    A(f"""v_and_b32 v{i_}, 15, v{V_LANE}
    v_lshrrev_b32 v{q}, 4, v{V_LANE}
    v_bfe_u32 v{rp}, v{V_LANE}, 2, 2
    v_and_b32 v{cc}, 3, v{V_LANE}
    s_lshl_b32 s{S_T2}, s{S_T0}, 13
    v_lshrrev_b32 v{V_AAc}, 1, v{i_}
    v_xor_b32 v{V_AAc}, v{V_AAc}, v{q}
    v_lshlrev_b32 v{V_AAc}, 4, v{V_AAc}
    v_lshl_add_u32 v{V_AAc}, v{i_}, 7, v{V_AAc}
    v_add_u32 v{V_AAc}, s{S_T2}, v{V_AAc}""")
    if not kv:
        A(f"""s_lshl_b32 s{S_T2}, s{S_CG}, 1
        s_add_u32 s{S_T2}, s{S_T2}, s{S_T1}
        s_cmp_ge_u32 s{S_T2}, 3
        s_cselect_b32 s{S_T2}, 2048, 0
        v_add_u32 v{V_AAc}, s{S_T2}, v{V_AAc}""")
    A(f"v_mov_b32 v{V_FL}, 0\nv_mov_b32 v{V_FL+1}, 0")
    A(f"v_xor_b32 v{V_AAc+1}, 64, v{V_AAc}")
    if kv:
        A(f"""s_mul_i32 s{S_T2}, s{S_T1}, 72
        s_add_u32 s{S_T2}, s{S_T2}, {XB}
        v_lshl_add_u32 v{i_}, v{q}, 3, v{rp}
        v_and_b32 v{V_TRc+1}, 1, v{q}
        v_lshlrev_b32 v{V_TRc+1}, 2, v{V_TRc+1}
        v_xor_b32 v{V_TRc}, v{i_}, v{V_TRc+1}
        v_xor_b32 v{V_TRc+1}, 4, v{V_TRc}
        v_mul_u32_u24 v{V_TRc}, 288, v{V_TRc}
        v_mul_u32_u24 v{V_TRc+1}, 288, v{V_TRc+1}
        v_add_u32 v{V_TRc}, s{S_T2}, v{V_TRc}
        v_add_u32 v{V_TRc+1}, s{S_T2}, v{V_TRc+1}
        v_mul_u32_u24 v{rp}, 144, v{cc}
        v_add_u32 v{rp}, 32, v{rp}
        v_add_u32 v{V_TRc+2}, v{V_TRc}, v{rp}
        v_add_u32 v{V_TRc+3}, v{V_TRc+1}, v{rp}
        v_lshl_add_u32 v{V_TRc}, v{cc}, 3, v{V_TRc}
        v_lshl_add_u32 v{V_TRc+1}, v{cc}, 3, v{V_TRc+1}
        v_cmp_lt_u32 {s(S_MASK,2)}, 1, v{cc}
        v_lshlrev_b32 v{i_}, 3, v{i_}
        v_add_u32 v{rp}, 32, v{i_}
        v_cndmask_b32 v{V_TRc+2}, v{V_TRc+2}, v{i_}, {s(S_MASK,2)}
        v_cndmask_b32 v{V_TRc+3}, v{V_TRc+3}, v{rp}, {s(S_MASK,2)}""")
        coloff = [0, 40, 144, 184]
    else:
        A(f"""v_lshl_add_u32 v{i_}, v{q}, 3, v{rp}
        v_mul_u32_u24 v{i_}, 384, v{i_}
        v_lshl_add_u32 v{i_}, v{cc}, 3, v{i_}
        v_add_u32 v{i_}, {XB}, v{i_}
        v_lshrrev_b32 v{rp}, 1, v{rp}
        v_and_b32 v{q}, 1, v{q}
        v_lshl_add_u32 v{q}, v{q}, 1, v{rp}
        s_mul_i32 s{S_T2}, s{S_T1}, 6""")
        for j in range(4):
            A(f"""s_add_u32 s{S_T3}, s{S_T2}, {j}
            s_and_b32 s{S_CNT}, s{S_T3}, 3
            s_lshr_b32 s{S_T3}, s{S_T3}, 2
            s_lshl_b32 s{S_T3}, s{S_T3}, 7
            v_xor_b32 v{rp}, s{S_CNT}, v{q}
            v_lshl_add_u32 v{V_TRc+j}, v{rp}, 5, v{i_}
            v_add_u32 v{V_TRc+j}, s{S_T3}, v{V_TRc+j}""")
    V_QO = V_FREE
    if not kv:
        V_FREE += 6
        c_, P_, m_, t_ = V_T, V_T + 1, V_T + 2, V_T + 3
        for t in range(NT):
            o0 = V_QO + t
            A(f"""s_mul_i32 s{S_T2}, s{S_CG}, 48
            s_mul_i32 s{S_T3}, s{S_T1}, 24
            s_add_u32 s{S_T2}, s{S_T2}, s{S_T3}
            s_add_u32 s{S_T2}, s{S_T2}, {4*t}
            v_lshrrev_b32 v{c_}, 4, v{V_LANE}
            v_add_u32 v{c_}, s{S_T2}, v{c_}
            v_mul_u32_u24 v{P_}, 7282, v{c_}
            v_lshrrev_b32 v{P_}, 16, v{P_}
            v_mul_u32_u24 v{m_}, 9, v{P_}
            v_sub_u32 v{m_}, v{c_}, v{m_}
            v_lshrrev_b32 v{c_}, 1, v{P_}
            v_mul_u32_u24 v{c_}, 4608, v{c_}
            v_and_b32 v{P_}, 1, v{P_}
            v_cmp_lt_u32 vcc, 4, v{m_}
            v_lshl_add_u32 v{o0}, v{P_}, 3, v{m_}
            v_add_u32 v{t_}, 16, v{P_}
            v_subbrev_co_u32 v{o0}, vcc, 0, v{o0}, vcc
            v_cmp_eq_u32 vcc, 4, v{m_}
            v_and_b32 v{m_}, 15, v{V_LANE}
            v_lshl_add_u32 v{c_}, v{m_}, 4, v{c_}
            v_cndmask_b32 v{o0}, v{o0}, v{t_}, vcc
            v_lshl_add_u32 v{o0}, v{o0}, 8, v{c_}""")
    A(f"""s_mov_b32 s{S_EK}, 1
    s_mov_b32 s{S_PB}, {PB_G}
    s_mov_b32 s{S_B9}, 0
    s_mov_b32 s{S_CINC}, 0""")
    if kv:
        A(f"""s_mov_b32 s{S_N1}, 4
        s_mul_i32 s{S_FA}, s{S_CG}, {NREP << LGF}
        s_mov_b32 s{S_CA}, 1
        s_add_u32 s{S_FA}, s{S_FA}, {FL_KV}""")
        a_mm, a_mr, a_rm, a_rr, a_ta, a_tb, a_g, a_c = range(245, 253)
        col, qq, x0, x1 = V_T, V_T + 1, V_T + 2, V_T + 3
        A(f"""v_and_b32 v{col}, 15, v{V_LANE}
        v_lshrrev_b32 v{qq}, 4, v{V_LANE}
        v_cmp_gt_u32 vcc, 4, v{col}
        s_mul_i32 s{S_T2}, s{S_T0}, {STGD}
        s_add_u32 s{S_T2}, s{S_T2}, {STGA}
        s_lshl_b32 s{S_T3}, s{S_T1}, 11
        s_add_u32 s{S_T3}, s{S_T3}, s{S_T2}
        v_lshl_add_u32 v{a_mm}, v{V_LANE}, 4, s{S_T3}
        s_lshl_b32 s{S_T3}, s{S_T1}, 8
        s_add_u32 s{S_T3}, s{S_T3}, s{S_T2}
        v_lshl_add_u32 v{a_rm}, v{V_LANE}, 4, s{S_T3}
        v_and_b32 v{x0}, 1, v{col}
        v_add_u32 v{a_rr}, 8, v{x0}
        v_bfe_u32 v{x1}, v{col}, 1, 1
        v_lshl_add_u32 v{x0}, v{x0}, 2, v{x1}
        v_cndmask_b32 v{x0}, v{x0}, v{a_rr}, vcc
        v_lshl_add_u32 v{x0}, s{S_T1}, 1, v{x0}
        v_lshl_add_u32 v{a_rr}, v{x0}, 3, s{S_T2}
        v_mul_u32_u24 v{a_mr}, 192, v{qq}
        v_lshl_add_u32 v{a_mr}, v{x0}, 4, v{a_mr}
        v_add_u32 v{a_mr}, s{S_T2}, v{a_mr}
        v_mov_b32 v{a_c}, {CL_G}
        s_lshl_b32 s{S_T2}, s{S_WAVE}, 8
        v_lshl_add_u32 v{a_ta}, v{V_LANE}, 2, s{S_T2}
        v_add_u32 v{a_tb}, {STGA}, v{a_ta}
        s_lshl_b32 s{S_T2}, s{S_CG}, 13
        s_lshl_b32 s{S_T3}, s{S_RB}, 9
        s_add_u32 s{S_T2}, s{S_T2}, s{S_T3}
        s_lshl_b32 s{S_T3}, s{S_T0}, 8
        s_add_u32 s{S_T2}, s{S_T2}, s{S_T3}
        s_add_u32 s{S_T2}, s{S_T2}, {WS_G}
        v_lshl_add_u32 v{a_g}, v{qq}, 4, s{S_T2}
        s_mul_i32 s{S_SX}, s{S_CG}, 6144
        s_add_u32 s{S_SX}, s{S_SX}, {WS_KVQ}
        s_add_u32 s{S_SW}, s{S_SX}, 4096""")
    else:
        A(f"""s_mov_b32 s{S_N1}, 1
        s_mov_b32 s{S_CA}, 0
        s_lshl_b32 s{S_FA}, s{S_RB}, 1
        s_add_u32 s{S_FA}, s{S_FA}, s{S_T0}
        s_mul_i32 s{S_FA}, s{S_FA}, 6
        s_lshl_b32 s{S_T2}, s{S_CG}, 1
        s_add_u32 s{S_FA}, s{S_FA}, s{S_T2}
        s_add_u32 s{S_FA}, s{S_FA}, s{S_T1}
        s_lshl_b32 s{S_FA}, s{S_FA}, {LGF+QR}
        s_add_u32 s{S_FA}, s{S_FA}, {FL_Q}""")
    for rt in range(4):
        for t in range(NT):
            one = (t < 2) if kv else True
            for r in range(4):
                if kv and t == 4: A(f"v_cndmask_b32 v{acc(rt,t)+r}, 0, 1.0, vcc")
                else: A(f"v_mov_b32 v{acc(rt,t)+r}, {'1.0' if one else '0'}")
    A(f"""s_mov_b32 s{S_SLOT}, 0
    s_mov_b32 s{S_ST}, s{S_ROT}
    s_mov_b32 s{S_CNT}, 0""")
    stamp(A, 1, stamps)
    if any(a_.startswith("--wk=") for a_ in sys.argv):
        A(f"""s_waitcnt vmcnt(0)
        s_mov_b64 exec, 0
        s_cmp_eq_u32 s{S_WAVE}, 0
        s_cbranch_scc1 W_{typ}_0
        s_cmp_eq_u32 s{S_WAVE}, 1
        s_cbranch_scc1 W_p2_0
        s_cmp_eq_u32 s{S_WAVE}, 2
        s_cbranch_scc1 W_p2_1
        s_branch W_p2_2""")
    A.label(f"L_wr_{typ}")
    stamp(A, 13, stamps)
    items = [(ks, t) for ks in range(2) for t in range(NT)]
    N = len(items)
    LB = NT - 1 if LBAR is None else LBAR
    assert N % RING == 0 and RING >= L + 1 and LB >= L and LB <= NT
    def rdB(ri):
        ks, t = items[ri % N]
        b = V_B + (ri % RING) * 4
        ko = ks * 32 * PITCH
        if kv:
            if t < 4:
                return [f"ds_read_b64_tr_b16 {v(b,2)}, v{V_TR} offset:{ko+coloff[t]}",
                        f"ds_read_b64_tr_b16 {v(b+2,2)}, v{V_TR+1} offset:{ko+coloff[t]}"]
            return [f"ds_read_b64_tr_b16 {v(b,2)}, v{V_TR+2} offset:{ko}",
                    f"ds_read_b64_tr_b16 {v(b+2,2)}, v{V_TR+3} offset:{ko}"]
        return [f"ds_read_b64_tr_b16 {v(b,2)}, v{V_TR+(t&3)} offset:{ko+(t>>2)*128}",
                f"ds_read_b64_tr_b16 {v(b+2,2)}, v{V_TR+(t&3)} offset:{ko+(t>>2)*128+4*384}"]
    rdA = lambda ks: [f"ds_read_b128 {v(areg(ks,rt),4)}, v{V_AA+ks} offset:{2048*rt}" for rt in range(4)]
    updA = [f"v_add_u32 v{V_AA}, s{S_SLOT}, v{V_AAc}", f"v_add_u32 v{V_AA+1}, s{S_SLOT}, v{V_AAc+1}"]
    if not kv:
        rdA = lambda ks: [f"ds_read_b128 {v(areg(ks,rt),4)}, v{(V_AO if rt & 1 else V_AA)+ks} offset:{4096*(rt>>1)}" for rt in range(4)]
        updA += [f"v_xor_b32 v{V_AO}, 2048, v{V_AA}", f"v_xor_b32 v{V_AO+1}, 2048, v{V_AA+1}"]
    if kv:
        updB = [f"v_add_u32 v{V_TR}, s{S_SLOT}, v{V_TRc}", f"v_add_u32 v{V_TR+1}, s{S_SLOT}, v{V_TRc+1}"]
        updB2 = [f"v_add_u32 v{V_TR+2}, v{V_T}, v{V_TRc+2}", f"v_add_u32 v{V_TR+3}, v{V_T}, v{V_TRc+3}"]
        pre = [f"s_lshl_b32 s{S_GB}, s{S_ST}, 8", f"s_add_u32 s{S_GB}, s{S_GB}, {GATE_LDS}",
               f"v_mov_b32 v{V_T}, s{S_SLOT}", f"v_mov_b32 v{V_T+1}, s{S_GB}",
               f"v_cndmask_b32 v{V_T}, v{V_T}, v{V_T+1}, {s(S_MASK,2)}",
               f"s_add_u32 s{S_ST}, s{S_ST}, 1", f"s_cmp_eq_u32 s{S_ST}, 9", f"s_cselect_b32 s{S_ST}, 0, s{S_ST}"]
    else:
        updB = [f"v_add_u32 v{V_TR}, s{S_SLOT}, v{V_TRc}", f"v_add_u32 v{V_TR+1}, s{S_SLOT}, v{V_TRc+1}"]
        updB2 = [f"v_add_u32 v{V_TR+2}, s{S_SLOT}, v{V_TRc+2}", f"v_add_u32 v{V_TR+3}, s{S_SLOT}, v{V_TRc+3}"]
        pre = []
    advs = [f"s_add_u32 s{S_SLOT}, s{S_SLOT}, {STG}", f"s_cmp_eq_u32 s{S_SLOT}, {4*STG}", f"s_cselect_b32 s{S_SLOT}, 0, s{S_SLOT}"]
    fill = {i: [] for i in range(N)}
    for idx in range(N):
        f = []
        if idx == N - LB:
            f += [("x", "s_barrier")] + [("x", u) for u in updA] + [("A0", r) for r in rdA(0)]
        if idx == N - L:
            f += [("x", u) for u in updB]
        f += [(f"B{(idx+L)%N}", r) for r in rdB(idx + L)]
        if idx == N - L:
            f += [("x", u) for u in updB2]
        if idx == N - L + 1 or (L == 1 and idx == N - 1):
            f += [("x", u) for u in advs]
        if idx == 0:
            f += [("A1", r) for r in rdA(1)]
        if idx == 1:
            f += [("x", u) for u in pre]
        fill[idx] = f
    ops = []
    for idx in range(N):
        ks, t = items[idx]
        ops.append(("W", idx))
        f = list(fill[idx])
        per = -(-len(f) // 4)
        for rt in range(4):
            ops.append(("M", idx, rt))
            for _ in range(per):
                if f: ops.append(("F",) + f.pop(0))
    def wait_for(pos, tags):
        best = None
        for tag in tags:
            c = 0; p = pos - 1
            while True:
                o = ops[p % len(ops)]
                if o[0] == "F" and o[2].startswith("ds_"):
                    if o[1] == tag: break
                    c += 1
                p -= 1
            best = c if best is None else min(best, c)
        return best
    A("\n".join(pre)) if pre else None
    first = True
    for idx in range(N - LB, N):
        for tag, ins in fill[idx]:
            if tag.startswith("B") and int(tag[1:]) >= L: continue
            A(ins)
            if ins == "s_barrier": stamp(A, 2, stamps)
    lp = A.newlabel("L_gl")
    A.raw(".p2align 3")
    A.label(lp)
    for it in range(UNR):
        for pos, o in enumerate(ops):
            if o[0] == "W":
                idx = o[1]; ks, t = items[idx]
                tags = [f"B{idx}"] + ([f"A{ks}"] if t == 0 else [])
                A(f"s_waitcnt lgkmcnt({min(wait_for(pos, tags), 15)})")
            elif o[0] == "M":
                idx, rt = o[1], o[2]; ks, t = items[idx]
                b = V_B + (idx % RING) * 4
                d = v(acc(rt, t), 4)
                if NOMFMA: continue
                if kv: A(f"v_mfma_f32_16x16x32_bf16 {d}, {v(areg(ks,rt),4)}, {v(b,4)}, {d}")
                else: A(f"v_mfma_f32_16x16x32_bf16 {d}, {v(b,4)}, {v(areg(ks,rt),4)}, {d}")
            elif o[2] == "s_barrier" and it == 8: continue
            else:
                A(o[2])
    assert UNR == 9
    if UNR < 9:
        A(f"""s_add_u32 s{S_CNT}, s{S_CNT}, {UNR}
        s_cmp_lt_u32 s{S_CNT}, 9
        s_cbranch_scc1 {lp}""")
    stamp(A, 5, stamps)
    TMP = V_FREE + (V_FREE & 1)
    A("s_setprio 2")
    A("s_waitcnt lgkmcnt(0)")
    stamp(A, 7, stamps)
    if not kv:
        A(f"""s_lshl_b32 s{S_T2}, s{S_RB}, 2
        s_lshl_b32 s{S_T3}, s{S_T0}, 1
        s_add_u32 s{S_T2}, s{S_T2}, s{S_T3}
        s_mul_i32 s{S_T2}, s{S_T2}, 36864""")
        A(f"""v_mov_b32 v{V_T}, {CL_G}
        v_mov_b32 v{V_T+1}, 1
        s_mov_b64 exec, 1
        ds_add_u32 v{V_T}, v{V_T+1}
        s_mov_b64 exec, -1""")
        k = 0
        for rp_ in range(2):
            for t in range(NT):
                regs = [acc(2 * rp_ + x, t) + i for x in range(2) for i in range(4)]
                tm = TMP + (k % 4) * 12; k += 1
                phi(A, regs, [tm + i for i in range(8)])
                for i in range(4):
                    A(f"v_cvt_pk_bf16_f32 v{tm+8+i}, v{regs[2*i]}, v{regs[2*i+1]}")
                A(f"buffer_store_dwordx4 {v(tm+8,4)}, v{V_QO+t}, {s(SWS,4)}, s{S_T2} offen sc0 sc1")
            if rp_ == 0: A(f"s_add_u32 s{S_T2}, s{S_T2}, 36864")
        stamp(A, 6, stamps)
        A("s_branch L_p2")
        A.raw(";WALKEND")
        return
    F = lambda t, m: TMP + (t * 2 + m) * 4
    T2 = TMP + 48
    D = T2 + 16
    assert D + 28 <= 245
    A(f"""v_mov_b32 v{V_T+2}, 0x3f803f80
    v_mov_b32 v{V_T+3}, 1""")
    E = Auto(A)
    def pack(t, dst, rts=range(4)):
        o_ = []
        for rt in rts:
            r0 = acc(rt, t)
            o = F(dst, rt >> 1) + 2 * (rt & 1)
            o_.append(f"v_cvt_pk_bf16_f32 v{o}, v{r0}, v{r0+1}")
            o_.append(f"v_cvt_pk_bf16_f32 v{o+1}, v{r0+2}, v{r0+3}")
        return o_
    def phil(t, m, tb):
        L_ = Asm()
        phi(L_, [acc(rt, t) + i for rt in (2 * m, 2 * m + 1) for i in range(4)], [tb + i for i in range(8)], oop=True)
        return [x.strip() for x in L_.lines] + [f"v_cvt_pk_bf16_f32 v{F(t,m)+i}, v{tb+2*i}, v{tb+2*i+1}" for i in range(4)]
    MM = lambda p: D + 4 * p
    MR = lambda p: D + 8 + 4 * p
    RM = lambda p: D + 16 + 4 * p
    RR = D + 24
    mf = lambda d_, a_, b_, m: f"v_mfma_f32_16x16x32_bf16 {v(d_,4)}, {v(F(a_,m),4)}, {v(F(b_,m),4)}, {'0' if m == 0 else v(d_,4)}"
    def under(vs, ms):
        ms = list(ms)
        for x in vs:
            if ms and x.startswith("v_exp"): E(ms.pop(0))
            E(x)
        for x in ms: E(x)
    mk = lambda p: ((1 << p) | (3 << (4 + 2 * p)))
    wr_mm = lambda p: f"""ds_write_b128 v{a_mm}, {v(MM(p),4)} offset:{1024*p}
        s_mov_b32 exec_lo, {mk(p) | (mk(p) << 16):#x}
        s_mov_b32 exec_hi, {mk(p) | (mk(p) << 16):#x}
        ds_write_b128 v{a_mr}, {v(MR(p),4)} offset:{KV_X}
        s_mov_b64 exec, -1"""
    under(phil(0, 0, T2), [])
    for x in pack(2, 2) + pack(4, 5): E(x)
    for i in range(8):
        E(f"v_cndmask_b32 v{F(5,0)+i}, v{F(5,0)+i}, v{V_T+2}, vcc")
    under(phil(0, 1, T2 + 8), [mf(MM(0), 0, 2, 0), mf(MR(0), 0, 5, 0)])
    under(phil(1, 0, T2), [mf(MM(0), 0, 2, 1), mf(MR(0), 0, 5, 1)])
    for x in pack(3, 3): E(x)
    if not LATEW: E(wr_mm(0))
    under(phil(1, 1, T2 + 8), [mf(MM(1), 1, 3, 0), mf(MR(1), 1, 5, 0)])
    under(phil(4, 0, T2), [mf(MM(1), 1, 3, 1), mf(MR(1), 1, 5, 1)])
    if not LATEW: E(wr_mm(1))
    under(phil(4, 1, T2 + 8), [mf(RR, 4, 5, 0), mf(RM(0), 4, 2, 0), mf(RM(1), 4, 3, 0)])
    for x in [mf(RR, 4, 5, 1), mf(RM(0), 4, 2, 1), mf(RM(1), 4, 3, 1)]: E(x)
    stamp(A, 12, stamps)
    if LATEW: E(wr_mm(0)); E(wr_mm(1))
    E("s_mov_b32 exec_hi, 0")
    for p in range(2):
        E(f"""s_mov_b32 exec_lo, {mk(p):#x}
        ds_write_b64 v{a_rr}, {v(RR+2*p,2)} offset:{KV_LZ}""")
    E("s_mov_b32 exec_lo, 0xffff")
    for p in range(2):
        E(f"ds_write_b64 v{a_rm}, {v(RM(p)+2*p,2)} offset:{KV_RD + 8*p}")
    E(f"""s_mov_b32 exec_lo, 1
    ds_add_u32 v{a_c}, v{V_T+3}
    s_mov_b64 exec, -1""")
    stamp(A, 3, stamps)
    lpp = A.newlabel("L_e2"); le = A.newlabel("L_e2e")
    A(f"s_mov_b32 s{S_CNT}, 0")
    A.label(lpp)
    A(f"""ds_read2_b32 {v(T2,2)}, v{a_c} offset0:0 offset1:3
    s_add_u32 s{S_CNT}, s{S_CNT}, 1
    s_cmp_gt_u32 s{S_CNT}, {SPIN}
    s_cbranch_scc1 {le}
    s_waitcnt lgkmcnt(0)
    v_and_b32 v{T2}, v{T2}, v{T2+1}
    s_nop 0
    v_readfirstlane_b32 s{S_T3}, v{T2}
    s_cmp_lg_u32 s{S_T3}, 4
    s_cbranch_scc1 {lpp}""")
    A.label(le)
    stamp(A, 4, stamps)
    R = V_A
    for i in range(6):
        A(f"ds_read2st64_b32 {v(R+2*i,2)}, v{a_tb} offset0:{4*i} offset1:{4*i + STGD//256}")
    for k in range(6):
        A(f"s_waitcnt lgkmcnt({5-k})")
        A(f"""v_add_f32 v{R+2*k}, v{R+2*k}, v{R+2*k+1}
        buffer_atomic_add_f32 v{R+2*k}, v{a_ta}, {s(SWS,4)}, s{S_SX if k < 4 else S_SW} offen offset:{1024*(k%4)} sc1""")
    lab = A.newlabel("L_nog")
    A(f"""s_cmp_lg_u32 s{S_T1}, 0
    s_cbranch_scc1 {lab}
    s_mov_b32 exec_lo, 0x01000100
    s_mov_b32 exec_hi, 0x01000100""")
    for rt in range(4):
        A(f"buffer_store_dwordx4 {v(acc(rt,4),4)}, v{a_g}, {s(SWS,4)}, 0 offen offset:{64*rt} sc0 sc1")
    A("s_mov_b64 exec, -1")
    A.label(lab)
    stamp(A, 6, stamps)
    A("s_nop 1")
    A("s_branch L_p2")
    A.raw(";WALKEND")

def loader_params(A):
    A.label("L_ldx")
    A(f"""s_mov_b32 s{S_EK}, 1
    s_mov_b32 s{S_PB}, {PB_G}
    s_mov_b32 s{S_B9}, 1
    s_mov_b32 s{S_CINC}, 0x100
    s_mov_b32 s{S_N1}, 0
    s_mov_b32 s{S_CA}, 0
    s_mov_b32 s{S_FA}, 0
    v_readfirstlane_b32 s{S_T0}, v9
    v_mov_b32 v4, {CL_G}
    v_mov_b32 v6, 0
    v_mov_b32 v7, 0
    v_mov_b32 v5, 0xff
    ds_write_b64 v4, v[6:7]
    ds_write_b64 v4, v[6:7] offset:8
    ds_write_b64 v4, v[6:7] offset:24
    ds_write_b64 v4, v[6:7] offset:32
    s_cmp_ge_u32 s{S_T0}, 8
    s_cbranch_scc1 L_p2
    s_sleep 4
    buffer_load_dword v9, v8, {s(SDBG,4)}, 0 offen sc0 sc1
    s_mov_b32 s{S_B9}, 0
    s_waitcnt vmcnt(1) lgkmcnt(0)
    s_barrier""")
    rdy_wait(A, 8, 9, S_CNT, S_T0)
    A("s_branch L_p2")

def wp_dma(A, s_lds, s_src, s_t, v16, thr=0, s_rot=None):
    for n in range(21):
        if n % 4 == 0:
            if s_rot is None or n == 20:
                A(f"""s_add_u32 m0, s{s_lds}, {1024*n}
                s_add_u32 s{s_t}, s{s_src}, {1024*n}""")
            else:
                A(f"""s_add_u32 m0, s{s_lds}, s{s_rot}
                s_add_u32 s{s_t}, s{s_src}, s{s_rot}
                s_add_u32 s{s_rot}, s{s_rot}, 4096
                s_cmp_eq_u32 s{s_rot}, 20480
                s_cselect_b32 s{s_rot}, 0, s{s_rot}""")
        if n == 20: A("s_mov_b64 exec, 0xffff")
        if thr: A(f"s_waitcnt vmcnt({thr})")
        A(f"buffer_load_dwordx4 v{v16}, {s(SWS,4)}, s{s_t} offen offset:{1024*(n%4)} sc1 lds")
    A("s_mov_b64 exec, -1")

def x_voffsets(A, regs, s_first, tmp):
    t0, t1 = tmp
    A(f"""v_lshrrev_b32 v{t0}, 4, v0
    v_and_b32 v{t1}, 7, v0
    v_xor_b32 v{t1}, v{t1}, v{t0}
    s_and_b32 s{S_T3}, s{s_first}, 1
    s_lshl_b32 s{S_T3}, s{S_T3}, 2
    v_xor_b32 v{t1}, s{S_T3}, v{t1}
    v_lshrrev_b32 v{t0}, 3, v0
    v_mul_u32_u24 v{t0}, 1152, v{t0}
    v_lshl_add_u32 v{t1}, v{t1}, 4, v{t0}
    s_mul_i32 s{S_T3}, s{s_first}, 9216
    s_add_u32 s{S_T3}, s{S_T3}, s{S_T2}
    v_add_u32 v{t1}, s{S_T3}, v{t1}
    v_xor_b32 v{t0}, 64, v{t1}""")
    for k, r in enumerate(regs):
        A(f"v_add_u32 v{r}, {9216*k - 1024*(k%4)}, v{t0 if k % 2 else t1}")

def loader_loop(A, typ, issue, NI, nbar_extra, hooks=None):
    kv, PITCH, STG = params(typ)
    hooks = hooks or {}
    issue(); issue()
    for n in range(9):
        if n in hooks: hooks[n][0]()
        allowed = NI if n + 1 <= 8 else 0
        A(f"s_waitcnt vmcnt({allowed})")
        A("s_barrier")
        if n in hooks and hooks[n][1]: hooks[n][1]()
        if n + 2 < 9: issue()
    for _ in range(nbar_extra): A("s_barrier")

def adv(A, STG):
    A(f"""s_add_u32 s{S_ST}, s{S_ST}, 1
    s_cmp_eq_u32 s{S_ST}, 9
    s_cselect_b32 s{S_ST}, 0, s{S_ST}
    s_add_u32 s{S_SLOT}, s{S_SLOT}, {STG}
    s_cmp_eq_u32 s{S_SLOT}, {4*STG}
    s_cselect_b32 s{S_SLOT}, 0, s{S_SLOT}""")

def gen_loader(A, typ, stamps=False):
    kv, PITCH, STG = params(typ)
    PPR = PITCH // 16
    NX = 3 if kv else 4
    S_J, S_XL, S_WL = 86, 87, 88
    A(f"s_sub_u32 s{S_J}, s{S_WAVE}, 4")
    A(f"s_mul_i32 s{S_T2}, s{S_RB}, {128*1152}")
    A(f"s_mul_i32 s{S_T0}, s{S_J}, {NX}")
    xr = [10 + k for k in range(NX)]
    x_voffsets(A, xr, S_T0, (4, 5))
    A(f"s_lshl_b32 s{S_XL}, s{S_T0}, 10")
    A(f"s_mul_i32 s{S_T1}, s{S_J}, 384")
    A(f"s_mul_i32 s{S_WL}, s{S_J}, 6144")
    A(f"s_add_u32 s{S_WL}, s{S_WL}, {XB}")
    if kv:
        A(f"s_mul_i32 s{S_T3}, s{S_CG}, 144")
        A(f"s_add_u32 s{S_T3}, s{S_T3}, 1152")
    else:
        A(f"s_mul_i32 s{S_T3}, s{S_CG}, 384")
    wr = [20 + i for i in range(6)]
    for i in range(6):
        p, sl, pc, o = 4, 5, 6, wr[i]
        A(f"v_add_u32 v{p}, s{S_T1}, v0")
        if i: A(f"v_add_u32 v{p}, {64*i}, v{p}")
        A(f"v_mul_u32_u24 v{sl}, {3641 if kv else 2731}, v{p}")
        A(f"v_lshrrev_b32 v{sl}, 16, v{sl}")
        A(f"v_mul_u32_u24 v{pc}, {PPR}, v{sl}")
        A(f"v_sub_u32 v{pc}, v{p}, v{pc}")
        if kv:
            A(f"""v_lshrrev_b32 v7, 1, v{sl}
            v_and_b32 v7, 4, v7
            v_xor_b32 v{sl}, v{sl}, v7
            v_mul_u32_u24 v{o}, 3456, v{sl}
            v_lshl_add_u32 v{o}, v{pc}, 4, v{o}
            v_cmp_lt_u32 vcc, 8, v{pc}
            v_add_u32 v7, {1152-144}, v{o}
            s_nop 0
            v_cndmask_b32 v{o}, v{o}, v7, vcc""")
        else:
            A(f"""v_bfe_u32 v7, v{sl}, 1, 1
            v_bfe_u32 v8, v{sl}, 3, 1
            v_lshl_add_u32 v7, v8, 1, v7
            v_lshlrev_b32 v7, 1, v7
            v_xor_b32 v{pc}, v{pc}, v7
            v_mul_u32_u24 v{o}, 3456, v{sl}
            v_lshl_add_u32 v{o}, v{pc}, 4, v{o}""")
        A(f"v_add_u32 v{o}, s{S_T3}, v{o}")
        if i % 4: A(f"v_subrev_u32 v{o}, {1024*(i%4)}, v{o}")
    A(f"s_mov_b32 s{S_SLOT}, 0\ns_mov_b32 s{S_ST}, s{S_ROT}")
    touch(A, 10)
    kwait(A, ["x"], stamps)
    if "--touch=0" not in sys.argv: A(f"buffer_load_dword v253, v251, {s(SX,4)}, s9 offen")
    kwait(A, ["w"], stamps)
    smp = f"buffer_load_dword v9, v8, {s(SDBG,4)}, 0 offen sc0 sc1"
    def issue():
        A(f"""s_lshl_b32 s{S_SX}, s{S_ST}, 7
        s_mul_i32 s{S_SW}, s{S_ST}, 221184
        s_add_u32 m0, s{S_SLOT}, s{S_XL}
        s_add_u32 s{S_T0}, s{S_SLOT}, s{S_WL}""")
        for k in range(NX):
            A(f"buffer_load_dwordx4 v{xr[k]}, {s(SX,4)}, s{S_SX} offen offset:{1024*k} lds")
        A(f"s_mov_b32 m0, s{S_T0}\ns_add_u32 s{S_T0}, s{S_T0}, 4096")
        for i in range(4):
            A(f"buffer_load_dwordx4 v{wr[i]}, {s(SW,4)}, s{S_SW} offen offset:{1024*i} lds")
        A(f"s_mov_b32 m0, s{S_T0}\ns_nop 0")
        for i in range(4, 6):
            A(f"buffer_load_dwordx4 v{wr[i]}, {s(SW,4)}, s{S_SW} offen offset:{1024*(i-4)} lds")
        adv(A, STG)
    NI = NX + 6
    stamp0(A, stamps)
    stamp(A, 1, stamps)
    issue()
    kwait(A, ["dbg"], stamps)
    A("v_mov_b32 v8, 0\nv_mov_b32 v9, 0")
    if stamps:
        stamp(A, 2, stamps)
        for n in range(8):
            if n == 7: A(smp)
            issue()
            A(f"s_waitcnt vmcnt({NI})\ns_barrier")
            stamp(A, 3 + n, stamps, last=False)
        stamp(A, 11, stamps, last=True)
        A("s_branch L_ldx")
        return
    A(f"s_mov_b32 s{S_CNT}, 0")
    lp = A.newlabel("L_ld")
    A.label(lp)
    A(f"s_cmp_lg_u32 s{S_CNT}, 7\ns_cbranch_scc1 2")
    A(smp)
    issue()
    A(f"""s_waitcnt vmcnt({NI})
    s_barrier
    s_add_u32 s{S_CNT}, s{S_CNT}, 1
    s_cmp_lt_u32 s{S_CNT}, 8
    s_cbranch_scc1 {lp}""")
    A("s_branch L_ldx")

def gen_chore(A, stamps=False):
    kv, PITCH, STG = params("kv")
    NX = 7
    A(f"s_mul_i32 s{S_T2}, s{S_RB}, {128*1152}")
    A(f"s_mov_b32 s{S_T0}, 9")
    xr = [10 + k for k in range(NX)]
    x_voffsets(A, xr, S_T0, (4, 5))
    A(f"s_mov_b32 s{S_SLOT}, 0\ns_mov_b32 s{S_ST}, s{S_ROT}")
    def issue():
        A(f"""s_lshl_b32 s{S_SX}, s{S_ST}, 7
        s_add_u32 m0, s{S_SLOT}, 9216
        s_add_u32 s{S_T0}, s{S_SLOT}, {9216+4096}""")
        for k in range(4):
            A(f"buffer_load_dwordx4 v{xr[k]}, {s(SX,4)}, s{S_SX} offen offset:{1024*k} lds")
        A(f"s_mov_b32 m0, s{S_T0}\ns_nop 0")
        for k in range(4, 7):
            A(f"buffer_load_dwordx4 v{xr[k]}, {s(SX,4)}, s{S_SX} offen offset:{1024*(k-4)} lds")
        adv(A, STG)
    A(f"v_lshlrev_b32 v1, 1, v0")
    touch(A, 10)
    kwait(A, ["x"], stamps)
    if "--touch=0" not in sys.argv: A(f"buffer_load_dword v253, v251, {s(SX,4)}, s9 offen")
    kwait(A, ["g"], stamps)
    stamp0(A, stamps)
    for i in range(9):
        A(f"buffer_load_ushort v{30+i}, v1, {s(SG,4)}, 0 offen offset:{128*i}")
    issue()
    A(f"""v_lshrrev_b32 v4, 5, v0
    v_mul_u32_u24 v4, 9216, v4
    v_and_b32 v5, 31, v0
    v_lshl_add_u32 v4, v5, 3, v4
    v_add_u32 v4, {GATE_LDS}, v4
    s_waitcnt vmcnt({NX})""")
    for i in range(9):
        A(f"ds_write_b16 v4, v{30+i} offset:{256*i}")
    A(f"s_mov_b32 s{S_CNT}, 0")
    A("s_waitcnt lgkmcnt(0)")
    kwait(A, ["dbg"], stamps)
    A("v_mov_b32 v8, 0\nv_mov_b32 v9, 0")
    lp = A.newlabel("L_ch")
    A.label(lp)
    A(f"s_cmp_lg_u32 s{S_CNT}, 7\ns_cbranch_scc1 2")
    A(f"buffer_load_dword v9, v8, {s(SDBG,4)}, 0 offen sc0 sc1")
    issue()
    A(f"""s_waitcnt vmcnt({NX})
    s_barrier""")
    A(f"""s_add_u32 s{S_CNT}, s{S_CNT}, 1
    s_cmp_lt_u32 s{S_CNT}, 8
    s_cbranch_scc1 {lp}""")
    stamp(A, 6, stamps)
    loader_params(A)

def rdy_wait(A, fla, flv, sc, st_, first="s_waitcnt vmcnt(0)", off=0):
    lp = A.newlabel("L_zp"); le = A.newlabel("L_ze")
    A(f"s_mov_b32 s{sc}, 0")
    A(first)
    A.label(lp)
    A(f"""v_readfirstlane_b32 s{st_}, v{flv}
    s_cmp_ge_u32 s{st_}, 8
    s_cbranch_scc1 {le}
    s_add_u32 s{sc}, s{sc}, 1
    s_cmp_gt_u32 s{sc}, {SPIN}
    s_cbranch_scc1 {le}
    buffer_load_dword v{flv}, v{fla}, {s(SDBG,4)}, 0 offen offset:{off} sc0 sc1
    s_waitcnt vmcnt(0)
    s_branch {lp}""")
    A.label(le)

def gen_aux(A, stamps=False):
    IMG = 71680
    S_KH_, S_B_, S_J_, S_L_, S_W8_ = 5, 6, 8, 11, 12
    VW0, VWL, VW8, VW8L = 20, 21, 22, 23
    A("s_getpc_b64 s[14:15]")
    lab = A.newlabel("L_pca")
    A.label(lab)
    A(f"""s_sub_u32 s14, s14, {lab}-L_pc0
    s_subb_u32 s15, s15, 0
    v_add_u32 v2, 32768, v2
    v_min_u32 v2, L_code_end-L_pc0-8, v2
    global_load_dword v253, v2, s[14:15]""")
    A(f"""s_lshr_b32 s{S_KH_}, s{S_WAVE}, 2
    s_and_b32 s{S_B_}, s3, 1
    s_and_b32 s{S_J_}, s{S_WAVE}, 1
    s_and_b32 s{S_T0}, s3, 2
    s_add_u32 s{S_J_}, s{S_J_}, s{S_T0}
    s_lshr_b32 s{S_T0}, s3, 2
    s_lshl_b32 s{S_T0}, s{S_T0}, 1
    s_add_u32 s{S_CG}, s{S_T0}, s{S_B_}
    s_mul_i32 s{S_T0}, s{S_CG}, 288
    s_mul_i32 s{S_T1}, s{S_KH_}, {288*1152}
    s_add_u32 s{S_T0}, s{S_T0}, s{S_T1}
    s_lshl_b32 s{S_T1}, s{S_J_}, 6
    s_lshl_b32 s{S_T2}, s{S_B_}, 5
    s_add_u32 s{S_SW}, s{S_T0}, s{S_T1}
    s_add_u32 s{S_SW}, s{S_SW}, s{S_T2}
    s_mul_i32 s{S_W8_}, s{S_J_}, {72*1152}
    s_add_u32 s{S_W8_}, s{S_W8_}, s{S_T0}
    s_lshl_b32 s{S_T2}, s{S_B_}, 8
    s_sub_u32 s{S_W8_}, s{S_W8_}, s{S_T2}
    s_add_u32 s{S_W8_}, s{S_W8_}, 256
    s_mul_i32 s{S_L_}, s{S_WAVE}, 11264
    s_add_u32 s{S_L_}, s{S_L_}, {IMG}
    v_lshrrev_b32 v2, 2, v0
    v_and_b32 v3, 3, v0
    v_lshlrev_b32 v3, 4, v3
    v_mul_u32_u24 v2, 1152, v2
    v_add_u32 v{VW0}, v2, v3
    v_mov_b32 v4, {CL_G}
    v_mov_b32 v8, 0
    v_mov_b32 v9, 0
    v_mov_b32 v10, 0
    v_mov_b32 v11, 0
    ds_write_b128 v4, v[8:11]
    ds_write_b128 v4, v[8:11] offset:16
    ds_write_b128 v4, v[8:11] offset:32
    v_mov_b32 v5, 4
    ds_write_b32 v4, v5
    s_waitcnt lgkmcnt(0)
    s_barrier""")
    srd(A, SW, S_WO, S_WO + 1, 576 * 1152)
    l3 = A.newlabel("L_ph"); l4 = A.newlabel("L_pd"); l0 = A.newlabel("L_p0")
    rest = f"""v_bfe_u32 v4, v0, 3, 1
    v_mul_u32_u24 v4, 36, v4
    v_lshrrev_b32 v2, 4, v0
    v_mul_u32_u24 v2, 72, v2
    v_bfe_u32 v5, v0, 2, 1
    v_lshl_add_u32 v4, v5, 1, v4
    v_add3_u32 v4, v4, v2, 16
    v_mul_u32_u24 v4, 1152, v4
    v_add_u32 v{VWL}, v4, v3
    v_lshrrev_b32 v2, 1, v0
    v_lshrrev_b32 v4, 5, v0
    v_lshl_add_u32 v2, v4, 2, v2
    v_and_b32 v3, 1, v0
    v_lshlrev_b32 v3, 4, v3
    v_mul_u32_u24 v2, 1152, v2
    v_add_u32 v{VW8}, v2, v3
    v_mul_u32_u24 v5, 36, v5
    v_and_b32 v2, 2, v0
    v_bfe_u32 v4, v0, 3, 1
    v_add3_u32 v2, v2, v4, v5
    v_add_u32 v2, 16, v2
    v_mul_u32_u24 v2, 1152, v2
    v_add_u32 v{VW8L}, v2, v3
    v_lshlrev_b32 v1, 4, v0
    v_lshlrev_b32 v7, 3, v0
    v_add_u32 v12, s{S_L_}, v1
    v_add_u32 v13, s{S_L_}, v7
    s_mov_b32 s{S_EK}, 1
    s_mov_b32 s{S_PB}, {PB_G}
    s_mov_b32 s{S_B9}, 0
    s_mov_b32 s{S_CINC}, 0x100
    s_mov_b32 s{S_N1}, 0
    s_mov_b32 s{S_CA}, 0
    s_mov_b32 s{S_FA}, 0
    s_lshl_b32 s{S_T0}, s{S_CG}, 3
    s_lshl_b32 s{S_T1}, s{S_KH_}, 2
    s_add_u32 s{S_T0}, s{S_T0}, s{S_T1}
    s_add_u32 s{S_T0}, s{S_T0}, s{S_J_}
    s_mul_i32 s{S_SX}, s{S_T0}, {WPU}
    s_add_u32 s{S_SX}, s{S_SX}, {WS_WP}"""
    A(f"""s_cmp_lt_u32 s{S_WAVE}, 4
    s_cbranch_scc1 {l0}
    s_sleep {AUXSLEEP}""")
    A.label(l0)
    A(f"""s_bitcmp1_b32 s{S_WAVE}, 1
    s_cbranch_scc1 {l3}""")
    assert NFLAG % 8 == 0 and NFLAG // 8 <= 384
    for hh in range(2):
        E = Auto(A)
        bl = list(range(10)) if hh == 0 else list(range(10, 21))
        for b in bl:
            if b < 16:
                vo, sb, row = VW0, 13, 36 * ((b >> 1) & 1) + 20 * (b & 1)
                if b % 4 == 0 or b == bl[0]:
                    E(f"""s_xor_b32 s13, s{S_J_}, {b >> 2}
                    s_mul_i32 s13, s13, {72*1152}
                    s_add_u32 s13, s13, s{S_SW}""")
            elif b < 18:
                vo, sb, row = VWL, S_SW, b - 16
                if b == 16: A(rest)
            elif b < 20: vo, sb, row = VW8, S_W8_, 36 * (b - 18)
            else: vo, sb, row = VW8L, S_W8_, 0
            E(f"""s_add_u32 m0, s{S_L_}, {1024*(b-bl[0])}
            s_add_u32 s{S_T1}, s{sb}, {row*1152}""")
            E.one(f"buffer_load_dwordx4 v{vo}, {s(SW,4)}, s{S_T1} offen lds", tag=f"b{b}")
        if hh == 0: A(rest)
        kwait(A, ["ws", "dbg"], stamps)
        lz = A.newlabel("L_nz")
        A(f"""s_cmp_ge_u32 s{S_WAVE}, 4
        s_cbranch_scc1 {lz}
        s_and_b32 s{S_T2}, s{S_WAVE}, 1""")
        if hh == 0:
            A(f"""s_mul_i32 s{S_T1}, s3, 6144
            s_mul_i32 s{S_T2}, s{S_T2}, 3072
            s_add_u32 s{S_T1}, s{S_T1}, s{S_T2}
            s_add_u32 s{S_T1}, s{S_T1}, {WS_KVQ}""")
            for i in range(3): A(f"buffer_store_dwordx4 v[8:11], v1, {s(SWS,4)}, s{S_T1} offen offset:{1024*i} sc0 sc1")
        else:
            A(f"""s_mul_i32 s{S_T1}, s3, {NFLAG // 8 << LGF}
            s_add_u32 s{S_T1}, s{S_T1}, {FL}
            v_lshl_add_u32 v2, s{S_T2}, 6, v0""")
            for i in range(-(-NFLAG // 8 // 128)):
                A(f"""v_add_u32 v3, {128*i}, v2
                v_cmp_gt_u32 vcc, {NFLAG // 8}, v3
                v_lshlrev_b32 v3, {LGF}, v3
                s_and_b64 exec, vcc, -1
                s_cbranch_execz 2
                buffer_store_dword v8, v3, {s(SWS,4)}, s{S_T1} offen sc0 sc1
                s_mov_b64 exec, -1""")
        A.label(lz)
        pend = []
        for n0 in range(bl[0], bl[-1] + 1, 2):
            o = 1024 * (n0 - bl[0])
            E.wait_vm_tag(f"b{min(n0+1, 20)}")
            cur = []
            for n in (n0, n0 + 1):
                r = 40 + 4 * n
                if n < 18:
                    for u in range(2): E(f"ds_read_b64_tr_b16 {v(r+2*u,2)}, v12 offset:{o+1024*u+8*(n&1)}")
                elif n < 20:
                    for u in range(2): E(f"ds_read_b64_tr_b16 {v(r+2*u,2)}, v13 offset:{o+1024*(n&1)+512*u}")
                elif n == 20: E(f"ds_read_b64_tr_b16 {v(r,2)}, v13 offset:{o}")
                else: continue
                cur.append(n)
            E(f"s_add_u32 s{S_T1}, s{S_SX}, {1024*n0}")
            for n in cur:
                r = 40 + 4 * n
                if n < 20: E(f"buffer_store_dwordx4 {v(r,4)}, v1, {s(SWS,4)}, s{S_T1} offen offset:{1024*(n&1)} sc0 sc1")
                else: E(f"s_mov_b32 exec_hi, 0\nbuffer_store_dwordx2 {v(r,2)}, v7, {s(SWS,4)}, s{S_T1} offen sc0 sc1\ns_mov_b64 exec, -1")
        if hh == 0:
            A(f"s_branch {l4}")
            A.label(l3)
    A.label(l4)
    stamp0(A, stamps)
    stamp(A, 1, stamps)
    l5 = A.newlabel("L_nf")
    A(f"""s_lshr_b32 s{S_T1}, s{S_WAVE}, 2
    s_lshl_b32 s{S_T1}, s{S_T1}, 2
    v_mov_b32 v5, s{S_T1}
    v_add_u32 v4, {CL_G + 8}, v5
    v_mov_b32 v2, 1
    v_mov_b32 v3, 1
    s_mov_b64 exec, 1
    s_waitcnt vmcnt(0)
    ds_add_rtn_u32 v6, v4, v3
    s_waitcnt lgkmcnt(0)
    v_readfirstlane_b32 s{S_T0}, v6
    s_cmp_lg_u32 s{S_T0}, 3
    s_cbranch_scc1 {l5}
    v_lshlrev_b32 v5, 5, v5
    buffer_atomic_add v2, v5, {s(SDBG,4)}, 0 offen sc1""")
    A.label(l5)
    A("s_mov_b64 exec, -1")
    stamp(A, 2, stamps)
    A("s_barrier")
    A("s_sleep 8")
    rdy_wait(A, 8, 10, S_CNT, S_T3)
    stamp(A, 4, stamps)
    rdy_wait(A, 8, 11, S_CNT, S_T3, off=128)
    stamp(A, 3, stamps)
    A(f"s_and_b32 s{S_J_}, s{S_WAVE}, 3")
    l6 = A.newlabel("L_nw")
    A(f"""s_cmp_ge_u32 s{S_WAVE}, 4
    s_cbranch_scc1 {l6}
    s_lshr_b32 s{S_T0}, s3, 2
    s_lshl_b32 s{S_T0}, s{S_T0}, 4
    s_add_u32 s{S_T0}, s{S_T0}, s{S_WAVE}
    s_mul_i32 s{S_T0}, s{S_T0}, {WPU}
    s_add_u32 s{S_T0}, s{S_T0}, {WS_WP + 4*WPU}
    s_mov_b32 s{S_CNT}, 0""")
    lp = A.newlabel("L_pf")
    A.label(lp)
    A(f"""buffer_load_dwordx4 v[12:15], v1, {s(SWS,4)}, s{S_T0} offen sc1
    s_add_u32 s{S_T0}, s{S_T0}, 1024
    s_add_u32 s{S_CNT}, s{S_CNT}, 1
    s_cmp_lt_u32 s{S_CNT}, 21
    s_cbranch_scc1 {lp}
    s_waitcnt vmcnt(0)""")
    A.label(l6)
    stamp(A, 6, stamps)
    A("s_branch L_p2")
```

```python
from asm import *
from auto import Auto
from l1gemm import *
import sys

def opt(name, default):
    for a_ in sys.argv:
        if a_.startswith(f"--{name}="): return a_.split("=", 1)[1]
    return default
FINE2 = "--fine2" in sys.argv
FINE = "--fine" in sys.argv
ROT = int(opt("rot", "1"))
CADD = 4
ONE = int(opt("one", "0"))
SFP = int(opt("sfp", "1"))
MB = int(opt("mb", "14"))
VPK = int(opt("vpk", "0"))
P2P = int(opt("p2p", "2"))
PD = int(opt("pd", "1"))
PS = int(opt("ps", "3"))
THR = int(opt("thr", "4"))
PSLEEP = int(opt("psleep", "0"))
OUTB = opt("outb", "").replace("_", " ")

def gen_p2(A0, stamps=False):
    A = Auto(A0)
    SWO, SOUT = SW, SX
    ws, wo = s(SWS, 4), s(SWO, 4)
    S_J, S_KH, S_RP, S_CM = 3, 4, 5, 6
    T0, T1, T2, T3 = 7, 8, 9, 10
    S_KV0, S_KV1, S_PQ0, S_PQ1, S_G0, S_G1 = 11, 12, 13, 14, 15, 60
    S_BT0, S_BT1, S_BT8, S_O0, S_O8 = 61, 62, 63, 65, 66
    S_P = 67
    S_C8, S_WB, S_W8, S_ER, S_BOK, S_PBV, TD = 70, 73, 74, 75, 76, 71, 77
    M8A, M8S = 78, 82
    MK = [84, 86, 88, 24, 26, 28, 30, 32, 34, 36, 22, 16, 18]
    I16, Q, V16, VX, VS, VR, VG, VFL, VSF, FLV, SFV = range(1, 12)
    VT = [12, 13, 14]
    VT8, VMB = 15, 16
    VP = [17, 18, 19, 20]
    VLF, VLW = 21, 22
    VO = [23, 24, 25, 26]
    VEW, VER, VB0, VB8, VOUT, VOUT8 = 27, 28, 29, 30, 31, 32
    X0, X1, X2, X3, VC = 35, 36, 37, 38, 39
    GV, DIAG, EPSV = 40, 42, 44
    AM = lambda h: 48 + 6 * h
    MG = lambda h: 72 + 6 * h
    PQ = lambda h: 96 + 6 * h
    XR, SR, RR_ = 122, 126, 130
    VW0, VWL, VW8, VW8L = 122, 123, 124, 125
    NUM = lambda l, h: 134 + 16 * l + 4 * h
    DD = lambda l: (126, 122)[l]
    TT = 130
    UU = lambda l: (4, 12)[l]
    PE = lambda l, p: NUM(l, 2 * p)
    NL = lambda l: 166 + 2 * l
    WOF = lambda st, c: 172 + 8 * st + 4 * c
    W8 = lambda p: 244 + 4 * p
    W8L = 252
    ACC = lambda l, c: 48 + 8 * l + 4 * c
    AC8 = lambda l: 64 + 4 * l
    BTF = [44, 46, 170]
    OF = lambda l, st: 72 + 28 * (1 - l) + 4 * (st - 2)
    P8 = [72, 76]
    EX = [80, 84]
    VCA, ONE_ = 33, 34
    seen = set()
    def st(idx, last=False, f2=False):
        if FINE2 and idx in (1, 2, 3, 4, 5) and not f2: return
        if f2 and not FINE2: return
        if not stamps or idx in seen: return
        seen.add(idx)
        A.one("s_waitcnt lgkmcnt(0)")
        stamp(A0, idx, stamps, last=last)
        A.t += 3
    A0.raw(".p2align 6")
    A0.label("L_p2")
    A0.raw(";WALK p2 3")
    A(f"""v_mbcnt_lo_u32_b32 v0, -1, 0
    v_mbcnt_hi_u32_b32 v0, -1, v0""")
    srd(A0, SWS, S_WS, S_WS + 1, WS_SIZE)
    if stamps:
        A(f"""v_add_u32 v254, 0x40000, v254
        v_mov_b32 v255, 0
        v_writelane_b32 v255, s92, 0
        v_writelane_b32 v255, s94, 14""")
        st(1)
    A(f"""s_and_b32 s{S_J}, s{S_WAVE}, 3
    s_lshr_b32 s{S_KH}, s{S_WAVE}, 2
    v_lshlrev_b32 v{V16}, 4, v0
    v_lshlrev_b32 v{VT8}, 3, v0
    v_mov_b32 v{X3}, 1
    v_mov_b64 {v(W8L,2)}, 0
    s_mul_i32 s{S_P}, s{S_J}, {PJ}
    s_add_u32 s{S_P}, s{S_P}, s{S_PB}
    s_sub_u32 s{T2}, s{S_PB}, 64
    v_mov_b32 v{VC}, s{T2}
    s_cmp_eq_u32 s{S_KH}, s{S_EK}
    s_cselect_b32 s{S_ER}, 1, 0""")
    def lwait(va, off, n, tmp, issued=False, mask=None):
        lp = A0.newlabel("L_lw"); le = A0.newlabel("L_le"); l1 = A0.newlabel("L_l1")
        A0(f"s_mov_b32 s{T3}, 0")
        if issued: A0(f"s_branch {l1}")
        A0.label(lp)
        A0(f"ds_read_b32 v{tmp}, v{va} offset:{off}")
        A0.label(l1)
        A0(f"""s_add_u32 s{T3}, s{T3}, 1
        s_waitcnt lgkmcnt(0)
        v_readfirstlane_b32 s{T2}, v{tmp}
        s_cmp_gt_u32 s{T3}, {SPIN}
        s_cbranch_scc1 {le}""")
        if mask: A0(f"s_and_b32 s{T2}, s{T2}, {mask:#x}")
        A0(f"""s_cmp_lt_u32 s{T2}, {n}
        s_cbranch_scc1 {lp}""")
        A0.label(le)
        A.ds = []
    def signal():
        l_ns = A0.newlabel("L_ns"); l_s2 = A0.newlabel("L_s2"); l_sx = A0.newlabel("L_sx")
        A0(f"""s_cmp_eq_u32 s{S_N1}, 0
    s_cbranch_scc1 {l_ns}
    v_mov_b32 v{X1}, 16
    v_lshlrev_b32 v{X2}, {LGF}, v0
    s_mov_b64 exec, 1
    s_cmp_eq_u32 s{S_N1}, 1
    s_cbranch_scc1 {l_s2}
    ds_add_rtn_u32 v{X0}, v{VC}, v{X3} offset:4
    s_sub_u32 s{T3}, s{S_N1}, 1
    s_waitcnt lgkmcnt(0)
    v_readfirstlane_b32 s{T2}, v{X0}
    s_cmp_lg_u32 s{T2}, s{T3}
    s_cbranch_scc1 {l_sx}
    s_cmp_eq_u32 s{S_CA}, 0
    s_cbranch_scc1 {l_s2}
    s_mov_b64 exec, {(1 << NREP) - 1:#x}
    buffer_atomic_add v{X3}, v{X2}, {ws}, s{S_FA} offen sc1
    s_branch {l_sx}""")
        A0.label(l_s2)
        A0(f"buffer_store_dword v{X1}, v{X2}, {ws}, s{S_FA} offen sc0 sc1")
        A0.label(l_sx)
        A0("s_mov_b64 exec, -1")
        A0.label(l_ns)
    l_nd = A0.newlabel("L_nd"); l_own = A0.newlabel("L_own")
    A0(f"""s_cbranch_scc0 {l_nd}
    s_bfe_u32 s{T1}, s2, 0x10002
    s_lshl_b32 s{T1}, s{T1}, 4
    s_lshr_b32 s{T0}, s2, 7
    s_lshl_b32 s{T0}, s{T0}, 3
    s_add_u32 s{T0}, s{T0}, s{T1}
    s_add_u32 s{T0}, s{T0}, s{S_WAVE}
    s_mul_i32 s{S_WB}, s{T0}, {WPU}
    s_add_u32 s{S_WB}, s{S_WB}, {WS_WP}
    s_cmp_eq_u32 s{S_EK}, 0
    s_cbranch_scc1 {l_own}
    s_and_b32 s{T0}, s{T0}, 24
    s_mul_i32 s{S_W8}, s{T0}, {WPU}
    s_lshl_b32 s{T1}, s{S_J}, 10
    s_add_u32 s{S_W8}, s{S_W8}, s{T1}
    s_add_u32 s{S_W8}, s{S_W8}, {WS_WP}
    s_add_u32 s{T1}, s{T1}, s{S_PB}""")
    def dma(i0, i1):
        for i in range(i0, i1):
            if i == 20:
                A0(f"s_cmp_lg_u32 s{S_J}, 0\ns_cbranch_scc1 {l_d}")
            A0(f"""s_add_u32 m0, s{T1}, {4096*i}
            s_add_u32 s{TD}, s{S_W8}, {4096*i}
            buffer_load_dwordx4 v{V16}, {ws}, s{TD} offen sc1 lds""")
    l_n9 = A0.newlabel("L_n9"); l_n8 = A0.newlabel("L_n8"); l_d = A0.newlabel("L_d")
    dma(0, 6)
    A0(f"""s_cmp_lg_u32 s{S_B9}, 1
    s_cbranch_scc1 {l_n8}
    s_waitcnt vmcnt(6) lgkmcnt(0)
    s_barrier""")
    A0.label(l_n8)
    A0(f"v_mov_b32 v{X2}, 0xff\nds_write_b32 v{VC}, v{X2} offset:12")
    A0(f"""s_setprio 0
    v_mov_b32 v{X2}, 0
    buffer_load_dword v{FLV}, v{X2}, {s(SDBG,4)}, 0 offen offset:128 sc0 sc1""")
    dma(6, 15)
    rdy_wait(A0, X2, FLV, T3, T2, first="s_waitcnt vmcnt(9)", off=128)
    A0.label(l_own)
    cinc = f"""v_mov_b32 v{X1}, s{S_CINC}
    s_mov_b64 exec, 1
    ds_add_u32 v{VC}, v{X1}
    s_mov_b64 exec, -1"""
    for n in range(21):
        if n % 4 == 0: A0(f"s_add_u32 s{TD}, s{S_WB}, {4096*(n>>2)}")
        if THR: A0(f"s_waitcnt vmcnt({THR})")
        if n < 20: A0(f"buffer_load_dwordx4 {v(172+4*n,4)}, v{V16}, {ws}, s{TD} offen offset:{1024*(n&3)} sc1")
        else: A0(f"s_mov_b32 exec_hi, 0\nbuffer_load_dwordx2 {v(W8L,2)}, v{VT8}, {ws}, s{TD} offen sc1\ns_mov_b64 exec, -1")
        if n == CADD:
            l_x = A0.newlabel("L_x")
            A0(f"""s_cmp_lg_u32 s{S_EK}, 0
            s_cbranch_scc1 {l_x}
            s_waitcnt vmcnt({CADD+1})""")
            A0(cinc)
            signal()
            A0.label(l_x)
    A0(f"""s_cmp_eq_u32 s{S_EK}, 0
    s_cbranch_scc1 {l_nd}""")
    lwait(VC, 0, 4, X0, mask=0xff)
    dma(15, 21)
    A0.label(l_d)
    A0.label(l_nd)
    A(f"v_lshrrev_b32 v{Q}, 4, v0")
    def part_a():
        L_ = Asm(); A = Auto(L_)
        A(f"""s_and_b32 s{T0}, s2, 3
        s_lshl_b32 s{T0}, s{T0}, 4
        s_bfe_u32 s{S_RP}, s2, 0x40003
        s_add_u32 s{S_RP}, s{S_RP}, s{T0}
        v_and_b32 v{I16}, 15, v0
        v_and_b32 v{X0}, 3, v0
        v_add_u32 v{X1}, 8, v{X0}
        v_min_u32 v{X1}, v{X1}, v{I16}
        v_mul_u32_u24 v{VX}, 192, v{Q}
        v_lshl_add_u32 v{VX}, v{X1}, 4, v{VX}
        v_lshrrev_b32 v{X1}, 1, v{X1}
        v_lshlrev_b32 v{X1}, 4, v{X1}
        v_add_u32 v{X1}, {KV_LZ - KV_RD}, v{X1}
        v_cmp_gt_u32 vcc, 32, v0
        v_and_b32 v{VR}, 511, v{V16}
        v_lshlrev_b32 v{VG}, 2, v{I16}
        v_cndmask_b32 v{VS}, v{X1}, v{V16}, vcc
        s_mul_i32 s{S_KV0}, s{S_WAVE}, 6144
        s_add_u32 s{S_KV0}, s{S_KV0}, {WS_KVQ}
        s_add_u32 s{S_KV1}, s{S_KV0}, 4096
        s_mul_i32 s{T0}, s{S_RP}, 36864
        s_mul_i32 s{T1}, s{S_WAVE}, 4608
        s_add_u32 s{S_PQ0}, s{T0}, s{T1}
        s_add_u32 s{S_PQ1}, s{S_PQ0}, 4096
        s_lshl_b32 s{T0}, s{S_RP}, 1
        s_add_u32 s{T0}, s{T0}, s{S_KH}
        s_lshl_b32 s{S_G0}, s{T0}, 6
        s_lshl_b32 s{T1}, s{S_WAVE}, 13
        s_add_u32 s{S_G0}, s{S_G0}, s{T1}
        s_add_u32 s{S_G0}, s{S_G0}, {WS_G}
        s_xor_b32 s{S_G1}, s{S_G0}, 64
        s_mul_i32 s{T0}, s{S_WAVE}, {NREP}
        s_and_b32 s{T1}, s2, {NREP-1}
        s_add_u32 s{T0}, s{T0}, s{T1}
        s_lshl_b32 s{T0}, s{T0}, {LGF}
        s_add_u32 s{T0}, s{T0}, {FL_KV}
        v_mov_b32 v{VFL}, s{T0}
        s_lshr_b32 s{T0}, s{S_RP}, 1
        s_mul_i32 s{T0}, s{T0}, 6
        s_add_u32 s{T0}, s{T0}, {FL_Q >> LGF}
        s_mul_i32 s{T1}, s{S_WAVE}, 3
        s_add_u32 s{T2}, s{T1}, 2
        s_lshr_b32 s{T1}, s{T1}, 2
        s_lshr_b32 s{T2}, s{T2}, 2
        s_add_u32 s{T1}, s{T1}, s{T0}
        s_add_u32 s{T2}, s{T2}, s{T0}
        s_lshl_b32 s{T1}, s{T1}, {LGF}
        s_lshl_b32 s{T2}, s{T2}, {LGF}
        v_writelane_b32 v{VFL}, s{T1}, 1
        v_writelane_b32 v{VFL}, s{T2}, 2""")
        return [x.strip() for x in L_.lines]
    for x in part_a(): A0(x)
    pollreq = f"""s_mov_b64 exec, 7
    v_mov_b32 v{FLV}, 0
    buffer_atomic_add v{FLV}, v{VFL}, {ws}, 0 offen sc0 sc1
    s_mov_b64 exec, -1"""
    l_q = A0.newlabel("L_q")
    A0(f"""s_or_b32 s{T0}, s{S_ER}, s{S_EK}
    s_cbranch_scc1 {l_q}""")
    A0(pollreq)
    A0.label(l_q)
    def mask64(f):
        m = 0
        for l in range(64):
            if f(l & 15, l >> 4): m |= 1 << l
        return m
    masks = {}
    def getmask(f):
        m = mask64(f)
        if m not in masks:
            r = MK[len(masks)]
            src = [(m0_, k) for m0_ in masks for k in range(1, 17) if (m0_ << k) == m]
            if m < (1 << 31): A(f"s_mov_b64 {s(r,2)}, {m:#x}")
            elif src: A(f"s_lshl_b64 {s(r,2)}, {s(masks[src[0][0]],2)}, {src[0][1]}")
            else: A(f"s_mov_b32 s{r}, {m & 0xffffffff:#x}\ns_mov_b32 s{r+1}, {m >> 32:#x}")
            masks[m] = r
        return s(masks[m], 2)
    mh = [getmask(lambda i, q: (i & 3) == h) for h in range(4)]
    mq = [getmask(lambda i, q: q == p) for p in range(2)]
    ms = [getmask(lambda i, q: q >= 2 and (i & 3) == 2 * (q & 1) + par) for par in range(2)]
    zr = [AM(h) for h in range(4)] + [MG(h) + x for h in range(4) for x in (0, 5)] + [MG(h) + x for h in (2, 3) for x in (1, 4)]
    zr += [PQ(0), PQ(4) + 1]
    for r in zr: A(f"v_mov_b32 v{r}, 0")
    for r in (NL(0), NL(1), BTF[2], EPSV, EPSV + 2): A(f"v_mov_b64 {v(r,2)}, 0")
    A("s_mov_b32 exec_lo, 0")
    for r in range(4): A(f"v_mov_b32 v{EPSV+r}, {EPS:#x}")
    A(f"""s_mov_b64 exec, -1
    s_bfe_u32 s{T1}, s2, 0x10002
    s_mul_i32 s{T1}, s{T1}, 288
    s_lshr_b32 s{T0}, s2, 7
    s_mul_i32 s{S_CM}, s{T0}, 160
    s_add_u32 s{S_CM}, s{S_CM}, s{T1}
    s_lshl_b32 s{S_C8}, s{T0}, 4
    s_add_u32 s{S_C8}, s{S_C8}, s{T1}
    s_add_u32 s{S_C8}, s{S_C8}, 128
    s_add_u32 s{S_BOK}, s{S_PB}, {4*PJ}
    s_cmp_eq_u32 s{S_ER}, 1
    s_cselect_b32 s{T1}, {EMP ^ LMP}, 0
    s_cselect_b32 s{T0}, s{S_BOK}, 0
    s_cselect_b32 s{T2}, 0, s{S_BOK}
    s_xor_b32 s{T3}, s{T1}, {EMP}
    s_xor_b32 s{T1}, s{T1}, {LMP}
    v_lshl_add_u32 v{VCA}, s{S_KH}, 2, v{VC}
    v_mov_b32 v{ONE_}, 1""")
    for k in range(1, 4):
        A(f"""s_xor_b32 s{TD}, s{S_J}, {k}
        s_mul_i32 s{TD}, s{TD}, s{T1}
        s_add_u32 s{TD}, s{TD}, s{T0}
        v_add_u32 v{VP[k]}, s{TD}, v{V16}""")
    A(f"""v_mul_u32_u24 v{VLF}, s{T1}, v{Q}
    v_lshl_add_u32 v{VLF}, v{I16}, 4, v{VLF}
    v_add_u32 v{VLF}, s{T0}, v{VLF}
    v_mul_u32_u24 v{VO[1]}, s{T3}, v{Q}
    v_lshl_add_u32 v{VO[1]}, v{I16}, 4, v{VO[1]}
    s_lshl_b32 s{T3}, s{S_J}, 8
    s_add_u32 s{T2}, s{T2}, s{T3}
    v_add_u32 v{VO[0]}, s{T3}, v{VLF}
    v_add_u32 v{VO[1]}, s{T2}, v{VO[1]}
    s_mul_i32 s{T2}, s{S_J}, s{T1}
    s_add_u32 s{T2}, s{T2}, s{T0}
    v_add_u32 v{VMB}, s{T2}, v{V16}
    v_lshlrev_b32 v{VLW}, 3, v{Q}
    v_lshl_add_u32 v{VLW}, v{I16}, 4, v{VLW}
    v_add_u32 v{VLW}, s{T2}, v{VLW}
    s_lshr_b32 s{T0}, s{S_CM}, 3
    s_lshl_b32 s{T1}, s{S_J}, 2
    s_add_u32 s{T0}, s{T0}, s{T1}
    s_add_u32 s{T0}, s{T0}, {FL_S >> LGF}
    v_add_lshl_u32 v{VSF}, v0, s{T0}, {LGF}
    s_lshr_b32 s{T0}, s{S_C8}, 3
    s_lshr_b32 s{T1}, s{S_J}, 1
    s_add_u32 s{T0}, s{T0}, s{T1}
    s_add_u32 s{T0}, s{T0}, {FL_S >> LGF}
    s_lshl_b32 s{T0}, s{T0}, {LGF}
    v_writelane_b32 v{VSF}, s{T0}, 4
    s_mov_b32 s{S_BOK}, 0""")
    st(2)
    def cwait():
        lp = A0.newlabel("L_cw"); le = A0.newlabel("L_ce")
        A0(f"s_mov_b32 s{T3}, 0")
        A0.label(lp)
        A0(f"""ds_read_b32 v{X0}, v{VC}
        s_add_u32 s{T3}, s{T3}, 1
        s_cmp_gt_u32 s{T3}, {SPIN}
        s_cbranch_scc1 {le}
        s_waitcnt lgkmcnt(0)
        v_readfirstlane_b32 s{T2}, v{X0}
        s_cmp_eq_u32 s{T2}, 0x404
        s_cbranch_scc1 {le}
        s_sleep 1
        s_branch {lp}""")
        A0.label(le)
    l_w = A0.newlabel("L_w"); l_w1 = A0.newlabel("L_w1")
    A0(f"""s_cmp_eq_u32 s{S_ER}, 1
    s_cbranch_scc1 {l_w}
    s_cmp_eq_u32 s{S_EK}, 0
    s_cbranch_scc1 {l_w1}""")
    lwait(VC, 12, 1, X0)
    A0("s_waitcnt vmcnt(0)")
    A0.label(l_w1)
    A0("s_waitcnt vmcnt(1)")
    signal()
    A0.label(l_w)
    A0("s_setprio 0")
    st(3)
    l_c1 = A0.newlabel("L_c1"); l_c2 = A0.newlabel("L_c2"); l_c3 = A0.newlabel("L_c3"); l_c4 = A0.newlabel("L_c4")
    A0(f"""s_cmp_eq_u32 s{S_ER}, 1
    s_cbranch_scc0 {l_c1}
    s_cmp_eq_u32 s{S_EK}, 0
    s_cbranch_scc1 {l_c3}
    s_waitcnt vmcnt(0)""")
    A0(cinc)
    A0.label(l_c3)
    cwait()
    A0(pollreq)
    A0(f"s_branch {l_c2}")
    A0.label(l_c1)
    cwait()
    A0(f"""s_cmp_eq_u32 s{S_EK}, 0
    s_cbranch_scc1 {l_c4}""")
    A0(pollreq)
    A0.label(l_c4)
    A0(f"v_add_u32 v{VT[0]}, s{S_P}, v{V16}")
    A0(f"v_add_u32 v{VT8}, s{S_P}, v{VT8}")
    for n in range(20): A0(f"ds_read_b128 {v(172+4*n,4)}, v{VT[0]} offset:{1024*n}")
    A0(f"s_mov_b32 exec_hi, 0\nds_read_b64 {v(W8L,2)}, v{VT8} offset:20480\ns_mov_b64 exec, 1\nds_add_u32 v{VC}, v{X3} offset:36\ns_mov_b64 exec, -1")
    A0.label(l_c2)
    A0("s_setprio 0")
    st(4)
    def poll(vaddr, vdst, mask, need=None, atomic=True, pending=False):
        lp = A0.newlabel("L_fp"); le = A0.newlabel("L_fe"); l1 = A0.newlabel("L_f1")
        A0(f"s_mov_b32 s{T3}, 0\ns_mov_b64 exec, {mask:#x}")
        if pending: A0(f"s_branch {l1}")
        A0.label(lp)
        if PSLEEP: A0(f"s_sleep {PSLEEP}")
        if atomic: A0(f"v_mov_b32 v{vdst}, 0\nbuffer_atomic_add v{vdst}, v{vaddr}, {ws}, 0 offen sc0 sc1")
        else: A0(f"buffer_load_dword v{vdst}, v{vaddr}, {ws}, 0 offen sc0 sc1")
        A0.label(l1)
        A0(f"""s_add_u32 s{T3}, s{T3}, 1
        s_waitcnt vmcnt(0)
        v_cmp_gt_u32 vcc, 16, v{vdst}
        s_cmp_gt_u32 s{T3}, {SPIN}
        s_cbranch_scc1 {le}
        s_and_b32 s{T2}, vcc_lo, {need or mask:#x}
        s_cbranch_scc1 {lp}""")
        A0.label(le)
        A0("s_mov_b64 exec, -1")
    SC = "sc1"
    def ppoll(regs, mask, need, pending):
        lp = A0.newlabel("L_pp"); le = A0.newlabel("L_pe"); l1 = A0.newlabel("L_p1")
        D = len(regs)
        req = lambda r: f"v_mov_b32 v{r}, 0\nbuffer_atomic_add v{r}, v{VFL}, {ws}, 0 offen sc0 sc1"
        chk = lambda r, n: f"""s_waitcnt vmcnt({n})
        v_cmp_gt_u32 vcc, 16, v{r}
        s_nop 0
        s_and_b32 s{T2}, vcc_lo, {need:#x}
        s_cbranch_scc0 {le}"""
        A0(f"s_mov_b32 s{T3}, 0\ns_mov_b64 exec, {mask:#x}")
        if pending:
            A0(f"""s_or_b32 s{T2}, s{S_ER}, s{S_EK}
            s_cbranch_scc1 {l1}""")
            A0(chk(regs[0], 0))
        A0(req(regs[0]))
        A0.label(l1)
        for r in regs[1:]:
            A0(f"s_sleep {PS}")
            A0(req(r))
        A0.label(lp)
        for r in regs:
            A0(chk(r, D - 1))
            A0(req(r))
        A0(f"""s_add_u32 s{T3}, s{T3}, 1
        s_cmp_lt_u32 s{T3}, {SPIN}
        s_cbranch_scc1 {lp}""")
        A0.label(le)
        A0("s_mov_b64 exec, -1")
    ppoll([FLV, 134, 135, 136, 137][:PD], 0x7, 0x7 if ONE else 0x6, True)
    A.flush(); A.lastw = {}
    st(5)
    def pqload():
        A(f"buffer_load_dwordx4 {v(RR_,4)}, v{VR}, {ws}, s{S_PQ1} offen {SC}")
        for h in range(4):
            A(f"buffer_load_dwordx4 {v(PQ(h)+2,4)}, v{V16}, {ws}, s{S_PQ0} offen offset:{1024*h} {SC}")
    if ONE != 2: pqload()
    l_kv = A0.newlabel("L_kv")
    A0(f"s_cbranch_vccz {l_kv}")
    ppoll([140, 141, 142, 143, 144][:PD], 0x1, 0x1, False)
    A0.label(l_kv)
    A0(f"s_setprio {P2P}")
    st(12)
    A(f"""buffer_load_dwordx4 {v(XR,4)}, v{VX}, {ws}, s{S_KV1} offen offset:{KV_X-4096} {SC}
    buffer_load_dwordx4 {v(SR,4)}, v{VS}, {ws}, s{S_KV1} offen offset:{KV_RD-4096} {SC}""")
    if ONE == 2: pqload()
    for l in (1, 0):
        A(f"buffer_load_dword v{GV+l}, v{VG}, {ws}, s{S_G0 if l == 0 else S_G1} offen {SC}")
    for h in range(4):
        A(f"buffer_load_dwordx4 {v(AM(h)+2,4)}, v{V16}, {ws}, s{S_KV0} offen offset:{1024*h} {SC}")
    late = Asm(); LA = Auto(late)
    srd(late, SOUT, S_OUT, S_OUT + 1, 2048 * 1152)
    LA(f"""s_lshl_b32 s{T0}, s{S_KH}, 11
    s_xor_b32 s{T1}, s{T0}, 2048
    s_add_u32 s{T0}, s{T0}, s{S_P}
    s_add_u32 s{T1}, s{T1}, s{S_P}
    v_add_u32 v{VEW}, s{T0}, v{V16}
    v_add_u32 v{VER}, s{T1}, v{V16}
    v_and_b32 v{X0}, 3, v0
    v_lshlrev_b32 v{X0}, 3, v{X0}
    v_lshl_add_u32 v{X0}, v{Q}, 5, v{X0}
    v_lshrrev_b32 v{X1}, 2, v{I16}
    v_lshl_add_u32 v{VB0}, v{X1}, 15, v{X0}
    v_lshlrev_b32 v{VB8}, 5, v{X1}
    v_lshl_add_u32 v{VB8}, v{Q}, 3, v{VB8}
    v_and_b32 v{X0}, 3, v0
    v_lshl_add_u32 v{VB8}, v{X0}, 1, v{VB8}
    v_mul_u32_u24 v{X1}, 1152, v{I16}
    v_lshl_add_u32 v{VOUT}, v{Q}, 4, v{X1}
    v_lshl_add_u32 v{VOUT8}, v{Q}, 1, v{X1}
    s_lshl_b32 s{T0}, s{S_J}, 2
    s_add_u32 s{S_C8}, s{S_C8}, s{T0}
    s_lshl_b32 s{T0}, s{S_RP}, 1
    s_add_u32 s{T0}, s{T0}, s{S_KH}
    s_lshl_b32 s{T2}, s{S_J}, 5
    s_add_u32 s{T2}, s{T2}, s{S_CM}
    s_mul_i32 s{T1}, s{T0}, {8*1152}
    s_add_u32 s{S_O0}, s{T1}, s{T2}
    s_add_u32 s{S_O8}, s{T1}, s{S_C8}
    s_lshl_b32 s{S_O0}, s{S_O0}, 1
    s_lshl_b32 s{S_O8}, s{S_O8}, 1
    s_lshl_b32 s{T3}, s{T0}, 7
    s_add_u32 s{T3}, s{T3}, {WS_BT}
    s_lshl_b32 s{T2}, s{T2}, 12
    s_add_u32 s{S_BT0}, s{T3}, s{T2}
    s_add_u32 s{S_BT1}, s{S_BT0}, {4*4096}
    s_lshl_b32 s{T2}, s{S_C8}, 12
    s_add_u32 s{S_BT8}, s{T3}, s{T2}""")
    for x in late.lines: A(x.strip())
    md0 = getmask(lambda i, q: q == (i >> 2) and (i & 2) == 0)
    md1 = getmask(lambda i, q: q == (i >> 2) and (i & 2) != 0)
    modd = getmask(lambda i, q: (i & 1) == 1)
    A("s_waitcnt lgkmcnt(0)")
    st(13)
    for h in range(4):
        A(f"v_mov_b32 v{PQ(h)+1}, v{RR_+(h&1)}")
        A(f"v_mov_b32 v{PQ(h+1)}, v{RR_+2+(h&1)}")
    A(f"""v_cvt_pk_bf16_f32 v{XR}, v{XR}, v{XR+1}
    v_cvt_pk_bf16_f32 v{XR+1}, v{XR+2}, v{XR+3}""")
    for h in range(4):
        for x in range(2): A(f"v_cndmask_b32 v{MG(h)+2+x}, 0, v{XR+x}, {mh[h]}")
    A(f"""v_cvt_pk_bf16_f32 v{SR}, v{SR}, v{SR+1}
    v_cvt_pk_bf16_f32 v{SR+1}, v{SR+2}, v{SR+3}""")
    for h in range(2):
        for x in (4, 1): A(f"v_cndmask_b32 v{MG(h)+x}, 0, v{SR+h}, {ms[h]}")
    st(6)
    MF = "v_mfma_f32_16x16x32_bf16"
    mg = lambda l, h: f"{MF} {v(DD(l),4)}, {v(MG(h)+2*l,4)}, {v(PQ(h)+4*l,4)}, {v(EPSV,4) if h == 0 else v(DD(l),4)}"
    nm = lambda l, h: f"{MF} {v(NUM(l,h),4)}, {v(AM(h)+2*l,4)}, {v(PQ(h)+4*l,4)}, 0"
    sig = [f"v_mul_f32 v{GV+l}, {LOG2E:#x}, v{GV+l}" for l in (1, 0)] + [f"v_exp_f32 v{GV+l}, -v{GV+l}" for l in (1, 0)] + \
          [f"v_add_f32 v{GV+l}, 1.0, v{GV+l}" for l in (1, 0)]
    amr = [f"v_cndmask_b32 v{AM(h)+1}, 0, v{SR+(h&1)}, {mq[h>>1]}" for h in range(4)]
    def amb(h):
        r = AM(h)
        return [f"v_cvt_pk_bf16_f32 v{r+2}, v{r+2}, v{r+3}", f"v_cvt_pk_bf16_f32 v{r+3}, v{r+4}, v{r+5}",
                f"v_mov_b32 v{r+4}, v{r+1}", f"v_mov_b32 v{r+5}, 0"]
    def den(l, T=TT):
        o = []
        D, U = DD(l), UU(l)
        if T == 16: T = 96
        for r in range(4): o.append(f"v_mul_f32 v{U+r}, v{GV+l}, v{D+r}")
        for r in range(4): o.append(f"v_mul_f32 v{T+r}, v{GV+l}, v{D+r}")
        for r in range(4): o.append(f"v_permlane32_swap_b32 v{T+r}, v{U+r}")
        for r in range(4): o.append(f"v_rcp_f32 v{U+r}, v{U+r}")
        return o
    def num(l, pk):
        o = []
        D, U = DD(l), UU(l)
        if pk:
            for x in (0, 2): o.append(f"v_pk_mul_f32 {v(D+x,2)}, {v(D+x,2)}, {v(U+x,2)}")
        else:
            for x in range(4): o.append(f"v_mul_f32 v{D+x}, v{D+x}, v{U+x}")
        o.append("s_mov_b32 exec_hi, 0\n" + f"v_cvt_pk_bf16_f32 v{NL(l)}, v{D}, v{D+1}\nv_cvt_pk_bf16_f32 v{NL(l)+1}, v{D+2}, v{D+3}\n"
                 + f"ds_write_b64 v{VLW}, {v(NL(l),2)} offset:{4096+256*l}\ns_mov_b64 exec, -1")
        for h in range(4):
            n = NUM(l, h); e = h & 1
            if pk:
                for x in (0, 2):
                    o.append(f"v_pk_mul_f32 {v(n+x,2)}, {v(n+x,2)}, {v(U+(h&2),2)} op_sel:[0,{e}] op_sel_hi:[1,{e}]")
            else:
                for x in range(4): o.append(f"v_mul_f32 v{n+x}, v{n+x}, v{U+h}")
            o.append(f"v_cvt_pk_bf16_f32 v{PE(l,h>>1)+2*e}, v{n}, v{n+1}")
            o.append(f"v_cvt_pk_bf16_f32 v{PE(l,h>>1)+2*e+1}, v{n+2}, v{n+3}" +
                     (f"\nds_write_b128 v{VMB}, {v(PE(l,h>>1),4)} offset:{2048*l+1024*(h>>1)}" if e else ""))
        return o
    def ct8(l):
        return [f"v_mfma_f32_16x16x16_bf16 {v(AC8(l),4)}, {v(W8L,2)}, {v(NL(l),2)}, 0"] + \
               [f"{MF} {v(AC8(l),4)}, {v(W8(p),4)}, {v(PE(l,p),4)}, {v(AC8(l),4)}" for p in range(2)]
    def interleave(ms_, fs, per=None):
        per = per or -(-len(fs) // max(1, len(ms_)))
        fs = list(fs)
        for m_ in ms_:
            A(m_)
            for _ in range(per):
                if fs: A(fs.pop(0))
        for f_ in fs: A(f_)
    dg = [f"v_rcp_f32 v{X2}, v{GV}", f"v_sub_f32 v{X1}, 1.0, v{X2}", f"v_cvt_pk_bf16_f32 v{X2}, v{X1}, 0", f"v_lshlrev_b32 v{X3}, 16, v{X2}",
          f"v_cndmask_b32 v{X2}, v{X2}, v{X3}, {modd}", f"v_cndmask_b32 v{DIAG}, 0, v{X2}, {md0}", f"v_cndmask_b32 v{DIAG+1}, 0, v{X2}, {md1}"]
    sfreq = f"""s_mov_b64 exec, 0x1f
    buffer_load_dword v{SFV}, v{VSF}, {ws}, 0 offen sc0 sc1
    s_mov_b64 exec, -1"""
    interleave([mg(1, h) for h in range(4)], amr + sig, 3)
    interleave([mg(0, h) for h in range(4)], amb(0) + amb(1), 2)
    d1 = den(1)
    A(nm(1, 0))
    for x in amb(2): A(x)
    A(nm(1, 1))
    for x in amb(3): A(x)
    d0 = den(0, 16)
    interleave([nm(1, 2), nm(1, 3)] + [nm(0, h) for h in range(4)], d1[:8] + d0[:4], 2)
    for x in d0[4:8] + d1[8:12] + d0[8:12] + d1[12:] + d0[12:] + num(1, VPK) + num(0, VPK): A(x)
    cadd = lambda va, off: f"s_mov_b64 exec, 1\nds_add_u32 v{va}, v{ONE_} offset:{off}\ns_mov_b64 exec, -1"
    A(cadd(VCA, 24))
    A("s_setprio 0")
    A(sfreq)
    st(7)
    def rdo(l, st_):
        if st_ == 8: return f"ds_read_b128 {v(OF(l,st_),4)}, v{VLF} offset:{4096+256*l}"
        return f"ds_read_b128 {v(OF(l,st_),4)}, v{VP[st_>>1]} offset:{2048*l+1024*(st_&1)}"
    mm = lambda l: [f"{MF} {v(ACC(l,c),4)}, {v(WOF(st_,c),4)}, {v(OF(l,st_),4)}, {v(ACC(l,c),4)}" for st_ in range(2, 9) for c in range(2)]
    ow = lambda l: [f"{MF} {v(ACC(l,c),4)}, {v(WOF(p,c),4)}, {v(PE(l,p),4)}, {v(ACC(l,c),4) if p else '0'}" for p in range(2) for c in range(2)]
    def btload(E):
        E(f"""buffer_load_dwordx2 {v(BTF[0],2)}, v{VB0}, {ws}, s{S_BT0} offen {SC}
        buffer_load_dwordx2 {v(BTF[1],2)}, v{VB0}, {ws}, s{S_BT1} offen {SC}
        buffer_load_short_d16_hi v{BTF[2]}, v{VB8}, {ws}, s{S_BT8} offen {SC}""")
    c1, c0, o1, o0 = ct8(1), ct8(0), ow(1), ow(0)
    interleave([c1[0], c0[0]] + o1 + c1[1:] + c0[1:], dg, 1)
    lwait(VCA, 24, 4, X0)
    st(8)
    for l in (1, 0):
        for st_ in range(2, 9): A(rdo(l, st_))
    A(f"ds_read_b32 v{X0}, v{VC} offset:36")
    for x in o0: A(x)
    m1, m0_ = mm(1), mm(0)
    for x in m1[:8]: A(x)
    A(f"ds_write_b128 v{VMB}, {v(AC8(1),4)} offset:5632")
    A(f"ds_write_b128 v{VMB}, {v(AC8(0),4)} offset:4608")
    for x in m1[8:]: A(x)
    for x in m0_[:2]: A(x)
    lwait(VC, 36, 4, X0, issued=True)
    for c in range(2): A(f"ds_write_b128 v{VEW}, {v(ACC(1,c),4)} offset:{1024*c}")
    A(cadd(VC, 32))
    A(f"s_mov_b64 exec, 0x1f\nv_cmp_ne_u32 vcc, 16, v{SFV}\ns_mov_b64 exec, -1")
    for x in m0_[2:4]: A(x)
    l_nbt = A0.newlabel("L_nbt")
    A0(f"s_cbranch_vccnz {l_nbt}\ns_mov_b32 s{S_BOK}, 1")
    btload(A0)
    A0.label(l_nbt)
    for x in m0_[4:MB]: A(x)
    l_bt = A0.newlabel("L_bt")
    A0(f"s_cmp_eq_u32 s{S_BOK}, 1\ns_cbranch_scc1 {l_bt}")
    poll(VSF, SFV, 0x1f, atomic=False)
    btload(A0)
    A0.label(l_bt)
    lwait(VC, 32, 8, X0)
    st(9)
    r8 = [f"ds_read_b128 {v(P8[0],4)}, v{VO[0]} offset:4608", f"ds_read_b128 {v(P8[1],4)}, v{VO[1]} offset:5632"] + \
         [f"ds_read_b128 {v(EX[c],4)}, v{VER} offset:{1024*c}" for c in range(2)]
    z = P8[0]
    a8 = [f"v_add_f32 v{z+r}, v{z+r}, v{P8[1]+r}" for r in range(4)]
    a8 += [f"v_permlane32_swap_b32 v{z}, v{z+2}", f"v_permlane32_swap_b32 v{z+1}, v{z+3}", "s_nop 0",
           f"v_add_f32 v{z}, v{z}, v{z+2}", f"v_add_f32 v{z+1}, v{z+1}, v{z+3}",
           f"v_permlane16_swap_b32 v{z}, v{z+1}", "s_nop 0", f"v_add_f32 v{z}, v{z}, v{z+1}"]
    for x in r8 + m0_[MB:] + a8: A(x)
    A("s_waitcnt vmcnt(0)")
    st(10)
    for c in range(2):
        A(f"v_mfma_f32_16x16x16_bf16 {v(EX[c],4)}, {v(BTF[c],2)}, {v(DIAG,2)}, {v(EX[c],4)}")
    A(f"""v_fmac_f32 v{z}, v{X1}, v{BTF[2]}
    v_cvt_pk_bf16_f32 v{z}, v{z}, v{z}
    buffer_store_short v{z}, v{VOUT8}, {s(SOUT,4)}, s{S_O8} offen {OUTB}""")
    OUTR = 134
    for c in range(2):
        for x in (0, 2): A(f"v_pk_add_f32 {v(ACC(0,c)+x,2)}, {v(ACC(0,c)+x,2)}, {v(EX[c]+x,2)}")
        A(f"v_cvt_pk_bf16_f32 v{OUTR+2*c}, v{ACC(0,c)}, v{ACC(0,c)+1}")
        A(f"v_cvt_pk_bf16_f32 v{OUTR+2*c+1}, v{ACC(0,c)+2}, v{ACC(0,c)+3}")
    A(f"""buffer_store_dwordx4 {v(OUTR,4)}, v{VOUT}, {s(SOUT,4)}, s{S_O0} offen {OUTB}
    """)
    st(11, last=True)
    A0("s_endpgm")
    A0.raw(";WALKEND")
```

```python
from asm import *
from auto import Auto
from l1gemm import *
import struct, sys

def opt(name, default):
    for a_ in sys.argv:
        if a_.startswith(f"--{name}="): return a_.split("=", 1)[1]
    return default
TOUCH = int(opt("touch", "1"))
XPOS = int(opt("xpos", "11"))
PKN = int(opt("pkn", "99"))
PRIO = int(opt("prio", "3"))
XS = eval(opt("xs", "[[0,1,2,3],[4,5],[6,7],[],[]]"))

WOPF = int(opt("wopf", "0"))
PRIOB = int(opt("priob", "2"))
PRIOC = int(opt("prioc", "1"))
LADDR = int(opt("laddr", "0"))
XBY = int(opt("xby", "1"))
PKB = int(opt("pkb", "15"))
W64 = int(opt("w64", "0"))
R2 = int(opt("r2", "0"))
PADL = 288
XTP = (PADL + 2048) * 2
TP = 544
SCPB = LMP
PJ_S, PK_S = PJ, 7168
SCA = PB_S + PK_S
XTA = SCA + SCPB
XTB = EM_S + 4 * EMP
assert XTB + 4 * XTP <= 163840 and PK_S + SCPB + XTP <= PJ_S
CNT = CL_S
KP = 2112
FIXP = 68
TAPD = {("2", 0): 8 * 74, ("2", 8): 8 * 80, ("2", 4): 8 * 86, ("2", 12): 8 * 92, ("3", 4): 8 * 98, ("3", 12): 8 * 108}
WT = [(0, 1, -16), (8, 1, -16), (4, 2, -16), (12, 2, -24), (4, 3, -16), (12, 4, -24)]

def wtable():
    out = []
    for (sg, hw, off) in WT:
        for l in range(64):
            r, q = l & 15, l >> 4
            el = [0x3f80 if abs(off + 8 * q + jj - (r - sg - 4)) <= hw else 0 for jj in range(8)]
            out += [el[2 * i] | (el[2 * i + 1] << 16) for i in range(4)]
    return out

def gen_ssm(A0, stamps=False):
    A = Auto(A0)
    S_SG, S_CH, S_SCR, S_XT = 65, 66, 75, 76
    S_K1024 = 77
    S_XR, S_ISB = 82, 83
    def st(idx):
        if stamps:
            A.one("s_waitcnt lgkmcnt(0)")
            stamp(A0, idx, stamps); A.t += 3
    A(f"""s_mul_i32 s{S_SG}, s3, 9
    s_add_u32 s{S_SG}, s{S_SG}, s4
    s_lshl_b32 s{S_CH}, s{S_SG}, 3
    s_add_u32 s{S_CH}, s{S_CH}, s{S_WAVE}
    s_lshl_b32 s{S_T0}, s{S_CH}, 8
    s_lshl_b32 s{S_T1}, s{S_CH}, 1""")
    V_TRd, V_XD, V_BX, V_ZX, V_TAPR, V_TAPW, V_K0W, V_K1W, V_KR, V_L16, V_SCRV, V_CNT, V_XG = range(1, 14)
    X0, X1, X2, X3 = 16, 17, 18, 19
    WC = 20
    ACC = 44
    TF = 76
    AF = 116
    BR = 188
    LF = 44
    HF = 76
    DA, DB, DC = 108, 112, 240
    pool = list(range(116, 196, 4)) + [228, 232, 236]
    def alloc(): return pool.pop(0)
    def free(r): pool.append(r)
    P_LA, P_AI, P_CR, P_CI, P_DT, P_DS = 244, 245, 246, 247, 248, 249
    A(f"s_lshr_b32 s{S_ISB}, s{S_WAVE}, 2")
    touch(A0, 4, True)
    A(f"""s_lshl_b32 s{S_T0}, s{S_CH}, 8
    s_lshl_b32 s{S_T1}, s{S_CH}, 1
    v_lshl_add_u32 v{X0}, v0, 2, s{S_T0}
    v_mov_b32 v{X1}, s{S_T1}""")
    A0("s_waitcnt lgkmcnt(0)")
    A(f"""global_load_dword v{P_LA}, v{X0}, {s(S_LOGA,2)}
    global_load_ushort v{P_DT}, v{X1}, {s(S_LOGDT,2)}
    global_load_dword v{P_AI}, v{X0}, {s(S_AIM,2)}
    global_load_ushort v{P_DS}, v{X1}, {s(S_DSKIP,2)}
    global_load_dword v{P_CR}, v{X0}, {s(S_CRE,2)}
    global_load_dword v{P_CI}, v{X0}, {s(S_CIM,2)}""")
    kwait(A0, ["x", "ws", "dbg"], stamps)
    if stamps:
        stamp0(A0, stamps)
    if TOUCH: A(f"buffer_load_dword v253, v251, {s(SX,4)}, s9 offen")
    Z4 = alloc()
    A(f"""v_mov_b32 v{Z4}, 0
    v_mov_b32 v{Z4+1}, 0
    v_mov_b32 v{Z4+2}, 0
    v_mov_b32 v{Z4+3}, 0
    v_mov_b32 v{V_CNT}, {CNT}
    ds_write_b128 v{V_CNT}, {v(Z4,4)}
    ds_write_b128 v{V_CNT}, {v(Z4,4)} offset:16
    ds_write_b128 v{V_CNT}, {v(Z4,4)} offset:32
    s_lshl_b32 s{S_T0}, s{S_SG}, 4
    v_mul_u32_u24 v{X2}, {8*1152}, v0
    v_add_u32 v{V_XG}, s{S_T0}, v{X2}
    s_add_u32 s{S_XR}, s4, s{S_WAVE}
    s_and_b32 s{S_XR}, s{S_XR}, 3
    s_lshr_b32 s{S_ISB}, s{S_WAVE}, 2
    s_waitcnt lgkmcnt(0)
    s_barrier""")
    def aonly(fn, who=0):
        lab = A0.newlabel("L_na")
        A(f"s_cmp_eq_u32 s{S_ISB}, {who}")
        A0(f"s_cbranch_scc0 {lab}")
        fn()
        A0.label(lab)
    XL = 196
    S_XB0, S_XB1 = 86, 87
    def xload(ks, first=False):
        if not ks: return
        def f():
            if first:
                A0(f"s_mul_i32 s{S_XB0}, s{S_XR}, {512*1152}")
                A0(f"s_add_u32 s{S_XB1}, s{S_XB0}, {4*1152}")
            for k in ks:
                A0(f"buffer_load_dwordx4 {v(XL+4*k,4)}, v{V_XG}, {s(SX,4)}, s{S_XB0 if k < 4 else S_XB1} offen offset:{1152*(k%4)}")
        aonly(f, XBY)
    def pwait(n):
        l1 = A0.newlabel("L_pw"); l2 = A0.newlabel("L_pw")
        A0(f"""s_cmp_eq_u32 s{S_ISB}, {XBY}
        s_cbranch_scc0 {l1}
        s_waitcnt vmcnt({n + TOUCH})
        s_branch {l2}""")
        A0.label(l1)
        A0(f"s_waitcnt vmcnt({TOUCH})")
        A0.label(l2)
        A.vm = []
    def xpose():
        PL, PH = 84, 85
        def f():
            A0(f"""s_mov_b32 s{PL}, 0x05040100
            s_mov_b32 s{PH}, 0x07060302
            s_lshl_b32 s{S_T3}, s{S_XR}, 10
            s_add_u32 s{S_T3}, s{S_T3}, {XTA + 2*PADL}
            v_add_u32 v{V_XD}, s{S_T3}, v{V_L16}
            v_add_u32 v14, {XTB - XTA}, v{V_XD}
            v_mov_b32 v{X2}, 1
            s_waitcnt vmcnt(0)
            s_setprio 3""")
            for j in range(4):
                for hi in range(2):
                    o = 20 + 4 * ((2 * j + hi) % 4)
                    for k in range(4):
                        A0(f"v_perm_b32 v{o+k}, v{XL+8*k+4+j}, v{XL+8*k+j}, s{PH if hi else PL}")
                    c_ = 2 * j + hi
                    if c_ < 4: A0(f"ds_write_b128 v{V_XD}, {v(o,4)} offset:{c_*PJ_S}")
                    else: A0(f"ds_write_b128 v14, {v(o,4)} offset:{(c_-4)*XTP}")
            A0(f"""s_mov_b64 exec, 1
            ds_add_u32 v{V_CNT}, v{X2} offset:8
            s_mov_b64 exec, -1
            s_setprio {PRIOB if XBY else PRIO}
            s_waitcnt lgkmcnt(0)""")
        A("s_waitcnt lgkmcnt(0)")
        aonly(f, XBY)
    def wctab():
        A0("s_getpc_b64 s[78:79]")
        A0.label("L_ssm_pc")
        A(f"""s_add_u32 s78, s78, L_wtab-L_ssm_pc
        s_addc_u32 s79, s79, 0""")
        for i in range(6):
            if i == 4: A("s_add_u32 s78, s78, 4096\ns_addc_u32 s79, s79, 0")
            A(f"global_load_dwordx4 {v(WC+4*i,4)}, v{V_L16}, s[78:79] offset:{1024*(i%4)}")
    A(f"s_cmp_eq_u32 s{S_ISB}, 0")
    lab = A0.newlabel("L_np")
    A0(f"s_setprio {PRIOB}\ns_cbranch_scc0 {lab}\ns_setprio {PRIO}")
    A0.label(lab)
    xload(XS[0], True)
    I16, Q = X0, X1
    A(f"""v_lshlrev_b32 v{V_L16}, 4, v0
    s_and_b32 s{S_T0}, s{S_WAVE}, 3
    s_cmp_eq_u32 s{S_ISB}, 0
    s_cselect_b32 s{S_T1}, {PJ_S - SCPB}, 0
    s_cselect_b32 s{S_SCR}, {SCA}, 0
    s_cselect_b32 s{S_T2}, {PJ_S - XTP}, 0
    s_cselect_b32 s{S_XT}, {XTA - XTB}, 0
    s_add_u32 s{S_T1}, s{S_T1}, {SCPB}
    s_add_u32 s{S_T2}, s{S_T2}, {XTP}
    s_add_u32 s{S_XT}, s{S_XT}, {XTB}
    s_mul_i32 s{S_T1}, s{S_T1}, s{S_T0}
    s_mul_i32 s{S_T2}, s{S_T2}, s{S_T0}
    s_add_u32 s{S_SCR}, s{S_SCR}, s{S_T1}
    s_add_u32 s{S_XT}, s{S_XT}, s{S_T2}
    s_mov_b32 m0, s{S_SCR}
    s_mov_b32 s{S_EK}, 0
    s_mov_b32 s{S_PB}, {PB_S}
    s_mov_b32 s{S_B9}, 0
    s_mov_b32 s{S_CINC}, 0x101
    s_mov_b32 s{S_N1}, 8
    s_mov_b32 s{S_CA}, 0
    s_lshl_b32 s{S_FA}, s{S_SG}, {LGF}
    s_add_u32 s{S_FA}, s{S_FA}, {FL_S}
    v_and_b32 v{I16}, 15, v0
    v_lshrrev_b32 v{Q}, 4, v0
    v_mul_u32_u24 v{V_TRd}, {TP}, v{I16}
    v_lshl_add_u32 v{V_TRd}, v{Q}, 4, v{V_TRd}
    v_add_u32 v{V_TRd}, s{S_SCR}, v{V_TRd}
    v_add_u32 v{V_SCRV}, s{S_SCR}, v{V_L16}
    v_lshl_add_u32 v15, v0, 3, s{S_SCR}""")
    def late_addr():
        I16, Q = X0, X1
        A(f"v_and_b32 v{I16}, 15, v0\nv_lshrrev_b32 v{Q}, 4, v0")
        A(f"""v_lshlrev_b32 v{V_BX}, 5, v{I16}
    v_lshl_add_u32 v{V_BX}, v{Q}, 4, v{V_BX}
    s_add_u32 s{S_T0}, s{S_XT}, {2*(PADL-256-16)}
    v_add_u32 v{V_BX}, s{S_T0}, v{V_BX}""")
        A(f"""v_and_b32 v{X2}, 3, v0
    v_bfe_u32 v{X3}, v0, 2, 2
    v_lshl_add_u32 v{V_ZX}, v{X2}, 2, v{X3}
    v_lshlrev_b32 v{V_ZX}, 5, v{V_ZX}
    v_lshl_add_u32 v{V_ZX}, v{Q}, 4, v{V_ZX}
    s_add_u32 s{S_T0}, s{S_XT}, {2*(PADL-24)}
    v_add_u32 v{V_ZX}, s{S_T0}, v{V_ZX}""")
        A(f"""v_sub_u32 v{V_TAPR}, v{X2}, v{X3}
    v_lshlrev_b32 v{V_TAPR}, 3, v{V_TAPR}
    v_sub_u32 v{X2}, 4, v{Q}
    v_and_b32 v{X2}, 3, v{X2}
    v_mul_u32_u24 v{X2}, {KP}, v{X2}
    v_min_u32 v{X3}, 1, v{Q}
    v_lshlrev_b32 v{X3}, 3, v{X3}
    v_sub_u32 v{X2}, v{X2}, v{X3}
    s_add_u32 s{S_T0}, s{S_SCR}, 1024
    v_add3_u32 v{V_TAPR}, v{V_TAPR}, v{X2}, s{S_T0}""")
        A(f"""v_lshrrev_b32 v{X2}, 1, v{Q}
    v_lshrrev_b32 v{X3}, 2, v{I16}
    v_lshl_add_u32 v{X3}, v{X3}, 1, v{X2}
    v_mul_u32_u24 v{X3}, 96, v{X3}
    v_and_b32 v{V_TAPW}, 3, v{I16}
    v_lshl_add_u32 v{X3}, v{V_TAPW}, 4, v{X3}
    v_mul_u32_u24 v{V_TAPW}, 160, v{X2}
    v_lshl_add_u32 v{V_TAPW}, v{I16}, 4, v{V_TAPW}
    v_add_u32 v{V_TAPW}, {2*TAPD[('3',4)] - 2*TAPD[('2',0)] - 128}, v{V_TAPW}
    v_cmp_gt_u32 vcc, 8, v{I16}
    v_cndmask_b32 v{V_TAPW}, v{V_TAPW}, v{X3}, vcc
    v_and_b32 v{X3}, 1, v{Q}
    v_lshl_add_u32 v{V_TAPW}, v{X3}, 3, v{V_TAPW}
    s_add_u32 s{S_T0}, s{S_SCR}, {2*TAPD[('2',0)]}
    v_add_u32 v{V_TAPW}, s{S_T0}, v{V_TAPW}""")
        A(f"""v_and_b32 v{V_K1W}, 7, v{I16}
    v_lshlrev_b32 v{V_K1W}, 1, v{V_K1W}
    v_lshrrev_b32 v{V_K0W}, 3, v{I16}
    v_add_u32 v{V_K1W}, v{V_K1W}, v{V_K0W}
    v_lshlrev_b32 v{V_K1W}, 4, v{V_K1W}
    v_lshl_add_u32 v{V_K0W}, v{X2}, 8, v{V_K1W}
    v_lshl_add_u32 v{V_K0W}, v{X3}, 3, v{V_K0W}
    s_add_u32 s{S_T0}, s{S_SCR}, 1080
    v_sub_u32 v{V_K0W}, s{S_T0}, v{V_K0W}
    v_lshl_add_u32 v{V_K1W}, v{Q}, 8, v{V_K1W}
    s_add_u32 s{S_T0}, s{S_SCR}, {2*278}
    v_sub_u32 v{V_K1W}, s{S_T0}, v{V_K1W}""")
        A(f"""v_sub_u32 v{X2}, 15, v{I16}
    v_and_b32 v{X3}, 3, v{X2}
    v_mul_u32_u24 v{V_KR}, {KP}, v{X3}
    v_lshrrev_b32 v{X2}, 2, v{X2}
    v_lshl_add_u32 v{V_KR}, v{X2}, 3, v{V_KR}
    v_lshl_add_u32 v{V_KR}, v{Q}, 4, v{V_KR}
    v_add_u32 v{V_KR}, s{S_SCR}, v{V_KR}""")
    if LADDR == 0: late_addr()
    A(f"""v_add_u32 v{X2}, s{S_XT}, v{V_L16}
    s_mov_b32 exec_hi, 0xf
    ds_write_b128 v{X2}, {v(Z4,4)}
    s_mov_b64 exec, -1""")
    st(1)
    pwait(len(XS[0]))
    st(10)
    INV2PI = "0.15915494"
    zr, zi = alloc(), alloc()
    DT = zr + 2
    A(f"""v_lshlrev_b32 v{zr}, 16, v{P_LA}
    v_and_b32 v{zr+1}, 0xffff0000, v{P_LA}
    v_lshlrev_b32 v{DT}, 16, v{P_DT}
    v_mul_f32 v{zr}, s{S_L2E}, v{zr}
    v_mul_f32 v{zr+1}, s{S_L2E}, v{zr+1}
    v_mul_f32 v{DT}, s{S_L2E}, v{DT}
    v_exp_f32 v{zr}, v{zr}
    v_exp_f32 v{zr+1}, v{zr+1}
    v_exp_f32 v{DT}, v{DT}
    v_lshlrev_b32 v{zi}, 16, v{P_AI}
    v_and_b32 v{zi+1}, 0xffff0000, v{P_AI}
    v_cvt_pk_bf16_f32 v{zr+1}, v{zr}, v{zr+1}
    v_cvt_pk_bf16_f32 v{DT}, v{DT}, v{DT}
    v_lshlrev_b32 v{zr}, 16, v{zr+1}
    v_and_b32 v{zr+1}, 0xffff0000, v{zr+1}
    v_and_b32 v{DT}, 0xffff0000, v{DT}
    v_mul_f32 v{zr}, v{zr}, v{DT}
    v_mul_f32 v{zr+1}, v{zr+1}, v{DT}
    v_mul_f32 v{zi}, v{zi}, v{DT}
    v_mul_f32 v{zi+1}, v{zi+1}, v{DT}
    v_mul_f32 v{zr}, s{S_L2E}, v{zr}
    v_mul_f32 v{zr+1}, s{S_L2E}, v{zr+1}
    v_mul_f32 v{zi}, {INV2PI}, v{zi}
    v_mul_f32 v{zi+1}, {INV2PI}, v{zi+1}
    v_add_f32 v{DT}, v{DT}, v{DT}""")
    def direct(p):
        e = alloc(); t = alloc()
        pf = struct.unpack("<I", struct.pack("<f", float(p)))[0]
        for x in range(2):
            A(f"v_mul_f32 v{t+x}, {pf:#x}, v{zr+x}")
            A(f"v_mul_f32 v{t+2+x}, {pf:#x}, v{zi+x}")
        for x in range(2):
            A(f"v_exp_f32 v{t+x}, -v{t+x}")
            A(f"v_fract_f32 v{t+2+x}, v{t+2+x}")
        for x in range(2):
            A(f"v_cos_f32 v{e+2*x}, v{t+2+x}")
            A(f"v_sin_f32 v{e+2*x+1}, v{t+2+x}")
        for x in range(2):
            A(f"v_mul_f32 v{e+2*x}, v{t+x}, v{e+2*x}")
            A(f"v_mul_f32 v{e+2*x+1}, v{t+x}, v{e+2*x+1}")
        free(t)
        return e
    pend = []
    def drain(stage):
        if not pend: return
        if stage == 0:
            for x in pend[0][0]: A(x)
            pend[0] = ([], pend[0][1])
        else:
            c, w_ = pend.pop(0)
            for x in c: A(x)
            for x in w_: A(x)
    def flush_puts():
        while pend: drain(1)
    ncm = [0]
    lim = [99]
    def cmul(a_, b_):
        d = alloc()
        ncm[0] += 1
        if ncm[0] <= lim[0]:
            for x in (0, 2): A(f"v_pk_mul_f32 {v(d+x,2)}, {v(a_+x,2)}, {v(b_+x,2)} op_sel:[1,1] op_sel_hi:[1,0]")
            drain(0)
            for x in (0, 2): A(f"v_pk_fma_f32 {v(d+x,2)}, {v(a_+x,2)}, {v(b_+x,2)}, {v(d+x,2)} op_sel:[0,0,0] op_sel_hi:[0,1,1] neg_lo:[0,0,1]")
            drain(1)
        else:
            for x in (0, 2): A(f"v_mul_f32 v{d+x}, v{a_+x}, v{b_+x}")
            for x in (0, 2): A(f"v_mul_f32 v{d+x+1}, v{a_+x+1}, v{b_+x}")
            drain(0)
            for x in (0, 2): A(f"v_fma_f32 v{d+x}, -v{a_+x+1}, v{b_+x+1}, v{d+x}")
            for x in (0, 2): A(f"v_fmac_f32 v{d+x+1}, v{a_+x}, v{b_+x+1}")
            drain(1)
        return d
    wtmp = [alloc(), alloc()]
    wk = [0]
    def wr(w, row):
        if W64: return [f"ds_write_b64 v15, {v(w,2)} offset:{row*TP}"]
        return [f"ds_write_addtid_b32 v{w} offset:{row*TP}", f"ds_write_addtid_b32 v{w+1} offset:{row*TP+256}"]
    def put(e, row, neg=False):
        w = wtmp[(wk[0] >> 1) & 1] + 2 * (wk[0] & 1); wk[0] += 1
        n = "-" if neg else ""
        while len(pend) >= 2: drain(1)
        pend.append(([f"v_cvt_pk_bf16_f32 v{w}, v{e}, {n}v{e+1}", f"v_cvt_pk_bf16_f32 v{w+1}, v{e+2}, {n}v{e+3}"], wr(w, row)))
    def rdfr(base):
        flush_puts()
        for ks in range(8):
            A(f"ds_read_b128 {v(base+4*ks,4)}, v{V_TRd} offset:{64*ks}")
    def mm(D, swap):
        for ks in range(8):
            a_, b_ = (LF, HF) if swap else (HF, LF)
            A(f"v_mfma_f32_16x16x32_bf16 {v(D,4)}, {v(a_+4*ks,4)}, {v(b_+4*ks,4)}, {'0' if ks == 0 else v(D,4)}")
    R8 = direct(8)
    L = alloc()
    A(f"""v_lshlrev_b32 v{L}, 16, v{P_CR}
    v_lshlrev_b32 v{L+1}, 16, v{P_CI}
    v_and_b32 v{L+2}, 0xffff0000, v{P_CR}
    v_and_b32 v{L+3}, 0xffff0000, v{P_CI}""")
    for x in range(4): A(f"v_mul_f32 v{L+x}, v{DT}, v{L+x}")
    for j in range(16):
        if j == 2: xload(XS[1])
        if j == 10: xload(XS[2])
        put(L, (j >> 1) + 8 * (j & 1), neg=True)
        if j < 15:
            n_ = cmul(L, R8); free(L); L = n_
    free(L)
    rdfr(LF)
    st(2)
    def tables(isb):
        if isb == XBY: xload(XS[3])
        E1 = direct(1)
        G1 = direct(128)
        A(f"v_mov_b32 v{X2}, 0x3f80")
        A(f"ds_write_addtid_b32 v{X2}\nds_write_addtid_b32 v{X2} offset:256")
        put(G1, 8)
        H = {1: E1, 8: R8}
        for i in range(1, 8):
            if i == 2 and isb == XBY: xload(XS[4])
            if XPOS == 10 + i and isb == XBY: xpose()
            if i > 1: H[i] = cmul(H[i-1], E1)
            put(H[i], i)
            t = cmul(H[i], G1); put(t, 8 + i); free(t)
            if i - 1 in (3, 5): free(H[i-1])
        free(H[7])
        rdfr(HF)
        if XPOS == 2 and isb == XBY: xpose()
        G2 = cmul(G1, G1); G3 = cmul(G2, G1); G4 = cmul(G3, G1)
        put(G2, 8)
        for gi, G in enumerate((G2, G3)):
            for k, i in enumerate((2, 4, 6, 8)):
                t = cmul(H[i], G); put(t, 4 * gi + k); free(t)
            if gi == 0: mm(DA, False)
        rdfr(HF)
        free(G2); free(G3); free(H[2]); free(H[6]); free(E1)
        if XPOS == 0 and isb == XBY: xpose()
        P = cmul(G4, H[4]); Qv = cmul(G4, R8)
        free(G4); free(H[4]); free(R8)
        for h in range(12):
            if h < 4:
                put(P, h)
                if h < 3: n_ = cmul(P, G1); free(P); P = n_
            put(Qv, 4 + h)
            if h < 11: n_ = cmul(Qv, G1); free(Qv); Qv = n_
            if h == 2: mm(DB, False)
        rdfr(HF)
    if XPOS == 3: xpose()
    import copy
    lb = A0.newlabel("L_tb"); lj = A0.newlabel("L_tj")
    A(f"s_cmp_eq_u32 s{S_ISB}, 0")
    A0(f"s_cbranch_scc0 {lb}")
    sv = (list(pool), wk[0], ncm[0], copy.deepcopy({k: x for k, x in A.__dict__.items() if k != "A"}))
    lim[0] = PKN
    tables(0)
    A0(f"s_branch {lj}")
    A0.label(lb)
    pool[:] = sv[0]; wk[0] = sv[1]; ncm[0] = sv[2]; A.__dict__.update(sv[3])
    lim[0] = PKB
    tables(1)
    A0.label(lj)
    A("s_nop 1")
    if LADDR == 1: late_addr()
    st(3)
    A(f"ds_write_b128 v{V_SCRV}, {v(Z4,4)}")
    A(f"ds_write_b128 v{V_SCRV}, {v(Z4,4)} offset:1024")
    PA, PB, PC = 228, 232, 236
    A(f"""v_lshlrev_b32 v{X2}, 16, v{P_DS}
    s_mov_b64 exec, 1
    v_add_f32 v{DA}, v{DA}, v{X2}
    s_mov_b64 exec, -1
    v_cvt_pk_bf16_f32 v{PA}, v{DA+3}, v{DA+2}
    v_cvt_pk_bf16_f32 v{PA+1}, v{DA+1}, v{DA}
    v_cvt_pk_bf16_f32 v{PB}, v{DB+3}, v{DB+3}
    v_cvt_pk_bf16_f32 v{PB+1}, v{DB+3}, v{DB+2}
    v_cvt_pk_bf16_f32 v{PB+2}, v{DB+1}, v{DB+1}
    v_cvt_pk_bf16_f32 v{PB+3}, v{DB+1}, v{DB}
    v_cvt_pk_bf16_f32 v{PA+2}, v{DB}, v{DB}
    v_mov_b32 v{X3}, s{S_SCR}""")
    mm(DC, True)
    A(f"""ds_write_b64 v{V_K0W}, {v(PA,2)}
    s_mov_b32 exec_hi, 0
    ds_write2_b32 v{V_K1W}, v{PB}, v{PB+1} offset0:0 offset1:1
    ds_write2_b32 v{V_K1W}, v{PB+2}, v{PB+3} offset0:2 offset1:3
    s_mov_b32 exec_lo, 0x80000000
    ds_write_b16 v{X3}, v{PB} offset:58
    s_mov_b32 exec_lo, 0
    s_mov_b32 exec_hi, 1
    ds_write_b32 v{X3}, v{PA+2} offset:572
    s_mov_b64 exec, -1""")
    if XPOS == 1: xpose()
    wctab()
    st(8)
    A(f"""v_readlane_b32 s{S_K1024}, v{DC+3}, 55
    s_mov_b32 exec_lo, 0
    s_mov_b32 exec_hi, {1 << (55-32):#x}
    v_mov_b32 v{DC+3}, 0
    s_mov_b64 exec, -1
    v_cvt_pk_bf16_f32 v{PC}, v{DC}, v{DC+1}
    v_cvt_pk_bf16_f32 v{PC+1}, v{DC+2}, v{DC+3}
    v_mov_b32 v{X3}, s{S_K1024}
    v_cvt_pk_bf16_f32 v{X3}, v{X3}, v{X3}
    v_lshl_add_u32 v{X2}, v0, 1, s{S_SCR}
    ds_write_b64 v{V_TAPW}, {v(PC,2)}
    s_mov_b64 exec, 0x7f
    ds_write_b16 v{X2}, v{X3} offset:{16*FIXP+38}
    s_mov_b64 exec, -1""")
    for rd in range(2):
        E = 188 + 8 * rd
        A(f"ds_read_b128 {v(E,4)}, v{V_SCRV} offset:{1024*rd}")
        A(f"ds_read_b64 {v(E+4,2)}, v{V_SCRV} offset:{1024*rd+16}")
    for rd in range(2):
        E = 188 + 8 * rd
        O = 204 + 12 * rd
        for i in range(4): A(f"v_alignbit_b32 v{O+i}, v{E+i+1}, v{E+i}, 16")
        A(f"ds_write_b128 v{V_SCRV}, {v(O,4)} offset:{KP + 1024*rd}")
        for i in range(4): A(f"v_mov_b32 v{O+4+i}, v{E+i+1}")
        A(f"ds_write_b128 v{V_SCRV}, {v(O+4,4)} offset:{2*KP + 1024*rd}")
        for i in range(4): A(f"v_alignbit_b32 v{O+8+i}, v{E+i+2}, v{E+i+1}, 16")
        A(f"ds_write_b128 v{V_SCRV}, {v(O+8,4)} offset:{3*KP + 1024*rd}")
    st(9)
    def afrag(w):
        off = 16 * (64 - 4 * w) if w < 17 else 16 * FIXP
        if R2:
            A(f"ds_read2_b64 {v(AF+4*w,4)}, v{V_KR} offset0:{off//8} offset1:{off//8+1}")
            return
        A(f"ds_read_b64 {v(AF+4*w,2)}, v{V_KR} offset:{off}")
        A(f"ds_read_b64 {v(AF+4*w+2,2)}, v{V_KR} offset:{off+8}")
    for w in (8, 16, 7, 15, 6, 14, 5, 13, 4, 12, 3, 11, 2, 10, 1, 9, 0, 17): afrag(w)
    tf = {}
    k = 0
    for pr in range(2):
        for D_ in (2, 3, 4):
            tf[("2", pr, D_)] = TF + 4 * k; k += 1
            for u in range(2):
                sg = (0, 8)[u] if pr == 0 else (4, 12)[u]
                A(f"ds_read_b64_tr_b16 {v(tf[('2',pr,D_)]+2*u,2)}, v{V_TAPR} offset:{2*TAPD[('2',sg)] - 1024 + 32*(D_-2)}")
    for D_ in (4, 5, 6, 7):
        tf[("3", 0, D_)] = TF + 4 * k; k += 1
        for u in range(2):
            A(f"ds_read_b64_tr_b16 {v(tf[('3',0,D_)]+2*u,2)}, v{V_TAPR} offset:{2*TAPD[('3',(4,12)[u])] - 1024 + 32*(D_-4)}")
    st(13)
    lp = A0.newlabel("L_xw"); le = A0.newlabel("L_xe")
    A0(f"s_mov_b32 s{S_T1}, 0")
    l0 = A0.newlabel("L_x0")
    A0(f"s_branch {l0}")
    A0.label(lp)
    A0("s_sleep 2")
    A0.label(l0)
    A0(f"""ds_read_b32 v{X2}, v{V_CNT} offset:8
    s_add_u32 s{S_T1}, s{S_T1}, 1
    s_cmp_gt_u32 s{S_T1}, {SPIN}
    s_cbranch_scc1 {le}
    s_waitcnt lgkmcnt(0)
    v_readfirstlane_b32 s{S_T0}, v{X2}
    s_cmp_lt_u32 s{S_T0}, 4
    s_cbranch_scc1 {lp}""")
    A0.label(le)
    A.ds = []
    A0(f"s_setprio {PRIOC}")
    st(4)
    first = set()
    def accm(i, a_, b_):
        c = v(ACC + 4 * i, 4) if i in first else "0"
        first.add(i)
        return f"v_mfma_f32_16x16x32_bf16 {v(ACC+4*i,4)}, {v(a_,4)}, {v(b_,4)}, {c}"
    items = []
    for s_ in range(-8, 57):
        ms = [(i, AF + 4 * (8 * i - s_)) for i in range(8) if 0 <= 8 * i - s_ <= 16]
        items.append((64 * (s_ + 8), ms))
    for i in range(3, 8):
        items.append((2 * (256 * i - 760), [(i, AF + 68)]))
    NR, LA = 6, 5
    ZX = [212, 216]
    ZD = 220
    ZA = 244
    zsteps = []
    for cb in range(6):
        nz = 6 if cb < 4 else 4
        rd = [f"ds_read_b128 {v(ZX[0],4)}, v{V_ZX} offset:{512*cb+16}", f"ds_read_b128 {v(ZX[1],4)}, v{V_ZX} offset:{512*cb}"]
        zm = [f"v_mfma_f32_16x16x32_bf16 {v(ZD+4*k,4)}, {v(ZX[0] if WT[k][2] == -16 else ZX[1],4)}, {v(WC+4*k,4)}, 0" for k in range(nz)]
        za = [ZA, ZA + 4, X0]
        cv = []
        for k in range(nz):
            cv.append(f"v_cvt_pk_bf16_f32 v{za[k>>1]+2*(k&1)}, v{ZD+4*k}, v{ZD+4*k+1}")
            cv.append(f"v_cvt_pk_bf16_f32 v{za[k>>1]+2*(k&1)+1}, v{ZD+4*k+2}, v{ZD+4*k+3}")
        pm = []
        for pr in range(2):
            for D_ in (2, 3, 4):
                if cb + D_ <= 7: pm.append((cb + D_, za[pr], tf[("2", pr, D_)]))
        if cb < 4:
            for D_ in (4, 5, 6, 7):
                if cb + D_ <= 7: pm.append((cb + D_, za[2], tf[("3", 0, D_)]))
        zsteps.append((rd, zm, cv, pm))
    PER = 11
    for j in range(min(LA, len(items))):
        A(f"ds_read_b128 {v(BR+4*(j%NR),4)}, v{V_BX} offset:{items[j][0]}")
    pend_cv = []
    for j, (off, ms) in enumerate(items):
        if j == len(items) - 12:
            A(f"v_mov_b32 v13, 0\nbuffer_load_dword v14, v13, {s(SDBG,4)}, 0 offen sc0 sc1\nbuffer_load_dword v15, v13, {s(SDBG,4)}, 0 offen offset:128 sc0 sc1")
        cb, ph = divmod(j, PER)
        if cb < 6:
            rd, zm, cv, pm = zsteps[cb]
            if ph == 0:
                for x in rd: A(x)
            if ph == 3:
                for x in zm: A(x)
            if ph == 5: pend_cv = list(cv)
            if ph == 10:
                for x in pend_cv: A(x)
                pend_cv = []
                for (i, a_, b_) in pm: A(accm(i, a_, b_))
        for n_, (i, a_) in enumerate(ms):
            A(accm(i, a_, BR + 4 * (j % NR)))
            if n_ == 0 and j + LA < len(items):
                A(f"ds_read_b128 {v(BR+4*((j+LA)%NR),4)}, v{V_BX} offset:{items[j+LA][0]}")
            for _ in range(2 if n_ else 1):
                if pend_cv: A(pend_cv.pop(0))
    st(5)
    TBP = 4608
    A(f"""s_and_b32 s{S_T0}, s{S_WAVE}, 3
    s_cmp_eq_u32 s{S_ISB}, 0
    s_cselect_b32 s{S_T1}, {EM_S - (XTB + 576)}, 0
    s_add_u32 s{S_T1}, s{S_T1}, {XTB + 576}
    s_mul_i32 s{S_T2}, s{S_T0}, {TBP}
    s_add_u32 s{S_T2}, s{S_T2}, s{S_T1}
    v_lshrrev_b32 v1, 4, v0
    v_lshlrev_b32 v1, 6, v1
    v_xor_b32 v1, v1, v{V_L16}
    v_add_u32 v1, s{S_T2}, v1
    v_mov_b32 v2, 1
    s_lshl_b32 s{S_T3}, s{S_ISB}, 2
    v_add_u32 v3, s{S_T3}, v{V_CNT}""")
    for i2 in range(4):
        o = BR + 4 * i2
        for x in range(4):
            A(f"v_cvt_pk_bf16_f32 v{o+x}, v{ACC+8*i2+2*x}, v{ACC+8*i2+2*x+1}")
        A(f"ds_write_b128 v1, {v(o,4)} offset:{1024*i2}")
    A(f"""s_mov_b64 exec, 1
    ds_add_u32 v3, v2 offset:16
    s_mov_b64 exec, -1
    v_and_b32 v4, 1, v0
    v_mul_u32_u24 v4, {2*TBP}, v4
    v_bfe_u32 v5, v0, 1, 2
    v_lshl_add_u32 v4, v5, 8, v4
    v_lshlrev_b32 v5, 2, v5
    v_lshrrev_b32 v6, 3, v0
    v_xor_b32 v5, v5, v6
    v_xor_b32 v6, 8, v5
    s_lshl_b32 s{S_T2}, s{S_T0}, 10
    s_add_u32 s{S_T2}, s{S_T2}, s{S_T1}
    v_add_u32 v4, s{S_T2}, v4
    v_lshl_add_u32 v5, v5, 4, v4
    v_lshl_add_u32 v6, v6, 4, v4
    s_lshl_b32 s{S_T0}, s{S_CH}, 12
    s_add_u32 s{S_T0}, s{S_T0}, {WS_BT}
    s_mov_b32 s{S_T1}, 0""")
    A0("s_setprio 0")
    rdy_wait(A0, 13, 14, S_T1, S_T2)
    rdy_wait(A0, 13, 15, S_T1, S_T2, off=128)
    A.vm = []
    def f():
        A0(f"""s_bfe_u32 s{S_T1}, s2, 0x10002
        s_lshl_b32 s{S_T1}, s{S_T1}, 4
        s_lshr_b32 s{S_T2}, s2, 7
        s_lshl_b32 s{S_T2}, s{S_T2}, 3
        s_add_u32 s{S_T1}, s{S_T1}, s{S_T2}
        s_add_u32 s{S_T1}, s{S_T1}, s{S_WAVE}
        s_mul_i32 s{S_T1}, s{S_T1}, {WPU}
        s_add_u32 s{S_T1}, s{S_T1}, {WS_WP + 4*WPU}
        s_sub_u32 s{S_T2}, s{S_SCR}, {PK_S}""")
        wp_dma(A0, S_T2, S_T1, S_T3, V_L16)
    aonly(f)
    A0(f"s_mov_b32 s{S_T1}, 0")
    lp = A0.newlabel("L_tw"); le = A0.newlabel("L_te")
    A0.label(lp)
    A0(f"""ds_read_b32 v2, v3 offset:16
    s_add_u32 s{S_T1}, s{S_T1}, 1
    s_cmp_gt_u32 s{S_T1}, {SPIN}
    s_cbranch_scc1 {le}
    s_waitcnt lgkmcnt(0)
    v_readfirstlane_b32 s{S_T2}, v2
    s_cmp_ge_u32 s{S_T2}, 4
    s_cbranch_scc1 {le}
    s_sleep 1
    s_branch {lp}""")
    A0.label(le)
    A.ds = []
    for s_ in range(4):
        for x in range(2):
            A(f"ds_read_b64 {v(44+4*s_+2*x,2)}, v{5+(s_&1)} offset:{x*TBP + 8*(s_>>1)}")
    for s_ in range(4):
        A(f"buffer_store_dwordx4 {v(44+4*s_,4)}, v{V_L16}, {s(SWS,4)}, s{S_T0} offen offset:{1024*s_} sc0 sc1")
    st(6)
    A("s_nop 4")
    A("s_branch L_p2")

def gen_wtab(A):
    A.raw(".p2align 8")
    A.label("L_wtab")
    t = wtable()
    for i in range(0, len(t), 8):
        A.raw("  .long " + ", ".join(f"{x:#010x}" for x in t[i:i+8]))
```

```python
import sys
from asm import *
from l1gemm import *
from p2 import gen_p2
from ssm import gen_ssm, gen_wtab

stamps = "--stamps" in sys.argv
out = [a for a in sys.argv[1:] if not a.startswith("--")][0]

A = Asm()
HDR = """; generated by gen.py
; @launch grid=(256,1,1) block=(512,1,1) lds=163840
.amdgcn_target "amdgcn-amd-amdhsa--gfx950"
.text
"""
KN = "gated_mix__linear_attn_block__ssm_conv_s4d__prompt_kernel"
A.raw(f".globl {KN}\n.p2align 8\n.type {KN},@function\n{KN}:")
if stamps:
    A("s_memtime s[92:93]\ns_memrealtime s[94:95]")
A(f"""s_load_dwordx16 s[16:31], s[0:1], 0
s_load_dwordx8 s[32:39], s[0:1], 64
s_load_dwordx4 s[40:43], s[0:1], 96
s_getpc_b64 s[4:5]""")
A.label("L_pc0")
A(f"""v_lshlrev_b32 v2, 6, v0
v_lshrrev_b32 v1, 6, v0
global_load_dword v253, v2, s[4:5]
s_cmp_ge_u32 s2, 256
s_cbranch_scc1 L1_exit
v_readfirstlane_b32 s{S_WAVE}, v1
v_and_b32 v0, 63, v0
s_and_b32 s3, s2, 7
s_lshr_b32 s4, s2, 3
s_mov_b32 s{S_L2E}, {LOG2E:#x}
s_cmp_lt_u32 s4, 9
s_cbranch_scc1 L1_ssm
{"s_endpgm" if "--nogemm" in sys.argv else ""}
s_and_b32 s5, s3, 3
s_lshl_b32 s5, s5, 2
s_lshr_b32 s6, s3, 2
s_mov_b32 s10, s4
s_cmp_lt_u32 s4, 15
s_cbranch_scc1 L1_q
s_cmp_eq_u32 s4, 31
s_cbranch_scc1 L1_aux""")
A(f"""s_sub_u32 s4, s4, 15
s_and_b32 s7, s4, 3
s_add_u32 s{S_RB}, s5, s7
s_lshr_b32 s8, s4, 2
s_lshl_b32 s6, s6, 2
s_add_u32 s{S_CG}, s6, s8
s_add_u32 s7, s7, s8
s_and_b32 s7, s7, 3
s_lshl_b32 s{S_ROT}, s7, 1
s_cmp_lt_u32 s{S_WAVE}, 4
s_cbranch_scc1 L1_kv_c
s_setprio 3
s_cmp_eq_u32 s{S_WAVE}, 7
s_cbranch_scc1 L1_kv_chore""")
gen_loader(A, "kv", stamps)
A.label("L1_q")
A(f"""s_sub_u32 s4, s4, 9
s_mul_i32 s6, s6, 6
s_add_u32 s4, s4, s6
s_and_b32 s7, s4, 3
s_add_u32 s{S_RB}, s5, s7
s_lshr_b32 s{S_CG}, s4, 2
s_add_u32 s7, s7, s{S_CG}
s_and_b32 s7, s7, 3
s_lshl_b32 s7, s7, 1
s_add_u32 s{S_ROT}, s7, 1
s_cmp_lt_u32 s{S_WAVE}, 4
s_cbranch_scc1 L1_q_c
s_setprio 3""")
gen_loader(A, "q", stamps)
A.label("L1_kv_chore")
gen_chore(A, stamps)
A.label("L1_aux")
gen_aux(A, stamps)
A.raw(".p2align 3")
A.label("L1_ssm")
gen_ssm(A, stamps)
A.raw(".p2align 3")
A.label("L1_kv_c")
gen_compute(A, "kv", stamps)
A.raw(".p2align 3")
A.label("L1_q_c")
gen_compute(A, "q", stamps)
A.label("L1_exit")
A("s_endpgm")
A.label("L_wret")
A(f"""s_mov_b64 exec, -1
s_cmp_eq_u32 s{S_N1}, 4
s_cbranch_scc1 L_wr_kv
s_cmp_eq_u32 s{S_N1}, 1
s_cbranch_scc1 L_wr_q
s_endpgm""")
gen_p2(A, stamps)
gen_wtab(A)
A.label("L_code_end")
WK = int([a_ for a_ in sys.argv if a_.startswith("--wk=")][0][5:]) if any(a_.startswith("--wk=") for a_ in sys.argv) else 0
def add_walk(lines):
    out = []; i = 0
    while i < len(lines):
        ln = lines[i]
        if not ln.startswith(";WALK "):
            out.append(ln); i += 1; continue
        _, name, parts = ln.split(); parts = int(parts)
        j = lines.index(";WALKEND", i)
        reg = lines[i + 1:j]
        isins = lambda l: l.startswith("  ") and not l.strip().startswith((";", "."))
        pos = [0]; c = 0
        for k, l in enumerate(reg):
            if c >= WK and isins(l) and isins(reg[k-1]) and " exec" not in reg[k-1]:
                pos.append(k); c = 0
            if isins(l): c += 1
        n = len(pos)
        starts = [n * p_ // parts for p_ in range(parts)]
        for k, l in enumerate(reg):
            if k in pos and WK:
                m = pos.index(k)
                if m in starts: out.append(f"W_{name}_{starts.index(m)}:")
                out.append(f"Wl_{name}_{m}:")
                last = (m + 1 == n) or (m + 1 in starts)
                out.append(f"  s_cbranch_execz {'L_wret' if last else f'Wl_{name}_{m+1}'}")
            out.append(l)
        i = j + 1
    return out
A.lines = add_walk(A.lines)
body = A.text()
NT = [a_ for a_ in sys.argv if a_.startswith("--nt=")]
if NT:
    for c, reg in (("x", s(SX,4)), ("w", s(SW,4))):
        if c in NT[0][5:]:
            body = "\n".join((l[:-4] + " nt lds" if (l.endswith(" lds") and reg in l) else l) for l in body.split("\n"))
if NODMA:
    body = "\n".join(l for l in body.split("\n") if not l.strip().endswith(" lds")) + "\n"
desc = '.section .rodata,"a"\n' + kdesc(KN, 256)
open(out, "w").write(HDR + body + desc)
```

```python
from asm import *
from l1gemm import WS_STAMP, WS_SIZE
def gen_diag(A):
    A.raw(".globl dg_kernel\n.p2align 8\n.type dg_kernel,@function\ndg_kernel:")
    A(f"""s_cmp_lg_u32 s2, 0
    s_cbranch_scc1 L_dg_exit
    s_load_dwordx4 s[4:7], s[0:1], 96
    v_lshlrev_b32 v1, 9, v0
    v_add_u32 v1, {WS_STAMP}, v1
    v_add_u32 v2, 0x40000, v1
    v_lshlrev_b32 v3, 2, v0
    v_mov_b32 v4, 0
    v_mov_b32 v5, -1
    v_mov_b32 v20, 0
    v_cmp_eq_u32 vcc, 0, v0
    v_cndmask_b32 v4, v4, v5, vcc
    v_cmp_eq_u32 vcc, 5, v0
    v_cndmask_b32 v4, v4, v5, vcc
    ds_write_b32 v3, v4
    s_waitcnt lgkmcnt(0)""")
    srd(A, 8, 6, 7, WS_SIZE)
    srd(A, 12, 4, 5, 256)
    A("s_barrier")
    for w in range(8):
        A(f"buffer_load_dwordx2 v[{30+2*w}:{31+2*w}], v1, s[8:11], 0 offen offset:{64*w+56}")
        A(f"buffer_load_dwordx2 v[{50+2*w}:{51+2*w}], v2, s[8:11], 0 offen offset:{64*w+56}")
    for k in range(4):
        A(f"buffer_load_dwordx4 v[{70+4*k}:{73+4*k}], v1, s[8:11], 0 offen offset:{16*k}")
        A(f"buffer_load_dwordx4 v[{86+4*k}:{89+4*k}], v2, s[8:11], 0 offen offset:{16*k}")
        A(f"buffer_load_dwordx4 v[{102+4*k}:{105+4*k}], v1, s[8:11], 0 offen offset:{448+16*k}")
    A("s_waitcnt vmcnt(0)")
    for w in range(8):
        A(f"ds_min_u32 v20, v{30+2*w} offset:0\nds_max_u32 v20, v{30+2*w} offset:4\nds_min_u32 v20, v{51+2*w} offset:20\nds_max_u32 v20, v{51+2*w} offset:24")
    def rng(lo, hi, body):
        l = A.newlabel("L_dg")
        A(f"s_mov_b64 exec, -1\nv_cmp_le_u32 vcc, {lo}, v0\ns_and_b64 exec, exec, vcc\nv_cmp_gt_u32 vcc, {hi}, v0\ns_and_b64 exec, exec, vcc\ns_cbranch_execz {l}")
        A(body)
        A.label(l)
    rng(0, 72, "\n".join(f"ds_max_u32 v20, v{31+2*w} offset:8" for w in range(8)))
    rng(72, 120, "\n".join(f"ds_max_u32 v20, v{31+2*w} offset:12" for w in range(4)))
    rng(120, 248, "\n".join(f"ds_max_u32 v20, v{31+2*w} offset:16" for w in range(4)))
    mx = lambda r, base, slot: f"v_sub_u32 v6, v{r}, v{base}\nds_max_u32 v20, v6 offset:{4*slot}"
    rng(120, 248, "\n".join([mx(70+2, 70, 7), mx(70+5, 70, 8), mx(86+3, 70, 9), mx(86+4, 70, 10), mx(86+12, 70, 11)]))
    rng(248, 256, "\n".join([mx(70+2, 70, 12), mx(102+2, 102, 13)]))
    rng(0, 72, "\n".join([mx(70+4, 70, 14), mx(102+5, 102, 15)]))
    A(f"""s_mov_b64 exec, -1
    s_waitcnt lgkmcnt(0)
    s_barrier
    ds_read_b32 v4, v3
    ds_read_b32 v5, v20
    s_waitcnt lgkmcnt(0)
    v_sub_u32 v6, v4, v5
    v_cmp_gt_u32 vcc, 7, v0
    v_cndmask_b32 v4, v4, v6, vcc
    v_cmp_gt_u32 vcc, 16, v0
    s_and_b64 exec, exec, vcc
    s_cbranch_execz L_dg_exit
    buffer_store_dword v4, v3, s[12:15], 0 offen""")
    A.label("L_dg_exit")
    A("s_endpgm")
```

```python
import sys
from asm import *
from l1gemm import *
from p2 import gen_p2
from ssm import gen_ssm, gen_wtab

stamps = "--stamps" in sys.argv
out = [a for a in sys.argv[1:] if not a.startswith("--")][0]

A = Asm()
HDR = """; generated by gen.py
; @launch grid=(256,1,1) block=(512,1,1) lds=163840
.amdgcn_target "amdgcn-amd-amdhsa--gfx950"
.text
"""
KN = "gated_mix__linear_attn_block__ssm_conv_s4d__prompt_kernel"
A.raw(f".globl {KN}\n.p2align 8\n.type {KN},@function\n{KN}:")
if stamps:
    A("s_memtime s[92:93]\ns_memrealtime s[94:95]")
A(f"""s_load_dwordx16 s[16:31], s[0:1], 0
s_load_dwordx8 s[32:39], s[0:1], 64
s_load_dwordx4 s[40:43], s[0:1], 96
s_getpc_b64 s[4:5]""")
A.label("L_pc0")
A(f"""v_lshlrev_b32 v2, 6, v0
v_lshrrev_b32 v1, 6, v0
global_load_dword v253, v2, s[4:5]
s_cmp_ge_u32 s2, 256
s_cbranch_scc1 L1_exit
v_readfirstlane_b32 s{S_WAVE}, v1
v_and_b32 v0, 63, v0
s_and_b32 s3, s2, 7
s_lshr_b32 s4, s2, 3
s_mov_b32 s{S_L2E}, {LOG2E:#x}
s_cmp_lt_u32 s4, 9
s_cbranch_scc1 L1_ssm
{"s_endpgm" if "--nogemm" in sys.argv else ""}
s_and_b32 s5, s3, 3
s_lshl_b32 s5, s5, 2
s_lshr_b32 s6, s3, 2
s_mov_b32 s10, s4
s_cmp_lt_u32 s4, 15
s_cbranch_scc1 L1_q
s_cmp_eq_u32 s4, 31
s_cbranch_scc1 L1_aux""")
A(f"""s_sub_u32 s4, s4, 15
s_and_b32 s7, s4, 3
s_add_u32 s{S_RB}, s5, s7
s_lshr_b32 s8, s4, 2
s_lshl_b32 s6, s6, 2
s_add_u32 s{S_CG}, s6, s8
s_add_u32 s7, s7, s8
s_and_b32 s7, s7, 3
s_lshl_b32 s{S_ROT}, s7, 1
s_cmp_lt_u32 s{S_WAVE}, 4
s_cbranch_scc1 L1_kv_c
s_setprio 3
s_cmp_eq_u32 s{S_WAVE}, 7
s_cbranch_scc1 L1_kv_chore""")
gen_loader(A, "kv", stamps)
A.label("L1_q")
A(f"""s_sub_u32 s4, s4, 9
s_mul_i32 s6, s6, 6
s_add_u32 s4, s4, s6
s_and_b32 s7, s4, 3
s_add_u32 s{S_RB}, s5, s7
s_lshr_b32 s{S_CG}, s4, 2
s_add_u32 s7, s7, s{S_CG}
s_and_b32 s7, s7, 3
s_lshl_b32 s7, s7, 1
s_add_u32 s{S_ROT}, s7, 1
s_cmp_lt_u32 s{S_WAVE}, 4
s_cbranch_scc1 L1_q_c
s_setprio 3""")
gen_loader(A, "q", stamps)
A.label("L1_kv_chore")
gen_chore(A, stamps)
A.label("L1_aux")
gen_aux(A, stamps)
A.raw(".p2align 3")
A.label("L1_ssm")
gen_ssm(A, stamps)
A.raw(".p2align 3")
A.label("L1_kv_c")
gen_compute(A, "kv", stamps)
A.raw(".p2align 3")
A.label("L1_q_c")
gen_compute(A, "q", stamps)
A.label("L1_exit")
A("s_endpgm")
A.label("L_wret")
A(f"""s_mov_b64 exec, -1
s_cmp_eq_u32 s{S_N1}, 4
s_cbranch_scc1 L_wr_kv
s_cmp_eq_u32 s{S_N1}, 1
s_cbranch_scc1 L_wr_q
s_endpgm""")
gen_p2(A, stamps)
gen_wtab(A)
A.label("L_code_end")
DIAG = "--diag" in sys.argv
if DIAG:
    from diag import gen_diag
    gen_diag(A)
    HDR = HDR.replace("; @launch grid", f"; @launch kernel={KN} grid").replace(".amdgcn_target", "; @launch kernel=dg_kernel grid=(1,1,1) block=(256,1,1) lds=1024\n.amdgcn_target")
WK = int([a_ for a_ in sys.argv if a_.startswith("--wk=")][0][5:]) if any(a_.startswith("--wk=") for a_ in sys.argv) else 0
def add_walk(lines):
    out = []; i = 0
    while i < len(lines):
        ln = lines[i]
        if not ln.startswith(";WALK "):
            out.append(ln); i += 1; continue
        _, name, parts = ln.split(); parts = int(parts)
        j = lines.index(";WALKEND", i)
        reg = lines[i + 1:j]
        isins = lambda l: l.startswith("  ") and not l.strip().startswith((";", "."))
        pos = [0]; c = 0
        for k, l in enumerate(reg):
            if c >= WK and isins(l) and isins(reg[k-1]) and " exec" not in reg[k-1]:
                pos.append(k); c = 0
            if isins(l): c += 1
        n = len(pos)
        starts = [n * p_ // parts for p_ in range(parts)]
        for k, l in enumerate(reg):
            if k in pos and WK:
                m = pos.index(k)
                if m in starts: out.append(f"W_{name}_{starts.index(m)}:")
                out.append(f"Wl_{name}_{m}:")
                last = (m + 1 == n) or (m + 1 in starts)
                out.append(f"  s_cbranch_execz {'L_wret' if last else f'Wl_{name}_{m+1}'}")
            out.append(l)
        i = j + 1
    return out
A.lines = add_walk(A.lines)
body = A.text()
NT = [a_ for a_ in sys.argv if a_.startswith("--nt=")]
if NT:
    for c, reg in (("x", s(SX,4)), ("w", s(SW,4))):
        if c in NT[0][5:]:
            body = "\n".join((l[:-4] + " nt lds" if (l.endswith(" lds") and reg in l) else l) for l in body.split("\n"))
if NODMA:
    body = "\n".join(l for l in body.split("\n") if not l.strip().endswith(" lds")) + "\n"
desc = '.section .rodata,"a"\n' + kdesc(KN, 256)
if DIAG: desc += kdesc("dg_kernel", 128)
open(out, "w").write(HDR + body + desc)
```

```python
from asm import *
from auto import Auto
import sys
NOMFMA = '--nomfma' in sys.argv
NODMA = '--nodma' in sys.argv
LOOK = int([a for a in sys.argv if a.startswith('--look=')][0][7:]) if any(a.startswith('--look=') for a in sys.argv) else 3
LBAR = int([a for a in sys.argv if a.startswith('--lbar=')][0][7:]) if any(a.startswith('--lbar=') for a in sys.argv) else None

AUXSLEEP = int([a for a in sys.argv if a.startswith('--auxs=')][0][7:]) if any(a.startswith('--auxs=') for a in sys.argv) else 16
LATEW = '--earlyw' not in sys.argv
UNR = int([a for a in sys.argv if a.startswith('--unr=')][0][6:]) if any(a.startswith('--unr=') for a in sys.argv) else 9
WOT = '--wot=0' not in sys.argv
ESMP = '--esmp=1' in sys.argv
WS_PQ = 0
WS_KVQ = 0x240000
WS_G = 0x250000
WS_BT = 0x260000
WS_END = 0x4A0000
WS_STAMP = 0x500000
WS_WP = 0x600000
WPU = 20736
WS_SIZE = 0x700000

S_X, S_W, S_WO, S_LOGA, S_AIM, S_CRE, S_CIM = 16, 18, 20, 24, 26, 28, 30
S_LOGDT, S_DSKIP, S_GATE, S_OUT, S_DBG, S_WS = 32, 34, 36, 38, 40, 42
SX, SW, SWS, SDBG, SG = 44, 48, 52, 56, 60
S_WAVE, S_RB, S_CG = 64, 65, 66
S_T0, S_T1, S_T2, S_T3 = 67, 68, 69, 70
S_ROT = 71
S_L2E = 73
S_EPS = 74
S_ST, S_SLOT, S_CNT, S_SX, S_SW, S_GB = 75, 76, 77, 78, 79, 82
S_MASK = 84

KV_X, KV_RD, KV_LZ = 4096, 4864, 5376
FL = 0x4A0000
NREP = 16
LGF = 8
QR = 0
FL_KV, FL_Q, FL_S = FL, FL + (8 * NREP << LGF), FL + ((8 * NREP + (192 << QR)) << LGF)
NFLAG = 8 * NREP + (192 << QR) + 72
S_PB, S_EK, S_N1, S_CA, S_FA, S_B9, S_CINC = 96, 97, 98, 99, 100, 101, 91
EMP, LMP = 6656, 8672
PJ = 20736
PB_G = 41024
CL_G = PB_G - 64
PB_S = 4 * LMP + 64
CL_S = PB_S - 64
EM_S = PB_S + 4 * PJ
STGA, STGD = 151552, 6144
assert PB_G + 4 * PJ + 4 * EMP <= STGA
SPIN = 0x2000
LOG2E = 0x3FB8AA3B
EPS = 0x358637BD
XB = 16384

def stamp(A, idx, stamps, last=None, srd_=None):
    if not stamps: return
    if last is None: last = idx == 6
    A(f"""s_memtime s[80:81]
    s_waitcnt lgkmcnt(0)
    v_writelane_b32 v255, s80, {idx}""")
    if last:
        A(f"""s_memrealtime s[80:81]
        s_waitcnt lgkmcnt(0)
        v_writelane_b32 v255, s80, 15
        s_mov_b64 exec, 0xffff
        buffer_store_dword v255, v254, {s(srd_ if srd_ else SWS,4)}, 0 offen
        s_mov_b64 exec, -1""")

def kwait(A, which, stamps):
    A("s_waitcnt lgkmcnt(0)")
    tab = {"x": (SX, S_X, 2048*1152), "w": (SW, S_W, 576*3456), "ws": (SWS, S_WS, WS_SIZE), "dbg": (SDBG, S_DBG, 256), "g": (SG, S_GATE, 1152)}
    for w in which: srd(A, tab[w][0], tab[w][1], tab[w][1] + 1, tab[w][2])

def stamp0(A, stamps):
    if not stamps: return
    srd(A, SWS, S_WS, S_WS + 1, WS_SIZE)
    A(f"""s_lshl_b32 s7, s2, 3
    s_add_u32 s7, s7, s{S_WAVE}
    s_lshl_b32 s7, s7, 6
    s_add_u32 s7, s7, {WS_STAMP}
    v_lshl_add_u32 v254, v0, 2, s7
    v_mov_b32 v255, 0
    v_writelane_b32 v255, s92, 0
    v_writelane_b32 v255, s94, 14""")

def touch(A, s_idx, ssm=False):
    if ssm:
        A(f"""s_mul_i32 s9, s{S_WAVE}, 9
        s_add_u32 s9, s9, s{s_idx}
        s_add_u32 s9, s9, 88""")
    else:
        A(f"""s_lshl_b32 s9, s{s_idx}, 2
        s_add_u32 s9, s9, s{S_WAVE}
        s_sub_u32 s9, s9, 40""")
    A(f"""s_mul_i32 s9, s9, {16*1152}
    s_mul_i32 s8, s3, 144
    s_add_u32 s9, s9, s8
    v_lshrrev_b32 v251, 2, v0
    v_mul_u32_u24 v251, 1152, v251
    v_and_b32 v252, 3, v0
    v_lshlrev_b32 v252, 6, v252
    v_min_u32 v252, 140, v252
    v_add_u32 v251, v251, v252""")

def phi(A, regs, tmp, oop=False):
    n = len(regs)
    for i in range(0, n, 2):
        assert regs[i+1] == regs[i] + 1 and regs[i] % 2 == 0 and tmp[i] % 2 == 0
        A(f"v_pk_fma_f32 {v(tmp[i],2)}, {v(regs[i],2)}, s[72:73], s[72:73] op_sel:[0,1,1] op_sel_hi:[1,1,1] neg_lo:[0,0,1] neg_hi:[0,0,1]")
    for i in range(n):
        A(f"v_exp_f32 v{tmp[i]}, v{tmp[i]} clamp")
    for i in range(n):
        A(f"v_max_f32 v{(tmp if oop else regs)[i]}, v{regs[i]}, v{tmp[i]}")
    if oop: regs = tmp
    for i in range(0, n, 2):
        A(f"v_pk_add_f32 {v(regs[i],2)}, {v(regs[i],2)}, s[74:75] op_sel:[0,0] op_sel_hi:[1,0]")

def params(typ):
    kv = typ == "kv"
    PITCH = 288 if kv else 384
    STG = XB + 64 * PITCH
    return kv, PITCH, STG

GATE_LDS = 4 * (XB + 64 * 288)

def gen_compute(A, typ, stamps=False):
    kv, PITCH, STG = params(typ)
    NT = 5 if kv else 6
    L = LOOK
    RING = 5 if kv else 6
    V_ACC = 0
    V_A = V_ACC + 4 * NT * 4
    V_B = V_A + 32
    V_AD = V_B + RING * 4
    V_AA = V_AD
    V_TR = V_AD + 2
    V_AAc = V_AD + 6
    V_TRc = V_AD + 8
    V_LANE = V_AD + 12
    V_T = V_AD + 13
    V_AO = V_T + 4
    V_FL = V_T + (4 if kv else 6)
    V_FREE = V_FL + 2
    acc = lambda rt, t: V_ACC + (rt * NT + t) * 4
    areg = lambda ks, rt: V_A + (ks * 4 + rt) * 4
    A(f"""s_getpc_b64 s[12:13]""")
    lab = A.newlabel("L_pcc")
    A.label(lab)
    A(f"""s_sub_u32 s12, s12, {lab}-L_pc0
    s_subb_u32 s13, s13, 0
    v_add_u32 v2, 32768, v2
    v_min_u32 v2, L_code_end-L_pc0-8, v2
    global_load_dword v253, v2, s[12:13]""")
    if WOT:
        A(f"""s_lshl_b32 s9, s10, 2
        s_add_u32 s9, s9, s{S_WAVE}
        s_sub_u32 s9, s9, 36
        s_mul_i32 s9, s9, {8*1152}
        s_lshr_b32 s8, s3, 2
        s_mul_i32 s8, s8, 576
        s_add_u32 s9, s9, s8
        s_and_b32 s8, s3, 1
        s_mul_i32 s11, s8, 320
        s_lshl_b32 s8, s8, 5
        s_add_u32 s8, s8, 256
        s_and_b32 s14, s3, 2
        s_lshl_b32 s14, s14, 6
        s_add_u32 s11, s11, s14
        v_and_b32 v3, 1, v0
        v_lshl_add_u32 v3, v3, 6, s11
        v_mov_b32 v4, s8
        v_and_b32 v5, 2, v0
        v_cmp_eq_u32 vcc, 0, v5
        v_lshrrev_b32 v5, 2, v0
        v_mul_u32_u24 v5, 1152, v5
        v_cndmask_b32 v3, v4, v3, vcc
        v_add3_u32 v3, v3, v5, s9
        s_waitcnt lgkmcnt(0)""")
        srd(A, SW, S_WO, S_WO + 1, 576 * 1152)
        A(f"""s_mov_b32 exec_hi, 0
        buffer_load_dword v253, v3, {s(SW,4)}, 0 offen
        s_mov_b64 exec, -1""")
    kwait(A, ["ws", "dbg"], stamps)
    stamp0(A, stamps)
    A(f"s_mov_b32 s{S_EPS}, {EPS:#x}")
    A(f"v_mov_b32 v{V_LANE}, v0")
    A(f"""s_lshr_b32 s{S_T0}, s{S_WAVE}, 1
    s_and_b32 s{S_T1}, s{S_WAVE}, 1""")
    i_, q, rp, cc = V_T, V_T + 1, V_T + 2, V_T + 3
    A(f"""v_and_b32 v{i_}, 15, v{V_LANE}
    v_lshrrev_b32 v{q}, 4, v{V_LANE}
    v_bfe_u32 v{rp}, v{V_LANE}, 2, 2
    v_and_b32 v{cc}, 3, v{V_LANE}
    s_lshl_b32 s{S_T2}, s{S_T0}, 13
    v_lshrrev_b32 v{V_AAc}, 1, v{i_}
    v_xor_b32 v{V_AAc}, v{V_AAc}, v{q}
    v_lshlrev_b32 v{V_AAc}, 4, v{V_AAc}
    v_lshl_add_u32 v{V_AAc}, v{i_}, 7, v{V_AAc}
    v_add_u32 v{V_AAc}, s{S_T2}, v{V_AAc}""")
    if not kv:
        A(f"""s_lshl_b32 s{S_T2}, s{S_CG}, 1
        s_add_u32 s{S_T2}, s{S_T2}, s{S_T1}
        s_cmp_ge_u32 s{S_T2}, 3
        s_cselect_b32 s{S_T2}, 2048, 0
        v_add_u32 v{V_AAc}, s{S_T2}, v{V_AAc}""")
    A(f"v_mov_b32 v{V_FL}, 0\nv_mov_b32 v{V_FL+1}, 0")
    A(f"v_xor_b32 v{V_AAc+1}, 64, v{V_AAc}")
    if kv:
        A(f"""s_mul_i32 s{S_T2}, s{S_T1}, 72
        s_add_u32 s{S_T2}, s{S_T2}, {XB}
        v_lshl_add_u32 v{i_}, v{q}, 3, v{rp}
        v_and_b32 v{V_TRc+1}, 1, v{q}
        v_lshlrev_b32 v{V_TRc+1}, 2, v{V_TRc+1}
        v_xor_b32 v{V_TRc}, v{i_}, v{V_TRc+1}
        v_xor_b32 v{V_TRc+1}, 4, v{V_TRc}
        v_mul_u32_u24 v{V_TRc}, 288, v{V_TRc}
        v_mul_u32_u24 v{V_TRc+1}, 288, v{V_TRc+1}
        v_add_u32 v{V_TRc}, s{S_T2}, v{V_TRc}
        v_add_u32 v{V_TRc+1}, s{S_T2}, v{V_TRc+1}
        v_mul_u32_u24 v{rp}, 144, v{cc}
        v_add_u32 v{rp}, 32, v{rp}
        v_add_u32 v{V_TRc+2}, v{V_TRc}, v{rp}
        v_add_u32 v{V_TRc+3}, v{V_TRc+1}, v{rp}
        v_lshl_add_u32 v{V_TRc}, v{cc}, 3, v{V_TRc}
        v_lshl_add_u32 v{V_TRc+1}, v{cc}, 3, v{V_TRc+1}
        v_cmp_lt_u32 {s(S_MASK,2)}, 1, v{cc}
        v_lshlrev_b32 v{i_}, 3, v{i_}
        v_add_u32 v{rp}, 32, v{i_}
        v_cndmask_b32 v{V_TRc+2}, v{V_TRc+2}, v{i_}, {s(S_MASK,2)}
        v_cndmask_b32 v{V_TRc+3}, v{V_TRc+3}, v{rp}, {s(S_MASK,2)}""")
        coloff = [0, 40, 144, 184]
    else:
        A(f"""v_lshl_add_u32 v{i_}, v{q}, 3, v{rp}
        v_mul_u32_u24 v{i_}, 384, v{i_}
        v_lshl_add_u32 v{i_}, v{cc}, 3, v{i_}
        v_add_u32 v{i_}, {XB}, v{i_}
        v_lshrrev_b32 v{rp}, 1, v{rp}
        v_and_b32 v{q}, 1, v{q}
        v_lshl_add_u32 v{q}, v{q}, 1, v{rp}
        s_mul_i32 s{S_T2}, s{S_T1}, 6""")
        for j in range(4):
            A(f"""s_add_u32 s{S_T3}, s{S_T2}, {j}
            s_and_b32 s{S_CNT}, s{S_T3}, 3
            s_lshr_b32 s{S_T3}, s{S_T3}, 2
            s_lshl_b32 s{S_T3}, s{S_T3}, 7
            v_xor_b32 v{rp}, s{S_CNT}, v{q}
            v_lshl_add_u32 v{V_TRc+j}, v{rp}, 5, v{i_}
            v_add_u32 v{V_TRc+j}, s{S_T3}, v{V_TRc+j}""")
    V_QO = V_FREE
    if not kv:
        V_FREE += 6
        c_, P_, m_, t_ = V_T, V_T + 1, V_T + 2, V_T + 3
        for t in range(NT):
            o0 = V_QO + t
            A(f"""s_mul_i32 s{S_T2}, s{S_CG}, 48
            s_mul_i32 s{S_T3}, s{S_T1}, 24
            s_add_u32 s{S_T2}, s{S_T2}, s{S_T3}
            s_add_u32 s{S_T2}, s{S_T2}, {4*t}
            v_lshrrev_b32 v{c_}, 4, v{V_LANE}
            v_add_u32 v{c_}, s{S_T2}, v{c_}
            v_mul_u32_u24 v{P_}, 7282, v{c_}
            v_lshrrev_b32 v{P_}, 16, v{P_}
            v_mul_u32_u24 v{m_}, 9, v{P_}
            v_sub_u32 v{m_}, v{c_}, v{m_}
            v_lshrrev_b32 v{c_}, 1, v{P_}
            v_mul_u32_u24 v{c_}, 4608, v{c_}
            v_and_b32 v{P_}, 1, v{P_}
            v_cmp_lt_u32 vcc, 4, v{m_}
            v_lshl_add_u32 v{o0}, v{P_}, 3, v{m_}
            v_add_u32 v{t_}, 16, v{P_}
            v_subbrev_co_u32 v{o0}, vcc, 0, v{o0}, vcc
            v_cmp_eq_u32 vcc, 4, v{m_}
            v_and_b32 v{m_}, 15, v{V_LANE}
            v_lshl_add_u32 v{c_}, v{m_}, 4, v{c_}
            v_cndmask_b32 v{o0}, v{o0}, v{t_}, vcc
            v_lshl_add_u32 v{o0}, v{o0}, 8, v{c_}""")
    A(f"""s_mov_b32 s{S_EK}, 1
    s_mov_b32 s{S_PB}, {PB_G}
    s_mov_b32 s{S_B9}, 0
    s_mov_b32 s{S_CINC}, 0""")
    if kv:
        A(f"""s_mov_b32 s{S_N1}, 4
        s_mul_i32 s{S_FA}, s{S_CG}, {NREP << LGF}
        s_mov_b32 s{S_CA}, 1
        s_add_u32 s{S_FA}, s{S_FA}, {FL_KV}""")
        a_mm, a_mr, a_rm, a_rr, a_ta, a_tb, a_g, a_c = range(245, 253)
        col, qq, x0, x1 = V_T, V_T + 1, V_T + 2, V_T + 3
        A(f"""v_and_b32 v{col}, 15, v{V_LANE}
        v_lshrrev_b32 v{qq}, 4, v{V_LANE}
        v_cmp_gt_u32 vcc, 4, v{col}
        s_mul_i32 s{S_T2}, s{S_T0}, {STGD}
        s_add_u32 s{S_T2}, s{S_T2}, {STGA}
        s_lshl_b32 s{S_T3}, s{S_T1}, 11
        s_add_u32 s{S_T3}, s{S_T3}, s{S_T2}
        v_lshl_add_u32 v{a_mm}, v{V_LANE}, 4, s{S_T3}
        s_lshl_b32 s{S_T3}, s{S_T1}, 8
        s_add_u32 s{S_T3}, s{S_T3}, s{S_T2}
        v_lshl_add_u32 v{a_rm}, v{V_LANE}, 4, s{S_T3}
        v_and_b32 v{x0}, 1, v{col}
        v_add_u32 v{a_rr}, 8, v{x0}
        v_bfe_u32 v{x1}, v{col}, 1, 1
        v_lshl_add_u32 v{x0}, v{x0}, 2, v{x1}
        v_cndmask_b32 v{x0}, v{x0}, v{a_rr}, vcc
        v_lshl_add_u32 v{x0}, s{S_T1}, 1, v{x0}
        v_lshl_add_u32 v{a_rr}, v{x0}, 3, s{S_T2}
        v_mul_u32_u24 v{a_mr}, 192, v{qq}
        v_lshl_add_u32 v{a_mr}, v{x0}, 4, v{a_mr}
        v_add_u32 v{a_mr}, s{S_T2}, v{a_mr}
        v_mov_b32 v{a_c}, {CL_G}
        s_lshl_b32 s{S_T2}, s{S_WAVE}, 8
        v_lshl_add_u32 v{a_ta}, v{V_LANE}, 2, s{S_T2}
        v_add_u32 v{a_tb}, {STGA}, v{a_ta}
        s_lshl_b32 s{S_T2}, s{S_CG}, 13
        s_lshl_b32 s{S_T3}, s{S_RB}, 9
        s_add_u32 s{S_T2}, s{S_T2}, s{S_T3}
        s_lshl_b32 s{S_T3}, s{S_T0}, 8
        s_add_u32 s{S_T2}, s{S_T2}, s{S_T3}
        s_add_u32 s{S_T2}, s{S_T2}, {WS_G}
        v_lshl_add_u32 v{a_g}, v{qq}, 4, s{S_T2}
        s_mul_i32 s{S_SX}, s{S_CG}, 6144
        s_add_u32 s{S_SX}, s{S_SX}, {WS_KVQ}
        s_add_u32 s{S_SW}, s{S_SX}, 4096""")
    else:
        A(f"""s_mov_b32 s{S_N1}, 1
        s_mov_b32 s{S_CA}, 0
        s_lshl_b32 s{S_FA}, s{S_RB}, 1
        s_add_u32 s{S_FA}, s{S_FA}, s{S_T0}
        s_mul_i32 s{S_FA}, s{S_FA}, 6
        s_lshl_b32 s{S_T2}, s{S_CG}, 1
        s_add_u32 s{S_FA}, s{S_FA}, s{S_T2}
        s_add_u32 s{S_FA}, s{S_FA}, s{S_T1}
        s_lshl_b32 s{S_FA}, s{S_FA}, {LGF+QR}
        s_add_u32 s{S_FA}, s{S_FA}, {FL_Q}""")
    for rt in range(4):
        for t in range(NT):
            one = (t < 2) if kv else True
            for r in range(4):
                if kv and t == 4: A(f"v_cndmask_b32 v{acc(rt,t)+r}, 0, 1.0, vcc")
                else: A(f"v_mov_b32 v{acc(rt,t)+r}, {'1.0' if one else '0'}")
    A(f"""s_mov_b32 s{S_SLOT}, 0
    s_mov_b32 s{S_ST}, s{S_ROT}
    s_mov_b32 s{S_CNT}, 0""")
    stamp(A, 1, stamps)
    if any(a_.startswith("--wk=") for a_ in sys.argv):
        A(f"""s_waitcnt vmcnt(0)
        s_mov_b64 exec, 0
        s_cmp_eq_u32 s{S_WAVE}, 0
        s_cbranch_scc1 W_{typ}_0
        s_cmp_eq_u32 s{S_WAVE}, 1
        s_cbranch_scc1 W_p2_0
        s_cmp_eq_u32 s{S_WAVE}, 2
        s_cbranch_scc1 W_p2_1
        s_branch W_p2_2""")
    A.label(f"L_wr_{typ}")
    stamp(A, 13, stamps)
    items = [(ks, t) for ks in range(2) for t in range(NT)]
    N = len(items)
    LB = NT - 1 if LBAR is None else LBAR
    assert N % RING == 0 and RING >= L + 1 and LB >= L and LB <= NT
    def rdB(ri):
        ks, t = items[ri % N]
        b = V_B + (ri % RING) * 4
        ko = ks * 32 * PITCH
        if kv:
            if t < 4:
                return [f"ds_read_b64_tr_b16 {v(b,2)}, v{V_TR} offset:{ko+coloff[t]}",
                        f"ds_read_b64_tr_b16 {v(b+2,2)}, v{V_TR+1} offset:{ko+coloff[t]}"]
            return [f"ds_read_b64_tr_b16 {v(b,2)}, v{V_TR+2} offset:{ko}",
                    f"ds_read_b64_tr_b16 {v(b+2,2)}, v{V_TR+3} offset:{ko}"]
        return [f"ds_read_b64_tr_b16 {v(b,2)}, v{V_TR+(t&3)} offset:{ko+(t>>2)*128}",
                f"ds_read_b64_tr_b16 {v(b+2,2)}, v{V_TR+(t&3)} offset:{ko+(t>>2)*128+4*384}"]
    rdA = lambda ks: [f"ds_read_b128 {v(areg(ks,rt),4)}, v{V_AA+ks} offset:{2048*rt}" for rt in range(4)]
    updA = [f"v_add_u32 v{V_AA}, s{S_SLOT}, v{V_AAc}", f"v_add_u32 v{V_AA+1}, s{S_SLOT}, v{V_AAc+1}"]
    if not kv:
        rdA = lambda ks: [f"ds_read_b128 {v(areg(ks,rt),4)}, v{(V_AO if rt & 1 else V_AA)+ks} offset:{4096*(rt>>1)}" for rt in range(4)]
        updA += [f"v_xor_b32 v{V_AO}, 2048, v{V_AA}", f"v_xor_b32 v{V_AO+1}, 2048, v{V_AA+1}"]
    if kv:
        updB = [f"v_add_u32 v{V_TR}, s{S_SLOT}, v{V_TRc}", f"v_add_u32 v{V_TR+1}, s{S_SLOT}, v{V_TRc+1}"]
        updB2 = [f"v_add_u32 v{V_TR+2}, v{V_T}, v{V_TRc+2}", f"v_add_u32 v{V_TR+3}, v{V_T}, v{V_TRc+3}"]
        pre = [f"s_lshl_b32 s{S_GB}, s{S_ST}, 8", f"s_add_u32 s{S_GB}, s{S_GB}, {GATE_LDS}",
               f"v_mov_b32 v{V_T}, s{S_SLOT}", f"v_mov_b32 v{V_T+1}, s{S_GB}",
               f"v_cndmask_b32 v{V_T}, v{V_T}, v{V_T+1}, {s(S_MASK,2)}",
               f"s_add_u32 s{S_ST}, s{S_ST}, 1", f"s_cmp_eq_u32 s{S_ST}, 9", f"s_cselect_b32 s{S_ST}, 0, s{S_ST}"]
    else:
        updB = [f"v_add_u32 v{V_TR}, s{S_SLOT}, v{V_TRc}", f"v_add_u32 v{V_TR+1}, s{S_SLOT}, v{V_TRc+1}"]
        updB2 = [f"v_add_u32 v{V_TR+2}, s{S_SLOT}, v{V_TRc+2}", f"v_add_u32 v{V_TR+3}, s{S_SLOT}, v{V_TRc+3}"]
        pre = []
    advs = [f"s_add_u32 s{S_SLOT}, s{S_SLOT}, {STG}", f"s_cmp_eq_u32 s{S_SLOT}, {4*STG}", f"s_cselect_b32 s{S_SLOT}, 0, s{S_SLOT}"]
    fill = {i: [] for i in range(N)}
    for idx in range(N):
        f = []
        if idx == N - LB:
            f += [("x", "s_barrier")] + [("x", u) for u in updA] + [("A0", r) for r in rdA(0)]
        if idx == N - L:
            f += [("x", u) for u in updB]
        f += [(f"B{(idx+L)%N}", r) for r in rdB(idx + L)]
        if idx == N - L:
            f += [("x", u) for u in updB2]
        if idx == N - L + 1 or (L == 1 and idx == N - 1):
            f += [("x", u) for u in advs]
        if idx == 0:
            f += [("A1", r) for r in rdA(1)]
        if idx == 1:
            f += [("x", u) for u in pre]
        fill[idx] = f
    ops = []
    for idx in range(N):
        ks, t = items[idx]
        ops.append(("W", idx))
        f = list(fill[idx])
        per = -(-len(f) // 4)
        for rt in range(4):
            ops.append(("M", idx, rt))
            for _ in range(per):
                if f: ops.append(("F",) + f.pop(0))
    def wait_for(pos, tags):
        best = None
        for tag in tags:
            c = 0; p = pos - 1
            while True:
                o = ops[p % len(ops)]
                if o[0] == "F" and o[2].startswith("ds_"):
                    if o[1] == tag: break
                    c += 1
                p -= 1
            best = c if best is None else min(best, c)
        return best
    A("\n".join(pre)) if pre else None
    first = True
    for idx in range(N - LB, N):
        for tag, ins in fill[idx]:
            if tag.startswith("B") and int(tag[1:]) >= L: continue
            A(ins)
            if ins == "s_barrier": stamp(A, 2, stamps)
    lp = A.newlabel("L_gl")
    A.raw(".p2align 3")
    A.label(lp)
    for it in range(UNR):
        for pos, o in enumerate(ops):
            if o[0] == "W":
                idx = o[1]; ks, t = items[idx]
                tags = [f"B{idx}"] + ([f"A{ks}"] if t == 0 else [])
                A(f"s_waitcnt lgkmcnt({min(wait_for(pos, tags), 15)})")
            elif o[0] == "M":
                idx, rt = o[1], o[2]; ks, t = items[idx]
                b = V_B + (idx % RING) * 4
                d = v(acc(rt, t), 4)
                if NOMFMA: continue
                if kv: A(f"v_mfma_f32_16x16x32_bf16 {d}, {v(areg(ks,rt),4)}, {v(b,4)}, {d}")
                else: A(f"v_mfma_f32_16x16x32_bf16 {d}, {v(b,4)}, {v(areg(ks,rt),4)}, {d}")
            elif o[2] == "s_barrier" and it == 8: continue
            else:
                A(o[2])
    assert UNR == 9
    if UNR < 9:
        A(f"""s_add_u32 s{S_CNT}, s{S_CNT}, {UNR}
        s_cmp_lt_u32 s{S_CNT}, 9
        s_cbranch_scc1 {lp}""")
    stamp(A, 5, stamps)
    TMP = V_FREE + (V_FREE & 1)
    A("s_setprio 2")
    A("s_waitcnt lgkmcnt(0)")
    stamp(A, 7, stamps)
    if not kv:
        A(f"""s_lshl_b32 s{S_T2}, s{S_RB}, 2
        s_lshl_b32 s{S_T3}, s{S_T0}, 1
        s_add_u32 s{S_T2}, s{S_T2}, s{S_T3}
        s_mul_i32 s{S_T2}, s{S_T2}, 36864""")
        A(f"""v_mov_b32 v{V_T}, {CL_G}
        v_mov_b32 v{V_T+1}, 1
        s_mov_b64 exec, 1
        ds_add_u32 v{V_T}, v{V_T+1}
        s_mov_b64 exec, -1""")
        k = 0
        for rp_ in range(2):
            for t in range(NT):
                regs = [acc(2 * rp_ + x, t) + i for x in range(2) for i in range(4)]
                tm = TMP + (k % 4) * 12; k += 1
                phi(A, regs, [tm + i for i in range(8)])
                for i in range(4):
                    A(f"v_cvt_pk_bf16_f32 v{tm+8+i}, v{regs[2*i]}, v{regs[2*i+1]}")
                A(f"buffer_store_dwordx4 {v(tm+8,4)}, v{V_QO+t}, {s(SWS,4)}, s{S_T2} offen sc0 sc1")
            if rp_ == 0: A(f"s_add_u32 s{S_T2}, s{S_T2}, 36864")
        stamp(A, 6, stamps)
        A("s_branch L_p2")
        A.raw(";WALKEND")
        return
    F = lambda t, m: TMP + (t * 2 + m) * 4
    T2 = TMP + 48
    D = T2 + 16
    assert D + 28 <= 245
    A(f"""v_mov_b32 v{V_T+2}, 0x3f803f80
    v_mov_b32 v{V_T+3}, 1""")
    E = Auto(A)
    def pack(t, dst, rts=range(4)):
        o_ = []
        for rt in rts:
            r0 = acc(rt, t)
            o = F(dst, rt >> 1) + 2 * (rt & 1)
            o_.append(f"v_cvt_pk_bf16_f32 v{o}, v{r0}, v{r0+1}")
            o_.append(f"v_cvt_pk_bf16_f32 v{o+1}, v{r0+2}, v{r0+3}")
        return o_
    def phil(t, m, tb):
        L_ = Asm()
        phi(L_, [acc(rt, t) + i for rt in (2 * m, 2 * m + 1) for i in range(4)], [tb + i for i in range(8)], oop=True)
        return [x.strip() for x in L_.lines] + [f"v_cvt_pk_bf16_f32 v{F(t,m)+i}, v{tb+2*i}, v{tb+2*i+1}" for i in range(4)]
    MM = lambda p: D + 4 * p
    MR = lambda p: D + 8 + 4 * p
    RM = lambda p: D + 16 + 4 * p
    RR = D + 24
    mf = lambda d_, a_, b_, m: f"v_mfma_f32_16x16x32_bf16 {v(d_,4)}, {v(F(a_,m),4)}, {v(F(b_,m),4)}, {'0' if m == 0 else v(d_,4)}"
    def under(vs, ms):
        ms = list(ms)
        for x in vs:
            if ms and x.startswith("v_exp"): E(ms.pop(0))
            E(x)
        for x in ms: E(x)
    mk = lambda p: ((1 << p) | (3 << (4 + 2 * p)))
    wr_mm = lambda p: f"""ds_write_b128 v{a_mm}, {v(MM(p),4)} offset:{1024*p}
        s_mov_b32 exec_lo, {mk(p) | (mk(p) << 16):#x}
        s_mov_b32 exec_hi, {mk(p) | (mk(p) << 16):#x}
        ds_write_b128 v{a_mr}, {v(MR(p),4)} offset:{KV_X}
        s_mov_b64 exec, -1"""
    under(phil(0, 0, T2), [])
    for x in pack(2, 2) + pack(4, 5): E(x)
    for i in range(8):
        E(f"v_cndmask_b32 v{F(5,0)+i}, v{F(5,0)+i}, v{V_T+2}, vcc")
    under(phil(0, 1, T2 + 8), [mf(MM(0), 0, 2, 0), mf(MR(0), 0, 5, 0)])
    under(phil(1, 0, T2), [mf(MM(0), 0, 2, 1), mf(MR(0), 0, 5, 1)])
    for x in pack(3, 3): E(x)
    if not LATEW: E(wr_mm(0))
    under(phil(1, 1, T2 + 8), [mf(MM(1), 1, 3, 0), mf(MR(1), 1, 5, 0)])
    under(phil(4, 0, T2), [mf(MM(1), 1, 3, 1), mf(MR(1), 1, 5, 1)])
    if not LATEW: E(wr_mm(1))
    under(phil(4, 1, T2 + 8), [mf(RR, 4, 5, 0), mf(RM(0), 4, 2, 0), mf(RM(1), 4, 3, 0)])
    for x in [mf(RR, 4, 5, 1), mf(RM(0), 4, 2, 1), mf(RM(1), 4, 3, 1)]: E(x)
    stamp(A, 12, stamps)
    if LATEW: E(wr_mm(0)); E(wr_mm(1))
    E("s_mov_b32 exec_hi, 0")
    for p in range(2):
        E(f"""s_mov_b32 exec_lo, {mk(p):#x}
        ds_write_b64 v{a_rr}, {v(RR+2*p,2)} offset:{KV_LZ}""")
    E("s_mov_b32 exec_lo, 0xffff")
    for p in range(2):
        E(f"ds_write_b64 v{a_rm}, {v(RM(p)+2*p,2)} offset:{KV_RD + 8*p}")
    E(f"""s_mov_b32 exec_lo, 1
    ds_add_u32 v{a_c}, v{V_T+3}
    s_mov_b64 exec, -1""")
    stamp(A, 3, stamps)
    lpp = A.newlabel("L_e2"); le = A.newlabel("L_e2e")
    A(f"s_mov_b32 s{S_CNT}, 0")
    A.label(lpp)
    A(f"""ds_read2_b32 {v(T2,2)}, v{a_c} offset0:0 offset1:3
    s_add_u32 s{S_CNT}, s{S_CNT}, 1
    s_cmp_gt_u32 s{S_CNT}, {SPIN}
    s_cbranch_scc1 {le}
    s_waitcnt lgkmcnt(0)
    v_and_b32 v{T2}, v{T2}, v{T2+1}
    s_nop 0
    v_readfirstlane_b32 s{S_T3}, v{T2}
    s_cmp_lg_u32 s{S_T3}, 4
    s_cbranch_scc1 {lpp}""")
    A.label(le)
    stamp(A, 4, stamps)
    R = V_A
    for i in range(6):
        A(f"ds_read2st64_b32 {v(R+2*i,2)}, v{a_tb} offset0:{4*i} offset1:{4*i + STGD//256}")
    for k in range(6):
        A(f"s_waitcnt lgkmcnt({5-k})")
        A(f"""v_add_f32 v{R+2*k}, v{R+2*k}, v{R+2*k+1}
        buffer_atomic_add_f32 v{R+2*k}, v{a_ta}, {s(SWS,4)}, s{S_SX if k < 4 else S_SW} offen offset:{1024*(k%4)} sc1""")
    lab = A.newlabel("L_nog")
    A(f"""s_cmp_lg_u32 s{S_T1}, 0
    s_cbranch_scc1 {lab}
    s_mov_b32 exec_lo, 0x01000100
    s_mov_b32 exec_hi, 0x01000100""")
    for rt in range(4):
        A(f"buffer_store_dwordx4 {v(acc(rt,4),4)}, v{a_g}, {s(SWS,4)}, 0 offen offset:{64*rt} sc0 sc1")
    A("s_mov_b64 exec, -1")
    A.label(lab)
    stamp(A, 6, stamps)
    A("s_nop 1")
    A("s_branch L_p2")
    A.raw(";WALKEND")

def loader_params(A):
    A.label("L_ldx")
    A(f"""s_mov_b32 s{S_EK}, 1
    s_mov_b32 s{S_PB}, {PB_G}
    s_mov_b32 s{S_B9}, 1
    s_mov_b32 s{S_CINC}, 0x100
    s_mov_b32 s{S_N1}, 0
    s_mov_b32 s{S_CA}, 0
    s_mov_b32 s{S_FA}, 0
    v_readfirstlane_b32 s{S_T0}, v9
    v_mov_b32 v4, {CL_G}
    v_mov_b32 v6, 0
    v_mov_b32 v7, 0
    v_mov_b32 v5, 0xff
    ds_write_b64 v4, v[6:7]
    ds_write_b64 v4, v[6:7] offset:8
    ds_write_b64 v4, v[6:7] offset:24
    ds_write_b64 v4, v[6:7] offset:32
    s_cmp_ge_u32 s{S_T0}, 8
    s_cbranch_scc1 L_p2
    buffer_load_dword v9, v8, {s(SDBG,4)}, 0 offen sc0 sc1
    s_mov_b32 s{S_B9}, 0
    s_waitcnt vmcnt(1) lgkmcnt(0)
    s_barrier""")
    rdy_wait(A, 8, 9, S_CNT, S_T0)
    A("s_branch L_p2")

def wp_dma(A, s_lds, s_src, s_t, v16, thr=0, s_rot=None):
    for n in range(21):
        if n % 4 == 0:
            if s_rot is None or n == 20:
                A(f"""s_add_u32 m0, s{s_lds}, {1024*n}
                s_add_u32 s{s_t}, s{s_src}, {1024*n}""")
            else:
                A(f"""s_add_u32 m0, s{s_lds}, s{s_rot}
                s_add_u32 s{s_t}, s{s_src}, s{s_rot}
                s_add_u32 s{s_rot}, s{s_rot}, 4096
                s_cmp_eq_u32 s{s_rot}, 20480
                s_cselect_b32 s{s_rot}, 0, s{s_rot}""")
        if n == 20: A("s_mov_b64 exec, 0xffff")
        if thr: A(f"s_waitcnt vmcnt({thr})")
        A(f"buffer_load_dwordx4 v{v16}, {s(SWS,4)}, s{s_t} offen offset:{1024*(n%4)} sc1 lds")
    A("s_mov_b64 exec, -1")

def x_voffsets(A, regs, s_first, tmp):
    t0, t1 = tmp
    A(f"""v_lshrrev_b32 v{t0}, 4, v0
    v_and_b32 v{t1}, 7, v0
    v_xor_b32 v{t1}, v{t1}, v{t0}
    s_and_b32 s{S_T3}, s{s_first}, 1
    s_lshl_b32 s{S_T3}, s{S_T3}, 2
    v_xor_b32 v{t1}, s{S_T3}, v{t1}
    v_lshrrev_b32 v{t0}, 3, v0
    v_mul_u32_u24 v{t0}, 1152, v{t0}
    v_lshl_add_u32 v{t1}, v{t1}, 4, v{t0}
    s_mul_i32 s{S_T3}, s{s_first}, 9216
    s_add_u32 s{S_T3}, s{S_T3}, s{S_T2}
    v_add_u32 v{t1}, s{S_T3}, v{t1}
    v_xor_b32 v{t0}, 64, v{t1}""")
    for k, r in enumerate(regs):
        A(f"v_add_u32 v{r}, {9216*k - 1024*(k%4)}, v{t0 if k % 2 else t1}")

def loader_loop(A, typ, issue, NI, nbar_extra, hooks=None):
    kv, PITCH, STG = params(typ)
    hooks = hooks or {}
    issue(); issue()
    for n in range(9):
        if n in hooks: hooks[n][0]()
        allowed = NI if n + 1 <= 8 else 0
        A(f"s_waitcnt vmcnt({allowed})")
        A("s_barrier")
        if n in hooks and hooks[n][1]: hooks[n][1]()
        if n + 2 < 9: issue()
    for _ in range(nbar_extra): A("s_barrier")

def adv(A, STG):
    A(f"""s_add_u32 s{S_ST}, s{S_ST}, 1
    s_cmp_eq_u32 s{S_ST}, 9
    s_cselect_b32 s{S_ST}, 0, s{S_ST}
    s_add_u32 s{S_SLOT}, s{S_SLOT}, {STG}
    s_cmp_eq_u32 s{S_SLOT}, {4*STG}
    s_cselect_b32 s{S_SLOT}, 0, s{S_SLOT}""")

def gen_loader(A, typ, stamps=False):
    kv, PITCH, STG = params(typ)
    PPR = PITCH // 16
    NX = 3 if kv else 4
    S_J, S_XL, S_WL = 86, 87, 88
    A(f"s_sub_u32 s{S_J}, s{S_WAVE}, 4")
    A(f"s_mul_i32 s{S_T2}, s{S_RB}, {128*1152}")
    A(f"s_mul_i32 s{S_T0}, s{S_J}, {NX}")
    xr = [10 + k for k in range(NX)]
    x_voffsets(A, xr, S_T0, (4, 5))
    A(f"s_lshl_b32 s{S_XL}, s{S_T0}, 10")
    A(f"s_mul_i32 s{S_T1}, s{S_J}, 384")
    A(f"s_mul_i32 s{S_WL}, s{S_J}, 6144")
    A(f"s_add_u32 s{S_WL}, s{S_WL}, {XB}")
    if kv:
        A(f"s_mul_i32 s{S_T3}, s{S_CG}, 144")
        A(f"s_add_u32 s{S_T3}, s{S_T3}, 1152")
    else:
        A(f"s_mul_i32 s{S_T3}, s{S_CG}, 384")
    wr = [20 + i for i in range(6)]
    for i in range(6):
        p, sl, pc, o = 4, 5, 6, wr[i]
        A(f"v_add_u32 v{p}, s{S_T1}, v0")
        if i: A(f"v_add_u32 v{p}, {64*i}, v{p}")
        A(f"v_mul_u32_u24 v{sl}, {3641 if kv else 2731}, v{p}")
        A(f"v_lshrrev_b32 v{sl}, 16, v{sl}")
        A(f"v_mul_u32_u24 v{pc}, {PPR}, v{sl}")
        A(f"v_sub_u32 v{pc}, v{p}, v{pc}")
        if kv:
            A(f"""v_lshrrev_b32 v7, 1, v{sl}
            v_and_b32 v7, 4, v7
            v_xor_b32 v{sl}, v{sl}, v7
            v_mul_u32_u24 v{o}, 3456, v{sl}
            v_lshl_add_u32 v{o}, v{pc}, 4, v{o}
            v_cmp_lt_u32 vcc, 8, v{pc}
            v_add_u32 v7, {1152-144}, v{o}
            s_nop 0
            v_cndmask_b32 v{o}, v{o}, v7, vcc""")
        else:
            A(f"""v_bfe_u32 v7, v{sl}, 1, 1
            v_bfe_u32 v8, v{sl}, 3, 1
            v_lshl_add_u32 v7, v8, 1, v7
            v_lshlrev_b32 v7, 1, v7
            v_xor_b32 v{pc}, v{pc}, v7
            v_mul_u32_u24 v{o}, 3456, v{sl}
            v_lshl_add_u32 v{o}, v{pc}, 4, v{o}""")
        A(f"v_add_u32 v{o}, s{S_T3}, v{o}")
        if i % 4: A(f"v_subrev_u32 v{o}, {1024*(i%4)}, v{o}")
    A(f"s_mov_b32 s{S_SLOT}, 0\ns_mov_b32 s{S_ST}, s{S_ROT}")
    touch(A, 10)
    kwait(A, ["x"], stamps)
    if "--touch=0" not in sys.argv: A(f"buffer_load_dword v253, v251, {s(SX,4)}, s9 offen")
    kwait(A, ["w"], stamps)
    smp = f"buffer_load_dword v9, v8, {s(SDBG,4)}, 0 offen sc0 sc1"
    def issue():
        A(f"""s_lshl_b32 s{S_SX}, s{S_ST}, 7
        s_mul_i32 s{S_SW}, s{S_ST}, 221184
        s_add_u32 m0, s{S_SLOT}, s{S_XL}
        s_add_u32 s{S_T0}, s{S_SLOT}, s{S_WL}""")
        for k in range(NX):
            A(f"buffer_load_dwordx4 v{xr[k]}, {s(SX,4)}, s{S_SX} offen offset:{1024*k} lds")
        A(f"s_mov_b32 m0, s{S_T0}\ns_add_u32 s{S_T0}, s{S_T0}, 4096")
        for i in range(4):
            A(f"buffer_load_dwordx4 v{wr[i]}, {s(SW,4)}, s{S_SW} offen offset:{1024*i} lds")
        A(f"s_mov_b32 m0, s{S_T0}\ns_nop 0")
        for i in range(4, 6):
            A(f"buffer_load_dwordx4 v{wr[i]}, {s(SW,4)}, s{S_SW} offen offset:{1024*(i-4)} lds")
        adv(A, STG)
    NI = NX + 6
    stamp0(A, stamps)
    stamp(A, 1, stamps)
    issue()
    kwait(A, ["dbg"], stamps)
    A("v_mov_b32 v8, 0\nv_mov_b32 v9, 0")
    if stamps:
        stamp(A, 2, stamps)
        for n in range(8):
            if n == 7 and ESMP: A(smp)
            issue()
            A(f"s_waitcnt vmcnt({NI})\ns_barrier")
            stamp(A, 3 + n, stamps, last=False)
        stamp(A, 11, stamps, last=True)
        A("s_branch L_ldx")
        return
    A(f"s_mov_b32 s{S_CNT}, 0")
    lp = A.newlabel("L_ld")
    A.label(lp)
    if ESMP:
        A(f"s_cmp_lg_u32 s{S_CNT}, 7\ns_cbranch_scc1 2")
        A(smp)
    issue()
    A(f"""s_waitcnt vmcnt({NI})
    s_barrier
    s_add_u32 s{S_CNT}, s{S_CNT}, 1
    s_cmp_lt_u32 s{S_CNT}, 8
    s_cbranch_scc1 {lp}""")
    A("s_branch L_ldx")

def gen_chore(A, stamps=False):
    kv, PITCH, STG = params("kv")
    NX = 7
    A(f"s_mul_i32 s{S_T2}, s{S_RB}, {128*1152}")
    A(f"s_mov_b32 s{S_T0}, 9")
    xr = [10 + k for k in range(NX)]
    x_voffsets(A, xr, S_T0, (4, 5))
    A(f"s_mov_b32 s{S_SLOT}, 0\ns_mov_b32 s{S_ST}, s{S_ROT}")
    def issue():
        A(f"""s_lshl_b32 s{S_SX}, s{S_ST}, 7
        s_add_u32 m0, s{S_SLOT}, 9216
        s_add_u32 s{S_T0}, s{S_SLOT}, {9216+4096}""")
        for k in range(4):
            A(f"buffer_load_dwordx4 v{xr[k]}, {s(SX,4)}, s{S_SX} offen offset:{1024*k} lds")
        A(f"s_mov_b32 m0, s{S_T0}\ns_nop 0")
        for k in range(4, 7):
            A(f"buffer_load_dwordx4 v{xr[k]}, {s(SX,4)}, s{S_SX} offen offset:{1024*(k-4)} lds")
        adv(A, STG)
    A(f"v_lshlrev_b32 v1, 1, v0")
    touch(A, 10)
    kwait(A, ["x"], stamps)
    if "--touch=0" not in sys.argv: A(f"buffer_load_dword v253, v251, {s(SX,4)}, s9 offen")
    kwait(A, ["g"], stamps)
    stamp0(A, stamps)
    for i in range(9):
        A(f"buffer_load_ushort v{30+i}, v1, {s(SG,4)}, 0 offen offset:{128*i}")
    issue()
    A(f"""v_lshrrev_b32 v4, 5, v0
    v_mul_u32_u24 v4, 9216, v4
    v_and_b32 v5, 31, v0
    v_lshl_add_u32 v4, v5, 3, v4
    v_add_u32 v4, {GATE_LDS}, v4
    s_waitcnt vmcnt({NX})""")
    for i in range(9):
        A(f"ds_write_b16 v4, v{30+i} offset:{256*i}")
    A(f"s_mov_b32 s{S_CNT}, 0")
    A("s_waitcnt lgkmcnt(0)")
    kwait(A, ["dbg"], stamps)
    A("v_mov_b32 v8, 0\nv_mov_b32 v9, 0")
    lp = A.newlabel("L_ch")
    A.label(lp)
    if ESMP:
        A(f"s_cmp_lg_u32 s{S_CNT}, 7\ns_cbranch_scc1 2")
        A(f"buffer_load_dword v9, v8, {s(SDBG,4)}, 0 offen sc0 sc1")
    issue()
    A(f"""s_waitcnt vmcnt({NX})
    s_barrier""")
    A(f"""s_add_u32 s{S_CNT}, s{S_CNT}, 1
    s_cmp_lt_u32 s{S_CNT}, 8
    s_cbranch_scc1 {lp}""")
    stamp(A, 6, stamps)
    loader_params(A)

def rdy_wait(A, fla, flv, sc, st_, first="s_waitcnt vmcnt(0)", off=0):
    lp = A.newlabel("L_zp"); le = A.newlabel("L_ze")
    A(f"s_mov_b32 s{sc}, 0")
    A(first)
    A.label(lp)
    A(f"""v_readfirstlane_b32 s{st_}, v{flv}
    s_cmp_ge_u32 s{st_}, 8
    s_cbranch_scc1 {le}
    s_add_u32 s{sc}, s{sc}, 1
    s_cmp_gt_u32 s{sc}, {SPIN}
    s_cbranch_scc1 {le}
    buffer_load_dword v{flv}, v{fla}, {s(SDBG,4)}, 0 offen offset:{off} sc0 sc1
    s_waitcnt vmcnt(0)
    s_branch {lp}""")
    A.label(le)

def gen_aux(A, stamps=False):
    IMG = 71680
    S_KH_, S_B_, S_J_, S_L_, S_W8_ = 5, 6, 8, 11, 12
    VW0, VWL, VW8, VW8L = 20, 21, 22, 23
    A("s_getpc_b64 s[14:15]")
    lab = A.newlabel("L_pca")
    A.label(lab)
    A(f"""s_sub_u32 s14, s14, {lab}-L_pc0
    s_subb_u32 s15, s15, 0
    v_add_u32 v2, 32768, v2
    v_min_u32 v2, L_code_end-L_pc0-8, v2
    global_load_dword v253, v2, s[14:15]""")
    A(f"""s_lshr_b32 s{S_KH_}, s{S_WAVE}, 2
    s_and_b32 s{S_B_}, s3, 1
    s_and_b32 s{S_J_}, s{S_WAVE}, 1
    s_and_b32 s{S_T0}, s3, 2
    s_add_u32 s{S_J_}, s{S_J_}, s{S_T0}
    s_lshr_b32 s{S_T0}, s3, 2
    s_lshl_b32 s{S_T0}, s{S_T0}, 1
    s_add_u32 s{S_CG}, s{S_T0}, s{S_B_}
    s_mul_i32 s{S_T0}, s{S_CG}, 288
    s_mul_i32 s{S_T1}, s{S_KH_}, {288*1152}
    s_add_u32 s{S_T0}, s{S_T0}, s{S_T1}
    s_lshl_b32 s{S_T1}, s{S_J_}, 6
    s_lshl_b32 s{S_T2}, s{S_B_}, 5
    s_add_u32 s{S_SW}, s{S_T0}, s{S_T1}
    s_add_u32 s{S_SW}, s{S_SW}, s{S_T2}
    s_mul_i32 s{S_W8_}, s{S_J_}, {72*1152}
    s_add_u32 s{S_W8_}, s{S_W8_}, s{S_T0}
    s_lshl_b32 s{S_T2}, s{S_B_}, 8
    s_sub_u32 s{S_W8_}, s{S_W8_}, s{S_T2}
    s_add_u32 s{S_W8_}, s{S_W8_}, 256
    s_mul_i32 s{S_L_}, s{S_WAVE}, 11264
    s_add_u32 s{S_L_}, s{S_L_}, {IMG}
    v_lshrrev_b32 v2, 2, v0
    v_and_b32 v3, 3, v0
    v_lshlrev_b32 v3, 4, v3
    v_mul_u32_u24 v2, 1152, v2
    v_add_u32 v{VW0}, v2, v3
    v_mov_b32 v4, {CL_G}
    v_mov_b32 v8, 0
    v_mov_b32 v9, 0
    v_mov_b32 v10, 0
    v_mov_b32 v11, 0
    ds_write_b128 v4, v[8:11]
    ds_write_b128 v4, v[8:11] offset:16
    ds_write_b128 v4, v[8:11] offset:32
    v_mov_b32 v5, 4
    ds_write_b32 v4, v5
    s_waitcnt lgkmcnt(0)
    s_barrier""")
    srd(A, SW, S_WO, S_WO + 1, 576 * 1152)
    l3 = A.newlabel("L_ph"); l4 = A.newlabel("L_pd"); l0 = A.newlabel("L_p0")
    rest = f"""v_bfe_u32 v4, v0, 3, 1
    v_mul_u32_u24 v4, 36, v4
    v_lshrrev_b32 v2, 4, v0
    v_mul_u32_u24 v2, 72, v2
    v_bfe_u32 v5, v0, 2, 1
    v_lshl_add_u32 v4, v5, 1, v4
    v_add3_u32 v4, v4, v2, 16
    v_mul_u32_u24 v4, 1152, v4
    v_add_u32 v{VWL}, v4, v3
    v_lshrrev_b32 v2, 1, v0
    v_lshrrev_b32 v4, 5, v0
    v_lshl_add_u32 v2, v4, 2, v2
    v_and_b32 v3, 1, v0
    v_lshlrev_b32 v3, 4, v3
    v_mul_u32_u24 v2, 1152, v2
    v_add_u32 v{VW8}, v2, v3
    v_mul_u32_u24 v5, 36, v5
    v_and_b32 v2, 2, v0
    v_bfe_u32 v4, v0, 3, 1
    v_add3_u32 v2, v2, v4, v5
    v_add_u32 v2, 16, v2
    v_mul_u32_u24 v2, 1152, v2
    v_add_u32 v{VW8L}, v2, v3
    v_lshlrev_b32 v1, 4, v0
    v_lshlrev_b32 v7, 3, v0
    v_add_u32 v12, s{S_L_}, v1
    v_add_u32 v13, s{S_L_}, v7
    s_mov_b32 s{S_EK}, 1
    s_mov_b32 s{S_PB}, {PB_G}
    s_mov_b32 s{S_B9}, 0
    s_mov_b32 s{S_CINC}, 0x100
    s_mov_b32 s{S_N1}, 0
    s_mov_b32 s{S_CA}, 0
    s_mov_b32 s{S_FA}, 0
    s_lshl_b32 s{S_T0}, s{S_CG}, 3
    s_lshl_b32 s{S_T1}, s{S_KH_}, 2
    s_add_u32 s{S_T0}, s{S_T0}, s{S_T1}
    s_add_u32 s{S_T0}, s{S_T0}, s{S_J_}
    s_mul_i32 s{S_SX}, s{S_T0}, {WPU}
    s_add_u32 s{S_SX}, s{S_SX}, {WS_WP}"""
    A(f"""s_cmp_lt_u32 s{S_WAVE}, 4
    s_cbranch_scc1 {l0}
    s_sleep {AUXSLEEP}""")
    A.label(l0)
    A(f"""s_bitcmp1_b32 s{S_WAVE}, 1
    s_cbranch_scc1 {l3}""")
    assert NFLAG % 8 == 0 and NFLAG // 8 <= 384
    for hh in range(2):
        E = Auto(A)
        bl = list(range(10)) if hh == 0 else list(range(10, 21))
        for b in bl:
            if b < 16:
                vo, sb, row = VW0, 13, 36 * ((b >> 1) & 1) + 20 * (b & 1)
                if b % 4 == 0 or b == bl[0]:
                    E(f"""s_xor_b32 s13, s{S_J_}, {b >> 2}
                    s_mul_i32 s13, s13, {72*1152}
                    s_add_u32 s13, s13, s{S_SW}""")
            elif b < 18:
                vo, sb, row = VWL, S_SW, b - 16
                if b == 16: A(rest)
            elif b < 20: vo, sb, row = VW8, S_W8_, 36 * (b - 18)
            else: vo, sb, row = VW8L, S_W8_, 0
            E(f"""s_add_u32 m0, s{S_L_}, {1024*(b-bl[0])}
            s_add_u32 s{S_T1}, s{sb}, {row*1152}""")
            E.one(f"buffer_load_dwordx4 v{vo}, {s(SW,4)}, s{S_T1} offen lds", tag=f"b{b}")
        if hh == 0: A(rest)
        kwait(A, ["ws", "dbg"], stamps)
        lz = A.newlabel("L_nz")
        A(f"""s_cmp_ge_u32 s{S_WAVE}, 4
        s_cbranch_scc1 {lz}
        s_and_b32 s{S_T2}, s{S_WAVE}, 1""")
        if hh == 0:
            A(f"""s_mul_i32 s{S_T1}, s3, 6144
            s_mul_i32 s{S_T2}, s{S_T2}, 3072
            s_add_u32 s{S_T1}, s{S_T1}, s{S_T2}
            s_add_u32 s{S_T1}, s{S_T1}, {WS_KVQ}""")
            for i in range(3): A(f"buffer_store_dwordx4 v[8:11], v1, {s(SWS,4)}, s{S_T1} offen offset:{1024*i} sc0 sc1")
        else:
            A(f"""s_mul_i32 s{S_T1}, s3, {NFLAG // 8 << LGF}
            s_add_u32 s{S_T1}, s{S_T1}, {FL}
            v_lshl_add_u32 v2, s{S_T2}, 6, v0""")
            for i in range(-(-NFLAG // 8 // 128)):
                A(f"""v_add_u32 v3, {128*i}, v2
                v_cmp_gt_u32 vcc, {NFLAG // 8}, v3
                v_lshlrev_b32 v3, {LGF}, v3
                s_and_b64 exec, vcc, -1
                s_cbranch_execz 2
                buffer_store_dword v8, v3, {s(SWS,4)}, s{S_T1} offen sc0 sc1
                s_mov_b64 exec, -1""")
        A.label(lz)
        pend = []
        for n0 in range(bl[0], bl[-1] + 1, 2):
            o = 1024 * (n0 - bl[0])
            E.wait_vm_tag(f"b{min(n0+1, 20)}")
            cur = []
            for n in (n0, n0 + 1):
                r = 40 + 4 * n
                if n < 18:
                    for u in range(2): E(f"ds_read_b64_tr_b16 {v(r+2*u,2)}, v12 offset:{o+1024*u+8*(n&1)}")
                elif n < 20:
                    for u in range(2): E(f"ds_read_b64_tr_b16 {v(r+2*u,2)}, v13 offset:{o+1024*(n&1)+512*u}")
                elif n == 20: E(f"ds_read_b64_tr_b16 {v(r,2)}, v13 offset:{o}")
                else: continue
                cur.append(n)
            E(f"s_add_u32 s{S_T1}, s{S_SX}, {1024*n0}")
            for n in cur:
                r = 40 + 4 * n
                if n < 20: E(f"buffer_store_dwordx4 {v(r,4)}, v1, {s(SWS,4)}, s{S_T1} offen offset:{1024*(n&1)} sc0 sc1")
                else: E(f"s_mov_b32 exec_hi, 0\nbuffer_store_dwordx2 {v(r,2)}, v7, {s(SWS,4)}, s{S_T1} offen sc0 sc1\ns_mov_b64 exec, -1")
        if hh == 0:
            A(f"s_branch {l4}")
            A.label(l3)
    A.label(l4)
    stamp0(A, stamps)
    stamp(A, 1, stamps)
    l5 = A.newlabel("L_nf")
    A(f"""s_lshr_b32 s{S_T1}, s{S_WAVE}, 2
    s_lshl_b32 s{S_T1}, s{S_T1}, 2
    v_mov_b32 v5, s{S_T1}
    v_add_u32 v4, {CL_G + 8}, v5
    v_mov_b32 v2, 1
    v_mov_b32 v3, 1
    s_mov_b64 exec, 1
    s_waitcnt vmcnt(0)
    ds_add_rtn_u32 v6, v4, v3
    s_waitcnt lgkmcnt(0)
    v_readfirstlane_b32 s{S_T0}, v6
    s_cmp_lg_u32 s{S_T0}, 3
    s_cbranch_scc1 {l5}
    v_lshlrev_b32 v5, 5, v5
    buffer_atomic_add v2, v5, {s(SDBG,4)}, 0 offen sc1""")
    A.label(l5)
    A("s_mov_b64 exec, -1")
    stamp(A, 2, stamps)
    A("s_barrier")
    A("s_sleep 8")
    rdy_wait(A, 8, 10, S_CNT, S_T3)
    stamp(A, 4, stamps)
    rdy_wait(A, 8, 11, S_CNT, S_T3, off=128)
    stamp(A, 3, stamps)
    A(f"s_and_b32 s{S_J_}, s{S_WAVE}, 3")
    l6 = A.newlabel("L_nw")
    A(f"""s_cmp_ge_u32 s{S_WAVE}, 4
    s_cbranch_scc1 {l6}
    s_lshr_b32 s{S_T0}, s3, 2
    s_lshl_b32 s{S_T0}, s{S_T0}, 4
    s_add_u32 s{S_T0}, s{S_T0}, s{S_WAVE}
    s_mul_i32 s{S_T0}, s{S_T0}, {WPU}
    s_add_u32 s{S_T0}, s{S_T0}, {WS_WP + 4*WPU}
    s_mov_b32 s{S_CNT}, 0""")
    lp = A.newlabel("L_pf")
    A.label(lp)
    A(f"""buffer_load_dwordx4 v[12:15], v1, {s(SWS,4)}, s{S_T0} offen sc1
    s_add_u32 s{S_T0}, s{S_T0}, 1024
    s_add_u32 s{S_CNT}, s{S_CNT}, 1
    s_cmp_lt_u32 s{S_CNT}, 21
    s_cbranch_scc1 {lp}
    s_waitcnt vmcnt(0)""")
    A.label(l6)
    stamp(A, 6, stamps)
    A("s_branch L_p2")
```
